```python
import torch

def _softmax(x, axis=-1):
    return torch.softmax(x, dim=axis)

def _gelu(x):
    return torch.nn.functional.gelu(x, approximate='tanh')

def _silu(x):
    return torch.nn.functional.silu(x)

def _sigmoid(x):
    return torch.sigmoid(x)

def _layernorm(x, axis=-1, eps=1e-05):
    m = x.mean(dim=axis, keepdim=True)
    v = x.var(dim=axis, keepdim=True, unbiased=False)
    return (x - m) / torch.sqrt(v + eps)

def _scatter_add(tgt, idx, src, axis=0):
    return tgt.clone().index_add_(axis, idx, src)

def _segment_sum(src, seg, n):
    out = torch.zeros((n,) + src.shape[1:], dtype=src.dtype)
    return out.index_add_(0, seg, src)

def _pad(x, pw):
    flat = tuple((v for pair in reversed(pw) for v in pair))
    return torch.nn.functional.pad(x, flat)
kernel_name = 'adaLN_cond__sliding_block_cached__swiglu_ffn__decode'

def setup_inputs():

    _w = lambda a: (lambda t: t.to(torch.bfloat16) if t.is_floating_point() else t)(torch.as_tensor(a))

    def _A_setup():
        B, Sq, D = (1, 1, 1024)
        Hq, Hkv, Sk, Dh = (32, 4, 65536, 128)
        assert Hq % Hkv == 0, (Hq, Hkv)
        return {'x': _w((lambda *s: torch.randn(*s, dtype=torch.bfloat16) * 0.1)(B, Sq, D)), 'k_cache': _w((lambda *s: torch.randn(*s, dtype=torch.bfloat16) * 0.8)(B, Hkv, Sk, Dh)), 'v_cache': _w((lambda *s: torch.randn(*s, dtype=torch.bfloat16) * 0.8)(B, Hkv, Sk, Dh)), 'wq': _w((lambda *s: torch.randn(*s, dtype=torch.bfloat16) * 0.8)(D, Hq * Dh) * D ** (-0.5)), 'wo': _w((lambda *s: torch.randn(*s, dtype=torch.bfloat16) * 0.8)(Hq * Dh, D) * (Hq * Dh) ** (-0.5))}
    _A_in = _A_setup()

    def _B_setup():
        B, S, D, F = (1, 1, 1024, 3584)
        return {'x': _w((lambda *s: torch.randn(*s, dtype=torch.bfloat16) * 0.1)(B, S, D)), 'w_gate': _w((lambda *s: torch.randn(*s, dtype=torch.bfloat16) * 0.1)(D, F)), 'w_up': _w((lambda *s: torch.randn(*s, dtype=torch.bfloat16) * 0.1)(D, F)), 'w_down': _w((lambda *s: torch.randn(*s, dtype=torch.bfloat16) * 0.1)(F, D))}
    _B_in = _B_setup()
    return {'A_x': _A_in['x'], 'A_k_cache': _A_in['k_cache'], 'A_v_cache': _A_in['v_cache'], 'A_wq': _A_in['wq'], 'A_wo': _A_in['wo'], 'B_x': _B_in['x'], 'B_w_gate': _B_in['w_gate'], 'B_w_up': _B_in['w_up'], 'B_w_down': _B_in['w_down'], 'c': _w((lambda *s: torch.randn(*s, dtype=torch.bfloat16) * 0.2)(1, 1024) * 8.0), 'w_mod': _w((lambda *s: torch.randn(*s, dtype=torch.bfloat16) * 0.2)(1024, 6 * 1024) * 1024 ** (-0.5) * 8.0)}

def reference(A_x, A_k_cache, A_v_cache, A_wq, A_wo, B_x, B_w_gate, B_w_up, B_w_down, c, w_mod):

    def _A_ref(x, k_cache, v_cache, wq, wo):
        B, Sq, D = x.shape
        Hq, Dh = (32, 128)
        Hkv, Sk = (k_cache.shape[1], k_cache.shape[2])
        W = min(4096, max(256, Sk // 4))
        rep = Hq // Hkv
        q = (lambda x, *d: x.permute(*d))((x @ wq).reshape(B, Sq, Hq, Dh), 0, 2, 1, 3)
        k = (lambda x, n, axis: torch.repeat_interleave(x, n, dim=axis))(k_cache[:, :, Sk - W:, :], rep, axis=1)
        v = (lambda x, n, axis: torch.repeat_interleave(x, n, dim=axis))(v_cache[:, :, Sk - W:, :], rep, axis=1)
        scores = torch.einsum('bhqd,bhkd->bhqk', q, k) * Dh ** (-0.5)
        p = _softmax(scores, axis=-1)
        o = torch.einsum('bhqk,bhkd->bhqd', p, v)
        return (lambda x, *d: x.permute(*d))(o, 0, 2, 1, 3).reshape(B, Sq, Hq * Dh) @ wo

    def _B_ref(x, w_gate, w_up, w_down):
        g = _silu(x @ w_gate)
        u = x @ w_up
        return g * u @ w_down
    x = A_x
    mod = (_silu(c) @ w_mod).reshape(c.shape[0], 6, 1, -1)
    sa, ca, ga, sb, cb, gb = (mod[:, 0].clone(), mod[:, 1].clone(), mod[:, 2].clone(), mod[:, 3].clone(), mod[:, 4].clone(), mod[:, 5].clone())
    h = _layernorm(x, axis=-1) * (1 + ca) + sa
    x = x + ga * _A_ref(h, A_k_cache, A_v_cache, A_wq, A_wo)
    h = _layernorm(x, axis=-1) * (1 + cb) + sb
    x = x + gb * _B_ref(h, B_w_gate, B_w_up, B_w_down)
    return x
```

```python
import re

TRANS = ("v_exp_f32", "v_log_f32", "v_rcp_f32", "v_rsq_f32", "v_sqrt_f32", "v_sin_f32", "v_cos_f32")


def _regs(tok):
    tok = tok.strip()
    tok = tok.lstrip("-")
    if tok.startswith("abs(") or tok.startswith("|"):
        tok = tok.replace("abs(", "").replace(")", "").replace("|", "")
    m = re.fullmatch(r"([vsa])(\d+)", tok)
    if m:
        return {(m.group(1), int(m.group(2)))}
    m = re.fullmatch(r"([vsa])\[(\d+):(\d+)\]", tok)
    if m:
        return {(m.group(1), i) for i in range(int(m.group(2)), int(m.group(3)) + 1)}
    if tok in ("vcc", "vcc_lo", "vcc_hi"):
        return {("vcc", 0)}
    if tok in ("exec", "exec_lo", "exec_hi"):
        return {("exec", 0)}
    if tok == "m0":
        return {("m0", 0)}
    return set()


class Ins:
    __slots__ = ("text", "op", "cls", "w", "r", "states", "srcc", "dpp", "perm", "trans", "wide_store", "ldsdma")

    def __init__(self, text):
        self.text = text
        body = text.split(";")[0].strip()
        parts = body.split(None, 1)
        op = parts[0]
        self.op = op
        rest = parts[1] if len(parts) > 1 else ""
        ops = []
        cur = ""
        depth = 0
        for ch in rest:
            if ch == "[":
                depth += 1
            if ch == "]":
                depth -= 1
            if ch == "," and depth == 0:
                ops.append(cur.strip())
                cur = ""
            else:
                cur += ch
        if cur.strip():
            ops.append(cur.strip())
        mods = ""
        if ops:
            sp = ops[-1].split(None, 1)
            ops[-1] = sp[0]
            mods = sp[1] if len(sp) > 1 else ""
        self.w = set()
        self.r = set()
        self.srcc = set()
        self.states = 1
        self.dpp = "_dpp" in op
        self.perm = op.startswith("v_permlane")
        self.trans = op.replace("_e32", "").replace("_e64", "") in TRANS
        self.wide_store = False
        self.ldsdma = False
        R = [_regs(o) for o in ops]
        if op == "s_nop":
            self.cls = "nop"
            self.states = int(ops[0], 0) + 1
        elif op.startswith("v_mfma"):
            self.cls = "mfma"
            self.w = R[0]
            self.r = R[1] | R[2] | R[3]
            self.srcc = R[3]
        elif op.startswith("v_"):
            self.cls = "valu"
            if self.perm:
                self.w = R[0] | R[1]
                self.r = R[0] | R[1]
            else:
                self.w = set(R[0])
                srcs = R[1:]
                if op.startswith(("v_add_co", "v_sub_co", "v_addc_co", "v_subb_co")):
                    self.w |= R[1]
                    srcs = R[2:]
                for x in srcs:
                    self.r |= x
                if op.startswith(("v_fmac", "v_dot2c")) or self.dpp:
                    self.r |= R[0]
        elif op.startswith("ds_"):
            self.cls = "ds"
            if op.startswith(("ds_read", "ds_bpermute", "ds_permute", "ds_swizzle")):
                self.w = R[0]
                for x in R[1:]:
                    self.r |= x
            else:
                for x in R:
                    self.r |= x
        elif op.startswith(("buffer_", "global_")):
            self.cls = "vmem"
            lds = re.search(r"\blds\b", mods) is not None or "_lds_" in op
            self.ldsdma = lds
            if "load" in op and not lds:
                self.w = R[0]
                for x in R[1:]:
                    self.r |= x
            else:
                for x in R:
                    self.r |= x
                if "store" in op and ("x4" in op or "x3" in op):
                    self.wide_store = True
                    self.srcc = R[0] if op.startswith("buffer_") else R[1]
        elif op.startswith("s_"):
            self.cls = "salu"
            if op.startswith(("s_cmp", "s_cbranch", "s_branch", "s_waitcnt", "s_barrier", "s_sleep", "s_endpgm", "s_setprio")):
                for x in R:
                    self.r |= x
            else:
                if R:
                    self.w = R[0]
                for x in R[1:]:
                    self.r |= x
        else:
            raise ValueError("unknown op " + text)


def _need(prod, cons):
    n = 0
    vw = {x for x in prod.w if x[0] in "va"}
    sw = {x for x in prod.w if x[0] in ("s", "vcc")}
    if prod.cls == "valu":
        if vw & cons.r:
            if cons.cls == "valu" and (cons.dpp or cons.perm):
                n = max(n, 2)
            if cons.cls == "mfma":
                n = max(n, 2)
            if cons.cls == "valu" and cons.op.startswith(("v_readfirstlane", "v_readlane")):
                n = max(n, 1)
            if prod.trans and cons.cls in ("valu", "mfma", "ds", "vmem"):
                n = max(n, 1)
        if sw & cons.r:
            if cons.cls == "valu":
                n = max(n, 2)
                if cons.op.startswith(("v_readlane", "v_writelane")):
                    n = max(n, 4)
            if cons.cls == "vmem":
                n = max(n, 5)
            if cons.cls == "salu":
                n = max(n, 1)
        if ("exec", 0) in prod.w:
            n = max(n, 5)
    if prod.cls == "mfma":
        if cons.cls == "mfma":
            if prod.w & (cons.r - cons.srcc):
                n = max(n, 8)
            if prod.w & cons.srcc and prod.w != cons.srcc:
                n = max(n, 6)
            if prod.w & cons.w and prod.w != cons.srcc:
                n = max(n, 8)
        else:
            if prod.w & (cons.r | cons.w):
                n = max(n, 8)
            if cons.cls == "valu" and prod.srcc & cons.w:
                n = max(n, 3)
    if prod.cls == "salu" and ("m0", 0) in prod.w and cons.ldsdma:
        n = max(n, 1)
    if prod.wide_store and prod.srcc & cons.w:
        n = max(n, 2)
    return n


class Asm:
    def __init__(self):
        self.out = []
        self.hists = [[]]
        self.snap = {}
        self.nlabel = 0
        self.ninstr = 0

    def raw(self, text):
        self.out.append(text)

    def c(self, text):
        self.out.append("    ; " + text)

    def label(self, name):
        self.out.append(name + ":")
        for h in self.snap.pop(name, []):
            self.hists.append(list(h))

    def newlabel(self, base):
        self.nlabel += 1
        return f"L_{base}_{self.nlabel}"

    def _push(self, ins):
        self.out.append("    " + ins.text)
        self.ninstr += 1
        nh = []
        for h in self.hists:
            h.append(ins)
            if len(h) > 16:
                del h[:-16]
            if not any(len(h) == len(o) and all(a is b for a, b in zip(h, o)) for o in nh):
                nh.append(h)
        self.hists = nh

    def __call__(self, text):
        for line in text.strip().split("\n"):
            line = line.strip()
            if not line or line.startswith(";"):
                continue
            ins = Ins(line)
            need = 0
            for h in self.hists:
                dist = 0
                for p in reversed(h):
                    k = _need(p, ins) - dist
                    if k > need:
                        need = k
                    dist += p.states
                    if dist > 12:
                        break
            if need > 0:
                self._push(Ins(f"s_nop {need - 1}"))
            self._push(ins)
            if ins.op.startswith(("s_cbranch", "s_branch")):
                tgt = line.split(";")[0].split()[1]
                self.snap.setdefault(tgt, []).extend([list(h) for h in self.hists])
                if ins.op == "s_branch":
                    self.hists = [[]]
            if ins.op == "s_endpgm":
                self.hists = [[]]

    def text(self):
        return "\n".join(self.out) + "\n"
```

```python
import sys
from asmlib import Asm

NAME = "adaLN_cond__sliding_block_cached__swiglu_ffn__decode"

EPOCH = 0
MODP = 0x1000
H2 = 0x31000
H3O = 0x41000
H3ML = 0xC1000
H4 = 0xC3000
X1 = 0xE3000
ST = 0xE4000
H5 = 0xE5000
H6 = 0x101000
STAMP = 0x120000
WS_USED = 0x130000

L_K = 0
L_V = 32768
L_RED0 = 65536
L_RED1 = L_RED0 + 8192
L_QS = L_RED1 + 4096
L_PS = L_QS + 8 * 272
L_WM = L_PS + 8 * 272
L_XL = L_WM + 256
LDS_BYTES = L_XL + 1024

TAGK = 0x9D6B5A37
LOG2E = 0x3FB8AA3B
SCALE = 0x3DB504F3
EPS = 0x3727C5AC


class Cfg:
    nt = True
    stamps = False


def gen(cfg):
    a = Asm()
    NT = " nt" if cfg.nt else ""
    P_X, P_K, P_V, P_WQ, P_WO, P_BX, P_WG, P_WU = 8, 10, 12, 14, 16, 18, 20, 22
    P_WD, P_C, P_WM, P_OUT, P_DBG, P_WS = 24, 26, 28, 30, 32, 34
    WS = "s[36:39]"
    SA = "s[40:43]"
    SB = "s[44:47]"
    sW, sGI, sKS, sCS = "s48", "s49", "s50", "s51"
    sT = ["s52", "s53", "s54", "s55"]
    sT32, sT16 = "s56", "s57"
    sMROW = "s58"
    t0, t1, t2, t3, t4, t5 = "s60", "s61", "s62", "s63", "s64", "s65"
    sSPIN = "s70"
    vL, vN, vG = "v1", "v2", "v3"
    vM = ["v4", "v5", "v6", "v7"]
    vFF, vTL, vTE = "v8", "v9", "v10"
    vOB = "v11"
    vRW = "v12"
    vRB = "v13"
    vL4 = "v14"
    vXB = ["v15", "v16"]
    vXA = ["v17", "v18", "v19", "v20"]
    vBAD = "v21"
    vX = "v22"
    vLN = "v23"
    A0, A1 = 24, 28
    D0, D1 = 32, 36
    T = list(range(40, 80))
    WB = 80

    def v(i):
        return f"v{i}"

    def vr(i, n):
        return f"v[{i}:{i + n - 1}]"

    def srd(dst, ptr, nbytes):
        b = int(dst[2:dst.index(":")])
        a(f"s_mov_b32 s{b}, s{ptr}")
        a(f"s_mov_b32 s{b + 1}, s{ptr + 1}")
        a(f"s_mov_b32 s{b + 2}, {nbytes}")
        a(f"s_mov_b32 s{b + 3}, 0x00020000")

    def stamp(i):
        if cfg.stamps:
            a(f"s_memrealtime s[{72 + 2 * i}:{73 + 2 * i}]")

    def rnd(dst, src):
        a(f"v_cvt_pk_bf16_f32 {dst}, {src}, {src}")
        a(f"v_and_b32 {dst}, 0xffff0000, {dst}")

    DPP = " row_mask:0xf bank_mask:0xf"

    def allsum(x, tmp, op="add"):
        o = f"v_{op}_f32"
        a(f"{o}_dpp {x}, {x}, {x} quad_perm:[1,0,3,2]{DPP}")
        a(f"{o}_dpp {x}, {x}, {x} quad_perm:[2,3,0,1]{DPP}")
        a(f"{o}_dpp {x}, {x}, {x} row_half_mirror{DPP}")
        a(f"{o}_dpp {x}, {x}, {x} row_mirror{DPP}")
        rowsum(x, tmp, op)

    def rowsum(x, tmp, op="add"):
        o = f"v_{op}_f32"
        a(f"v_mov_b32 {tmp}, {x}")
        a(f"v_permlane16_swap_b32 {x}, {tmp}")
        a(f"{o} {x}, {x}, {tmp}")
        a(f"v_mov_b32 {tmp}, {x}")
        a(f"v_permlane32_swap_b32 {x}, {tmp}")
        a(f"{o} {x}, {x}, {tmp}")

    def swapred(x):
        a(f"v_permlane32_swap_b32 {v(x)}, {v(x + 2)}")
        a(f"v_permlane32_swap_b32 {v(x + 1)}, {v(x + 3)}")
        a(f"v_add_f32 {v(x)}, {v(x)}, {v(x + 2)}")
        a(f"v_add_f32 {v(x + 1)}, {v(x + 1)}, {v(x + 3)}")
        a(f"v_permlane16_swap_b32 {v(x)}, {v(x + 1)}")
        a(f"v_add_f32 {v(x)}, {v(x)}, {v(x + 1)}")

    def silu(dst, src, tmp):
        a(f"v_mul_f32 {tmp}, 0xbfb8aa3b, {src}")
        a(f"v_exp_f32 {tmp}, {tmp}")
        a(f"v_add_f32 {tmp}, 1.0, {tmp}")
        a(f"v_rcp_f32 {tmp}, {tmp}")
        a(f"v_mul_f32 {dst}, {src}, {tmp}")

    def check4(regs, first):
        for r in regs:
            for d in range(4):
                if first:
                    a(f"v_xor_b32 {vBAD}, {sT[d]}, {v(r + d)}")
                    first = False
                else:
                    a(f"v_bitop3_b32 {vBAD}, {vBAD}, {v(r + d)}, {sT[d]} bitop3:0xf6")

    def poll(name, loads, checks, overlap=None):
        lw = a.newlabel(name + "_w")
        ld = a.newlabel(name + "_d")
        loads()
        if overlap:
            overlap()
        a.label(lw)
        a("s_waitcnt vmcnt(0)")
        checks()
        a(f"v_cmp_ne_u32 vcc, 0, {vBAD}")
        a(f"s_cbranch_vccz {ld}")
        a("s_sleep 2")
        loads()
        a(f"s_sub_u32 {sSPIN}, {sSPIN}, 1")
        a(f"s_cbranch_scc0 {lw}")
        a(f"s_mov_b32 {sSPIN}, 0")
        a("s_waitcnt vmcnt(0)")
        a.label(ld)

    def gemv_bcast(D, wbase, nt_):
        def prep(t):
            A = A0 if t % 2 == 0 else A1
            for d in range(4):
                a(f"v_and_b32_dpp {v(A + d)}, {vX}, {vM[d]} row_newbcast:{t}{DPP}")
        prep(0)
        for t in range(nt_):
            if t + 1 < nt_:
                prep(t + 1)
            A = A0 if t % 2 == 0 else A1
            c = "0" if t == 0 else vr(D, 4)
            a(f"v_mfma_f32_16x16x32_bf16 {vr(D, 4)}, {vr(A, 4)}, {vr(wbase + 4 * t, 4)}, {c}")

    def gemv_regs(D, wbase, xs):
        def prep(t):
            A = A0 if t % 2 == 0 else A1
            for d in range(4):
                a(f"v_and_b32 {v(A + d)}, {xs[t]}, {vM[d]}")
        prep(0)
        for t in range(len(xs)):
            if t + 1 < len(xs):
                prep(t + 1)
            A = A0 if t % 2 == 0 else A1
            c = "0" if t == 0 else vr(D, 4)
            a(f"v_mfma_f32_16x16x32_bf16 {vr(D, 4)}, {vr(A, 4)}, {vr(wbase + 4 * t, 4)}, {c}")

    def red_write_A(D, red):
        a("s_mov_b32 exec_hi, 0")
        a(f"ds_write_b128 {vRW}, {vr(D, 4)} offset:{red - L_RED0}")
        a("s_mov_b32 exec_hi, -1")

    def red_write_B(D, red):
        a("s_mov_b32 exec_lo, 0x00ff00ff")
        a("s_mov_b32 exec_hi, 0xff00ff00")
        a(f"ds_write_b128 {vRB}, {vr(D, 4)} offset:{red - L_RED0}")
        a("s_mov_b64 exec, -1")

    def finalize(vaddr, offs, soff):
        n = len(offs)
        for i in range(0, n, 2):
            a(f"ds_read2st64_b32 {vr(T[0] + i, 2)}, {vaddr} offset0:{offs[i]} offset1:{offs[i + 1]}")
        a("s_waitcnt lgkmcnt(0)")
        step = 1
        while step < n:
            for i in range(0, n, 2 * step):
                a(f"v_add_f32 {v(T[0] + i)}, {v(T[0] + i)}, {v(T[0] + i + step)}")
            step *= 2
        a(f"v_bfi_b32 {v(T[0])}, {vFF}, {vTL}, {v(T[0])}")
        a(f"buffer_store_dword {v(T[0])}, {vL4}, {WS}, {soff} offen sc1")

    def barrier():
        a("s_waitcnt lgkmcnt(0)")
        a("s_barrier")

    def finalize_A(red, sbase):
        sk = a.newlabel("fa")
        a(f"s_cmp_lt_u32 {sW}, 2")
        a(f"s_cbranch_scc0 {sk}")
        a(f"s_lshl_b32 {t5}, {sW}, 8")
        a(f"v_add_u32 {v(T[20])}, {t5}, {vL4}")
        a(f"v_add_u32 {v(T[20])}, {red}, {v(T[20])}")
        a(f"s_add_u32 {t5}, {t5}, {sbase}")
        finalize(v(T[20]), [0, 2, 4, 6, 8, 10, 12, 14], t5)
        a.label(sk)

    def mod_pair_poll(name, vbase, sR0, extra_loads=None, extra_checks=None, overlap=None):
        va = v(T[24])
        a(f"v_mul_u32_u24 {va}, 24576, {vG}")
        a(f"v_bfe_u32 {v(T[25])}, {vL}, 3, 1")
        a(f"v_lshl_add_u32 {va}, {v(T[25])}, 12, {va}")
        a(f"v_and_b32 {v(T[25])}, 7, {vL}")
        a(f"v_lshl_add_u32 {va}, {v(T[25])}, 4, {va}")
        a(f"s_lshl_b32 {t0}, {sR0}, 2")
        a(f"s_add_u32 {t0}, {t0}, {MODP + vbase * 4}")
        a(f"s_add_u32 {t1}, {t0}, {4 * 24576}")

        def loads():
            a(f"buffer_load_dwordx4 {vr(T[0], 4)}, {va}, {WS}, {t0} offen sc1")
            a(f"buffer_load_dwordx4 {vr(T[4], 4)}, {va}, {WS}, {t1} offen sc1")
            if extra_loads:
                extra_loads()

        def checks():
            check4([T[0], T[4]], True)
            if extra_checks:
                extra_checks()
            else:
                a(f"v_and_b32 {vBAD}, 0xff, {vBAD}")
        poll(name, loads, checks, overlap)
        for d in range(4):
            a(f"v_add_f32 {v(T[d])}, {v(T[d])}, {v(T[4 + d])}")
        swapred(T[0])

    def modulate():
        rnd(v(T[0]), v(T[0]))
        a(f"v_mov_b32_dpp {v(T[1])}, {v(T[0])} row_ror:8{DPP}")
        a(f"v_add_f32 {v(T[1])}, 1.0, {v(T[1])}")
        rnd(v(T[1]), v(T[1]))
        a(f"v_mul_f32 {v(T[1])}, {vLN}, {v(T[1])}")
        rnd(v(T[1]), v(T[1]))
        a(f"v_add_f32 {v(T[1])}, {v(T[1])}, {v(T[0])}")
        a(f"v_cvt_pk_bf16_f32 {vX}, {v(T[1])}, {v(T[1])}")

    def ln_finish(xval, mean, var, tmp):
        rnd(mean, mean)
        rnd(var, var)
        a(f"v_add_f32 {var}, {EPS}, {var}")
        rnd(var, var)
        a(f"v_sqrt_f32 {var}, {var}")
        rnd(var, var)
        a(f"v_rcp_f32 {var}, {var}")
        a(f"v_sub_f32 {tmp}, {xval}, {mean}")
        rnd(tmp, tmp)
        a(f"v_mul_f32 {tmp}, {tmp}, {var}")
        rnd(vLN, tmp)

    def lane_q8e(dst, tmp, shift):
        a(f"v_and_b32 {tmp}, 7, {vL}")
        a(f"v_lshl_add_u32 {dst}, {tmp}, 2, {vG}")
        if shift:
            a(f"v_lshlrev_b32 {dst}, {shift}, {dst}")

    def load_tileB(wreg, colbytes_sreg):
        a(f"s_add_u32 {t0}, {sMROW}, {colbytes_sreg}")
        a(f"s_add_u32 {t1}, {t0}, 12288")
        a(f"buffer_load_dwordx4 {vr(wreg, 4)}, {vOB}, {SA}, {t0} offen{NT}")
        a(f"buffer_load_dwordx4 {vr(wreg + 4, 4)}, {vOB}, {SA}, {t1} offen{NT}")

    def load_tileA(srdname, wreg, nt_, pitch, sbase, tstep, gstep):
        va = v(T[30])
        a(f"v_mul_u32_u24 {va}, {gstep}, {vG}")
        a(f"v_lshl_add_u32 {va}, {vN}, 4, {va}")
        for t in range(nt_):
            a(f"buffer_load_dwordx4 {vr(wreg + 4 * t, 4)}, {va}, {srdname}, {sbase} offen{NT}")
            if t + 1 < nt_:
                a(f"s_add_u32 {sbase}, {sbase}, {tstep}")

    def finalize_B(wave, red, colbase_dw_sreg):
        sk = a.newlabel("fb")
        a(f"s_cmp_eq_u32 {sW}, {wave}")
        a(f"s_cbranch_scc0 {sk}")
        a(f"v_add_u32 {v(T[20])}, {red}, {vL4}")
        a(f"s_mul_i32 {t5}, {sKS}, 24576")
        a(f"s_add_u32 {t5}, {t5}, {colbase_dw_sreg}")
        a(f"s_add_u32 {t5}, {t5}, {MODP}")
        finalize(v(T[20]), list(range(16)), t5)
        a.label(sk)

    def stage6(wreg, red):
        va, vs = v(T[26]), v(T[27])
        lane_q8e(va, v(T[25]), 2)
        a(f"v_and_b32 {vs}, 31, {vL}")
        a(f"v_lshlrev_b32 {vs}, 4, {vs}")
        a(f"s_lshl_b32 {t2}, s66, 2")
        a(f"s_add_u32 {t2}, {t2}, {X1}")
        a(f"s_mov_b32 {t3}, {ST}")

        def el():
            a(f"buffer_load_dword {v(T[8])}, {va}, {WS}, {t2} offen sc1")
            a(f"buffer_load_dwordx4 {vr(T[12], 4)}, {vs}, {WS}, {t3} offen sc1")

        def ec():
            a(f"v_bitop3_b32 {vBAD}, {vBAD}, {v(T[8])}, {vTE} bitop3:0xf6")
            a(f"v_and_b32 {vBAD}, 0xff, {vBAD}")
            a(f"v_bitop3_b32 {vBAD}, {vBAD}, {v(T[13])}, {sT32} bitop3:0xf6")
            a(f"v_bitop3_b32 {vBAD}, {vBAD}, {v(T[15])}, {sT32} bitop3:0xf6")
        a("s_waitcnt vmcnt(0)")
        stamp(7)
        mod_pair_poll("h5a", 3072, "s66", el, ec)
        stamp(8)
        a(f"v_mov_b32 {v(T[9])}, {v(T[12])}")
        allsum(v(T[9]), v(T[10]))
        a(f"v_mul_f32 {v(T[9])}, 0x3c800000, {v(T[9])}")
        a(f"v_sub_f32 {v(T[10])}, {v(T[12])}, {v(T[9])}")
        a(f"v_mul_f32 {v(T[10])}, {v(T[10])}, {v(T[10])}")
        a(f"v_fmac_f32 {v(T[14])}, 0x42000000, {v(T[10])}")
        allsum(v(T[14]), v(T[10]))
        a(f"v_mul_f32 {v(T[14])}, 0x3a000000, {v(T[14])}")
        a(f"v_and_b32 {v(T[8])}, 0xffff0000, {v(T[8])}")
        ln_finish(v(T[8]), v(T[9]), v(T[14]), v(T[10]))
        modulate()
        gemv_bcast(D0, wreg, 8)
        red_write_A(D0, red)
        barrier()
        finalize_A(red, "s67")
        stamp(9)

    def load_stage6(wreg):
        a(f"s_and_b32 {t0}, {t4}, 3")
        a(f"s_lshr_b32 {t1}, {t4}, 2")
        a(f"s_lshl_b32 s66, {t0}, 8")
        a(f"s_lshl_b32 {t2}, {sW}, 5")
        a(f"s_add_u32 s66, s66, {t2}")
        a(f"s_mul_i32 s67, {t0}, 28672")
        a(f"s_lshl_b32 {t2}, {t1}, 9")
        a(f"s_add_u32 s67, s67, {t2}")
        a(f"s_add_u32 s67, s67, {H5}")
        a(f"s_cmp_ge_u32 {t1}, 28")
        a(f"s_cselect_b32 s44, s{P_WU}, s{P_WG}")
        a(f"s_cselect_b32 s45, s{P_WU + 1}, s{P_WG + 1}")
        a(f"s_cselect_b32 {t2}, 28, 0")
        a("s_mov_b32 s46, 7340032")
        a("s_mov_b32 s47, 0x00020000")
        a(f"s_sub_u32 {t1}, {t1}, {t2}")
        a(f"s_lshl_b32 {t1}, {t1}, 8")
        a(f"s_mul_i32 {t0}, s66, 7168")
        a(f"s_add_u32 {t0}, {t0}, {t1}")
        load_tileA(SB, wreg, 8, 7168, t0, 4 * 7168, 7168)

    def col32_reduce(x):
        swapred(x)
        a(f"v_add_f32_dpp {v(x)}, {v(x)}, {v(x)} row_ror:8{DPP}")

    def write_stamps():
        if not cfg.stamps:
            return
        sk = a.newlabel("st")
        a(f"s_cmp_eq_u32 {sW}, 0")
        a(f"s_cbranch_scc0 {sk}")
        a("s_waitcnt lgkmcnt(0)")
        a("s_mov_b64 exec, 1")
        a(f"s_lshl_b32 {t0}, s2, 6")
        a(f"s_add_u32 {t0}, {t0}, {STAMP}")
        a(f"v_mov_b32 {v(T[1])}, 0")
        for i in range(14):
            a(f"v_mov_b32 {v(T[2 + i])}, s{72 + 2 * i}")
            a(f"buffer_store_dword {v(T[2 + i])}, {v(T[1])}, {WS}, {t0} offen offset:{4 * i}")
        a("s_mov_b64 exec, -1")
        a.label(sk)

    a.raw(f"{NAME}_kernel:")
    a("s_cmp_ge_u32 s2, 256")
    a("s_cbranch_scc1 L_end")
    a("s_load_dwordx16 s[8:23], s[0:1], 0")
    a("s_load_dwordx8 s[24:31], s[0:1], 64")
    a("s_load_dwordx4 s[32:35], s[0:1], 96")
    if cfg.stamps:
        for i in range(14):
            a(f"s_mov_b64 s[{72 + 2 * i}:{73 + 2 * i}], 0")
    stamp(0)
    a(f"v_and_b32 {vL}, 63, v0")
    a(f"v_lshrrev_b32 {v(T[0])}, 6, v0")
    a(f"v_and_b32 {vN}, 15, v0")
    a(f"v_readfirstlane_b32 {sW}, {v(T[0])}")
    a(f"v_lshrrev_b32 {vG}, 4, {vL}")
    a(f"s_and_b32 {sKS}, s2, 7")
    a(f"s_lshr_b32 {sCS}, s2, 4")
    a(f"s_lshl_b32 {sGI}, {sCS}, 3")
    a(f"s_or_b32 {sGI}, {sGI}, {sKS}")
    a(f"s_mov_b32 {sSPIN}, 100000")
    a(f"v_lshrrev_b32 {v(T[0])}, 3, {vL}")
    a(f"v_mul_u32_u24 {vOB}, 24576, {v(T[0])}")
    a(f"v_and_b32 {v(T[1])}, 7, {vL}")
    a(f"v_lshl_add_u32 {vOB}, {v(T[1])}, 4, {vOB}")
    a(f"v_lshlrev_b32 {v(T[2])}, 2, {v(T[0])}")
    a(f"v_lshlrev_b32 {v(T[3])}, 3, {vG}")
    a(f"v_lshlrev_b32 {vL4}, 2, {vL}")
    a(f"s_lshl_b32 {t2}, {sKS}, 7")
    a(f"s_lshl_b32 {t3}, {sW}, 4")
    a(f"s_add_u32 {t2}, {t2}, {t3}")
    a(f"s_mul_i32 {sMROW}, {t2}, 12288")
    a(f"s_lshl_b32 {t2}, {t2}, 1")
    a(f"s_lshr_b32 {t3}, s2, 3")
    a(f"s_lshl_b32 {t3}, {t3}, 7")
    a("s_waitcnt lgkmcnt(0)")
    a(f"s_load_dword {sT32}, s[{P_WS}:{P_WS + 1}], {EPOCH}")
    srd(SB, P_C, 2048)
    srd(SA, P_WM, 12582912)
    a(f"buffer_load_dword {v(T[4])}, {v(T[2])}, {SB}, {t2} offen")
    a(f"buffer_load_dwordx2 {vr(T[6], 2)}, {v(T[3])}, {SB}, {t2} offen")
    load_tileB(WB, t3)
    srd(WS, P_WS, WS_USED)
    a("s_bitcmp1_b32 s2, 3")
    a("s_cbranch_scc1 L_Q_pre")
    a(f"s_lshl_b32 {t3}, {sCS}, 7")
    a(f"s_add_u32 {t3}, {t3}, 4096")
    load_tileB(WB + 8, t3)
    a("s_branch L_common")
    a.label("L_Q_pre")
    srd(SB, P_X, 2048)
    a(f"v_lshlrev_b32 {v(T[8])}, 5, {vL}")
    a(f"buffer_load_dwordx4 {vr(T[12], 4)}, {v(T[8])}, {SB}, 0 offen")
    a(f"buffer_load_dwordx4 {vr(T[16], 4)}, {v(T[8])}, {SB}, 0 offen offset:16")
    a(f"s_and_b32 {t0}, {sGI}, 3")
    a(f"s_lshl_b32 s66, {t0}, 8")
    a(f"s_lshl_b32 {t1}, {sW}, 5")
    a(f"s_add_u32 s66, s66, {t1}")
    lane_q8e(v(T[9]), v(T[10]), 1)
    a(f"s_lshl_b32 {t1}, s66, 1")
    a(f"buffer_load_ushort {v(T[20])}, {v(T[9])}, {SB}, {t1} offen")
    a(f"s_and_b32 {t1}, {sGI}, 31")
    a(f"s_lshl_b32 {t1}, {t1}, 6")
    a(f"buffer_load_ushort v79, {v(T[9])}, {SB}, {t1} offen")
    srd(SB, P_WQ, 8388608)
    a(f"s_lshr_b32 {t1}, {sGI}, 2")
    a(f"s_lshl_b32 {t1}, {t1}, 8")
    a(f"s_lshl_b32 {t0}, s66, 13")
    a(f"s_add_u32 {t0}, {t0}, {t1}")
    load_tileA(SB, WB + 8, 8, 8192, t0, 4 * 8192, 8192)
    a.label("L_common")
    a(f"v_and_b32 {v(T[0])}, 1, {vL}")
    a(f"v_mov_b32 {v(T[1])}, 0xffff")
    a(f"v_lshlrev_b32 {v(T[0])}, 4, {v(T[0])}")
    a(f"v_lshlrev_b32 {v(T[1])}, {v(T[0])}, {v(T[1])}")
    a(f"v_bfe_u32 {v(T[0])}, {vL}, 1, 2")
    for d in range(4):
        a(f"v_cmp_eq_u32 vcc, {d}, {v(T[0])}")
        a(f"v_cndmask_b32 {vM[d]}, 0, {v(T[1])}, vcc")
    a(f"v_mov_b32 {vFF}, 0xff")
    a(f"s_lshl_b32 {t0}, {sW}, 9")
    a(f"s_add_u32 {t0}, {t0}, {L_RED0}")
    a(f"v_lshlrev_b32 {vRW}, 5, {vN}")
    a(f"v_lshl_add_u32 {vRW}, {vG}, 4, {vRW}")
    a(f"v_add_u32 {vRW}, {t0}, {vRW}")
    a(f"v_and_b32 {v(T[0])}, 7, {vL}")
    a(f"v_lshlrev_b32 {vRB}, 5, {v(T[0])}")
    a(f"v_and_b32 {v(T[0])}, 1, {vG}")
    a(f"v_lshl_add_u32 {vRB}, {v(T[0])}, 4, {vRB}")
    a(f"v_lshrrev_b32 {v(T[0])}, 1, {vG}")
    a(f"v_lshl_add_u32 {vRB}, {v(T[0])}, 8, {vRB}")
    a(f"v_add_u32 {vRB}, {t0}, {vRB}")
    a("s_waitcnt lgkmcnt(0)")
    a(f"s_xor_b32 {sT32}, {sT32}, {TAGK}")
    for d in range(4):
        a(f"s_bfe_u32 {sT[d]}, {sT32}, {(8 << 16) | (8 * d)}")
    a(f"s_lshr_b32 {sT16}, {sT32}, 16")
    a(f"v_and_b32 {v(T[0])}, 3, {vL}")
    a(f"v_lshlrev_b32 {v(T[0])}, 3, {v(T[0])}")
    a(f"v_lshrrev_b32 {vTL}, {v(T[0])}, {sT32}")
    a(f"v_lshlrev_b32 {v(T[0])}, 3, {vG}")
    a(f"v_lshrrev_b32 {vTE}, {v(T[0])}, {sT32}")
    a("s_bitcmp1_b32 s2, 3")
    a("s_cbranch_scc1 L_Q")

    def silu_c():
        srcs = [(T[4], vXB[0], vXB[1]), (T[6], vXA[0], vXA[1]), (T[7], vXA[2], vXA[3])]
        for s_, lo, hi in srcs:
            a(f"v_lshlrev_b32 {v(T[0])}, 16, {v(s_)}")
            a(f"v_and_b32 {v(T[1])}, 0xffff0000, {v(s_)}")
            silu(v(T[0]), v(T[0]), v(T[2]))
            silu(v(T[1]), v(T[1]), v(T[3]))
            a(f"v_cvt_pk_bf16_f32 {lo}, {v(T[0])}, {v(T[0])}")
            a(f"v_cvt_pk_bf16_f32 {hi}, {v(T[1])}, {v(T[1])}")

    a.c("======== P: S1 + ga")
    a("s_waitcnt vmcnt(4)")
    silu_c()
    a("s_waitcnt vmcnt(2)")
    gemv_regs(D0, WB, vXB)
    a("s_waitcnt vmcnt(0)")
    stamp(1)
    gemv_regs(D1, WB + 8, vXB)
    red_write_B(D0, L_RED0)
    red_write_B(D1, L_RED0 + 4096)
    barrier()
    a(f"s_lshr_b32 {t4}, s2, 3")
    a(f"s_lshl_b32 {t4}, {t4}, 8")
    finalize_B(0, L_RED0, t4)
    a(f"s_lshl_b32 {t4}, {sCS}, 8")
    a(f"s_add_u32 {t4}, {t4}, 8192")
    finalize_B(1, L_RED0 + 4096, t4)
    a("s_barrier")
    stamp(2)
    a.c("======== P: K/V burst (LDS DMA). g' = gi&3, j = gi>>2")
    a(f"s_and_b32 s66, {sGI}, 3")
    a(f"s_lshr_b32 s67, {sGI}, 2")
    a(f"s_lshl_b32 {t0}, s66, 24")
    a(f"s_lshl_b32 {t1}, s67, 15")
    a(f"s_add_u32 {t0}, {t0}, {t1}")
    a(f"s_lshl_b32 {t1}, {sW}, 12")
    a(f"s_add_u32 {t0}, {t0}, {t1}")
    a(f"s_add_u32 {t0}, {t0}, {61440 * 256}")
    srd(SA, P_K, 67108864)
    srd(SB, P_V, 67108864)
    a(f"v_xor_b32 {v(T[0])}, {vN}, {vG}")
    a(f"v_lshlrev_b32 {v(T[0])}, 4, {v(T[0])}")
    a(f"v_lshl_add_u32 {v(T[0])}, {vG}, 8, {v(T[0])}")
    for u in range(1, 4):
        a(f"v_xor_b32 {v(T[u])}, {64 * u}, {v(T[0])}")
    a(f"s_mov_b32 m0, {t1}")
    for u in range(4):
        a(f"buffer_load_dwordx4 {v(T[u])}, {SA}, {t0} offen offset:{1024 * u}{NT} lds")
    a(f"v_lshlrev_b32 {v(T[4])}, 1, {vG}")
    a(f"v_xor_b32 {v(T[4])}, {vN}, {v(T[4])}")
    a(f"v_lshlrev_b32 {v(T[4])}, 4, {v(T[4])}")
    a(f"v_lshl_add_u32 {v(T[4])}, {vG}, 8, {v(T[4])}")
    a(f"v_xor_b32 {v(T[5])}, 128, {v(T[4])}")
    a(f"s_add_u32 {t1}, {t1}, {L_V}")
    a(f"s_mov_b32 m0, {t1}")
    for u in range(4):
        a(f"buffer_load_dwordx4 {v(T[4 + (u >> 1)])}, {SB}, {t0} offen offset:{1024 * u}{NT} lds")
    KF, VF, QF = WB, WB + 16, WB + 32
    vKA, vVA, vQA, vH2, vQW, vPW = v(T[30]), v(T[31]), v(T[32]), v(T[33]), v(T[34]), v(T[35])
    a(f"v_xor_b32 {vKA}, {vN}, {vG}")
    a(f"v_lshlrev_b32 {vKA}, 4, {vKA}")
    a(f"v_lshl_add_u32 {vKA}, {vN}, 8, {vKA}")
    a(f"s_lshl_b32 {t1}, {sW}, 12")
    a(f"v_add_u32 {vKA}, {t1}, {vKA}")
    a(f"v_bfe_u32 {v(T[0])}, {vL}, 2, 2")
    a(f"v_and_b32 {v(T[1])}, 1, {vG}")
    a(f"v_lshl_or_b32 {v(T[1])}, {v(T[1])}, 2, {v(T[0])}")
    a(f"v_lshlrev_b32 {v(T[1])}, 1, {v(T[1])}")
    a(f"v_bfe_u32 {v(T[2])}, {vL}, 1, 1")
    a(f"s_lshl_b32 {t1}, {sW}, 1")
    a(f"v_or_b32 {v(T[2])}, {t1}, {v(T[2])}")
    a(f"v_xor_b32 {v(T[2])}, {v(T[2])}, {v(T[1])}")
    a(f"v_lshl_add_u32 {v(T[0])}, {vG}, 3, {v(T[0])}")
    a(f"v_lshlrev_b32 {vVA}, 8, {v(T[0])}")
    a(f"v_lshl_add_u32 {vVA}, {v(T[2])}, 4, {vVA}")
    a(f"v_and_b32 {v(T[0])}, 1, {vL}")
    a(f"v_lshl_add_u32 {vVA}, {v(T[0])}, 3, {vVA}")
    a(f"v_add_u32 {vVA}, {L_V}, {vVA}")
    a(f"v_and_b32 {v(T[0])}, 7, {vL}")
    a(f"v_mul_u32_u24 {vQA}, 272, {v(T[0])}")
    a(f"v_lshl_add_u32 {vPW}, {vG}, 3, {vQA}")
    a(f"v_lshl_add_u32 {vQA}, {vG}, 4, {vQA}")
    a(f"v_add_u32 {vQA}, {L_QS}, {vQA}")
    a(f"s_lshl_b32 {t1}, {sW}, 5")
    a(f"s_add_u32 {t1}, {t1}, {L_PS}")
    a(f"v_add_u32 {vPW}, {t1}, {vPW}")
    a(f"v_lshlrev_b32 {vH2}, 14, {vG}")
    a(f"v_lshl_add_u32 {vH2}, {vN}, 4, {vH2}")
    a(f"s_lshl_b32 {t2}, s66, 3")
    a(f"s_add_u32 {t2}, {t2}, {sW}")
    a(f"s_lshl_b32 {t2}, {t2}, 9")
    a(f"s_add_u32 {t2}, {t2}, {H2}")
    a(f"v_lshl_add_u32 {vQW}, {vN}, 2, {vG}")
    a(f"v_lshlrev_b32 {vQW}, 1, {vQW}")
    a(f"s_mul_i32 {t1}, {sW}, 272")
    a(f"s_add_u32 {t1}, {t1}, {L_QS}")
    a(f"v_add_u32 {vQW}, {t1}, {vQW}")
    a("s_waitcnt vmcnt(0)")
    stamp(3)

    def h2_loads():
        a(f"buffer_load_dwordx4 {vr(T[0], 4)}, {vH2}, {WS}, {t2} offen sc1")
        a(f"buffer_load_dwordx4 {vr(T[4], 4)}, {vH2}, {WS}, {t2} offen offset:256 sc1")

    def h2_checks():
        check4([T[0], T[4]], True)
        a(f"v_and_b32 {vBAD}, 0xff, {vBAD}")

    def h2_overlap():
        a("s_barrier")
        for s_ in range(4):
            if s_:
                a(f"v_xor_b32 {v(T[10])}, {64 * s_}, {vKA}")
            a(f"ds_read_b128 {vr(KF + 4 * s_, 4)}, {v(T[10]) if s_ else vKA}")
        for s_ in range(4):
            for u in range(2):
                a(f"ds_read_b64_tr_b16 {vr(VF + 4 * s_ + 2 * u, 2)}, {vVA} offset:{8192 * s_ + 1024 * u}")
    poll("h2", h2_loads, h2_checks, h2_overlap)
    stamp(4)
    swapred(T[0])
    swapred(T[4])
    a(f"v_cvt_pk_bf16_f32 {v(T[0])}, {v(T[0])}, {v(T[4])}")
    a(f"ds_write_b16 {vQW}, {v(T[0])}")
    a(f"ds_write_b16_d16_hi {vQW}, {v(T[0])} offset:128")
    barrier()
    for s_ in range(4):
        a(f"ds_read_b128 {vr(QF + 4 * s_, 4)}, {vQA} offset:{64 * s_}")
    for s_ in range(4):
        a(f"s_waitcnt lgkmcnt({3 - s_})" if not cfg.stamps else "s_waitcnt lgkmcnt(0)")
        c = "0" if s_ == 0 else vr(D0, 4)
        a(f"v_mfma_f32_16x16x32_bf16 {vr(D0, 4)}, {vr(KF + 4 * s_, 4)}, {vr(QF + 4 * s_, 4)}, {c}")
    a(f"v_and_b32 {v(T[8])}, 7, {vL}")
    a(f"v_lshlrev_b32 {v(T[8])}, 5, {v(T[8])}")
    a(f"v_add_u32 {v(T[8])}, {L_WM}, {v(T[8])}")
    a(f"s_lshl_b32 {t1}, {sW}, 2")
    a(f"v_add_u32 {v(T[9])}, {t1}, {v(T[8])}")
    a(f"v_cvt_pk_bf16_f32 {v(T[0])}, {v(D0)}, {v(D0 + 1)}")
    a(f"v_cvt_pk_bf16_f32 {v(T[2])}, {v(D0 + 2)}, {v(D0 + 3)}")
    for p in (0, 2):
        a(f"v_and_b32 {v(T[p + 1])}, 0xffff0000, {v(T[p])}")
        a(f"v_lshlrev_b32 {v(T[p])}, 16, {v(T[p])}")
    for r in range(4):
        a(f"v_mul_f32 {v(T[r])}, {SCALE}, {v(T[r])}")
    a(f"v_cvt_pk_bf16_f32 {v(T[0])}, {v(T[0])}, {v(T[1])}")
    a(f"v_cvt_pk_bf16_f32 {v(T[2])}, {v(T[2])}, {v(T[3])}")
    for p in (0, 2):
        a(f"v_and_b32 {v(T[p + 1])}, 0xffff0000, {v(T[p])}")
        a(f"v_lshlrev_b32 {v(T[p])}, 16, {v(T[p])}")
    a(f"v_max3_f32 {v(T[4])}, {v(T[0])}, {v(T[1])}, {v(T[2])}")
    a(f"v_max_f32 {v(T[4])}, {v(T[4])}, {v(T[3])}")
    rowsum(v(T[4]), v(T[5]), "max")
    a("s_mov_b64 exec, 0xff")
    a(f"ds_write_b32 {v(T[9])}, {v(T[4])}")
    a("s_mov_b64 exec, -1")
    barrier()
    a(f"ds_read_b128 {vr(T[12], 4)}, {v(T[8])}")
    a(f"ds_read_b128 {vr(T[16], 4)}, {v(T[8])} offset:16")
    a(f"s_mov_b32 {t1}, {LOG2E}")
    a("s_waitcnt lgkmcnt(0)")
    a(f"v_max3_f32 {v(T[4])}, {v(T[12])}, {v(T[13])}, {v(T[14])}")
    a(f"v_max3_f32 {v(T[5])}, {v(T[15])}, {v(T[16])}, {v(T[17])}")
    a(f"v_max3_f32 {v(T[4])}, {v(T[4])}, {v(T[18])}, {v(T[19])}")
    a(f"v_max_f32 {v(T[4])}, {v(T[4])}, {v(T[5])}")
    for r in range(4):
        a(f"v_sub_f32 {v(T[r])}, {v(T[r])}, {v(T[4])}")
    for r in range(4):
        a(f"v_mul_f32 {v(T[r])}, {t1}, {v(T[r])}")
    for r in range(4):
        a(f"v_exp_f32 {v(T[r])}, {v(T[r])}")
    a(f"v_cvt_pk_bf16_f32 {v(T[6])}, {v(T[0])}, {v(T[1])}")
    a(f"v_cvt_pk_bf16_f32 {v(T[7])}, {v(T[2])}, {v(T[3])}")
    a("s_mov_b32 exec_lo, 0x00ff00ff")
    a("s_mov_b32 exec_hi, 0x00ff00ff")
    a(f"ds_write_b64 {vPW}, {vr(T[6], 2)}")
    a("s_mov_b64 exec, -1")
    for d in range(4):
        a(f"v_mov_b32 {v(A0 + d)}, 0x3f803f80")
    a(f"v_lshlrev_b32 {v(T[10])}, 7, {vG}")
    a(f"v_lshl_add_u32 {v(T[10])}, {vN}, 4, {v(T[10])}")
    a(f"s_lshl_b32 {t2}, s66, 3")
    a(f"s_add_u32 {t2}, {t2}, {sW}")
    a(f"s_lshl_b32 {t2}, {t2}, 5")
    a(f"s_add_u32 {t2}, {t2}, s67")
    a(f"s_lshl_b32 {t2}, {t2}, 9")
    a(f"s_add_u32 {t2}, {t2}, {H3O}")
    a(f"v_lshlrev_b32 {v(T[11])}, 8, {vN}")
    a(f"s_lshl_b32 {t3}, s66, 11")
    a(f"s_lshl_b32 {t4}, s67, 3")
    a(f"s_add_u32 {t3}, {t3}, {t4}")
    a(f"s_add_u32 {t3}, {t3}, {H3ML}")
    barrier()
    for s_ in range(4):
        a(f"ds_read_b128 {vr(QF + 4 * s_, 4)}, {vQA} offset:{L_PS - L_QS + 64 * s_}")
    for s_ in range(4):
        a(f"s_waitcnt lgkmcnt({3 - s_})" if not cfg.stamps else "s_waitcnt lgkmcnt(0)")
        c = "0" if s_ == 0 else vr(D0, 4)
        a(f"v_mfma_f32_16x16x32_bf16 {vr(D0, 4)}, {vr(VF + 4 * s_, 4)}, {vr(QF + 4 * s_, 4)}, {c}")
    for s_ in range(4):
        c = "0" if s_ == 0 else vr(D1, 4)
        a(f"v_mfma_f32_16x16x32_bf16 {vr(D1, 4)}, {vr(A0, 4)}, {vr(QF + 4 * s_, 4)}, {c}")
    for d in range(4):
        a(f"v_bfi_b32 {v(D0 + d)}, {vFF}, {sT[d]}, {v(D0 + d)}")
    a("s_mov_b32 exec_lo, 0x00ff00ff")
    a("s_mov_b32 exec_hi, 0x00ff00ff")
    a(f"buffer_store_dwordx4 {vr(D0, 4)}, {v(T[10])}, {WS}, {t2} offen sc1")
    a("s_mov_b64 exec, -1")
    sk = a.newlabel("ml")
    a(f"s_cmp_eq_u32 {sW}, 0")
    a(f"s_cbranch_scc0 {sk}")
    a(f"v_or_b32 {v(T[4])}, {sT16}, {v(T[4])}")
    a(f"v_bfi_b32 {v(T[5])}, {vFF}, {sT[0]}, {v(D1)}")
    a("s_mov_b64 exec, 0xff")
    a(f"buffer_store_dwordx2 {vr(T[4], 2)}, {v(T[11])}, {WS}, {t3} offen sc1")
    a("s_mov_b64 exec, -1")
    a.label(sk)
    a("s_barrier")
    stamp(5)
    a.c("======== P: sb/cb tile + gate/up tile loads")
    srd(SA, P_WM, 12582912)
    a(f"s_lshl_b32 {t0}, {sCS}, 8")
    a(f"s_add_u32 {t0}, {t0}, 6144")
    a(f"s_add_u32 {t0}, {t0}, {sMROW}")
    load_tileA(SA, WB, 4, 12288, t0, 12288, 4 * 12288)
    a(f"s_mov_b32 {t4}, {sGI}")
    load_stage6(WB + 16)
    a("s_waitcnt vmcnt(8)")
    gemv_regs(D0, WB, vXA)
    red_write_A(D0, L_RED1)
    barrier()
    a(f"s_mul_i32 {t4}, {sKS}, 24576")
    a(f"s_lshl_b32 {t3}, {sCS}, 9")
    a(f"s_add_u32 {t4}, {t4}, {t3}")
    a(f"s_add_u32 {t4}, {t4}, {MODP + 3072 * 4}")
    finalize_A(L_RED1, t4)
    stamp(6)
    stage6(WB + 16, L_RED0)
    a("s_barrier")
    a.c("======== P: w_down tile. rs = gi&15, cs = gi>>4")
    srd(SA, P_WD, 7340032)
    a(f"s_and_b32 s66, {sGI}, 15")
    a(f"s_lshr_b32 s67, {sGI}, 4")
    a(f"s_mul_i32 {t2}, s66, 224")
    a(f"s_mul_i32 {t1}, {sW}, 28")
    a(f"s_add_u32 {t2}, {t2}, {t1}")
    a(f"s_lshl_b32 {t0}, {t2}, 11")
    a(f"s_lshl_b32 {t1}, s67, 8")
    a(f"s_add_u32 {t0}, {t0}, {t1}")
    load_tileA(SA, WB, 7, 2048, t0, 4 * 2048, 2048)
    va = v(T[24])
    a(f"v_mul_u32_u24 {va}, 28672, {vG}")
    a(f"v_bfe_u32 {v(T[25])}, {vL}, 3, 1")
    a(f"v_mul_u32_u24 {v(T[25])}, 14336, {v(T[25])}")
    a(f"v_add_u32 {va}, {va}, {v(T[25])}")
    a(f"v_and_b32 {v(T[25])}, 7, {vL}")
    a(f"v_min_u32 {v(T[25])}, 6, {v(T[25])}")
    a(f"v_lshl_add_u32 {va}, {v(T[25])}, 4, {va}")
    a(f"s_lshl_b32 {t2}, {t2}, 2")
    a(f"s_add_u32 {t2}, {t2}, {H5}")
    a("s_waitcnt vmcnt(0)")
    stamp(10)

    def h5_loads():
        a(f"buffer_load_dwordx4 {vr(T[0], 4)}, {va}, {WS}, {t2} offen sc1")

    def h5_checks():
        check4([T[0]], True)
        a(f"v_and_b32 {vBAD}, 0xff, {vBAD}")
    poll("h5", h5_loads, h5_checks)
    stamp(11)
    swapred(T[0])
    rnd(v(T[0]), v(T[0]))
    a(f"v_mov_b32_dpp {v(T[1])}, {v(T[0])} row_ror:8{DPP}")
    silu(v(T[2]), v(T[0]), v(T[3]))
    rnd(v(T[2]), v(T[2]))
    a(f"v_mul_f32 {v(T[2])}, {v(T[2])}, {v(T[1])}")
    a(f"v_cvt_pk_bf16_f32 {vX}, {v(T[2])}, {v(T[2])}")
    gemv_bcast(D0, WB, 7)
    red_write_A(D0, L_RED1)
    barrier()
    a(f"s_lshl_b32 {t4}, s66, 12")
    a(f"s_lshl_b32 {t3}, s67, 9")
    a(f"s_add_u32 {t4}, {t4}, {t3}")
    a(f"s_add_u32 {t4}, {t4}, {H6}")
    finalize_A(L_RED1, t4)
    stamp(12)
    a.c("======== P: final reduction on gi < 32, wave 0")
    a(f"s_cmp_lt_u32 {sGI}, 32")
    a("s_cbranch_scc0 L_fin")
    a(f"s_cmp_eq_u32 {sW}, 0")
    a("s_cbranch_scc0 L_fin")
    va, vb, vc = v(T[24]), v(T[25]), v(T[26])
    a(f"v_lshrrev_b32 {v(T[27])}, 3, {vL}")
    a(f"v_and_b32 {v(T[28])}, 7, {vL}")
    a(f"v_lshlrev_b32 {v(T[28])}, 4, {v(T[28])}")
    a(f"v_lshl_add_u32 {va}, {v(T[27])}, 12, {v(T[28])}")
    a(f"v_mul_u32_u24 {vb}, 24576, {v(T[27])}")
    a(f"v_add_u32 {vb}, {vb}, {v(T[28])}")
    lane_q8e(vc, v(T[27]), 2)
    a(f"s_lshl_b32 {t3}, {sGI}, 7")
    a(f"s_add_u32 {t0}, {t3}, {H6}")
    a(f"s_add_u32 {t1}, {t0}, 32768")
    a(f"s_add_u32 {t2}, {t3}, {MODP + 5120 * 4}")
    a(f"s_add_u32 {t3}, {t3}, {X1}")
    a("s_waitcnt vmcnt(0)")

    def h6_loads():
        a(f"buffer_load_dwordx4 {vr(T[0], 4)}, {va}, {WS}, {t0} offen sc1")
        a(f"buffer_load_dwordx4 {vr(T[4], 4)}, {va}, {WS}, {t1} offen sc1")
        a(f"buffer_load_dwordx4 {vr(T[8], 4)}, {vb}, {WS}, {t2} offen sc1")
        a(f"buffer_load_dword {v(T[12])}, {vc}, {WS}, {t3} offen sc1")

    def h6_checks():
        check4([T[0], T[4], T[8]], True)
        a(f"v_bitop3_b32 {vBAD}, {vBAD}, {v(T[12])}, {vTE} bitop3:0xf6")
        a(f"v_and_b32 {vBAD}, 0xff, {vBAD}")
    poll("h6", h6_loads, h6_checks)
    for d in range(4):
        a(f"v_add_f32 {v(T[d])}, {v(T[d])}, {v(T[4 + d])}")
    col32_reduce(T[0])
    col32_reduce(T[8])
    rnd(v(T[0]), v(T[0]))
    rnd(v(T[8]), v(T[8]))
    a(f"v_mul_f32 {v(T[0])}, {v(T[0])}, {v(T[8])}")
    rnd(v(T[0]), v(T[0]))
    a(f"v_and_b32 {v(T[12])}, 0xffff0000, {v(T[12])}")
    a(f"v_add_f32 {v(T[0])}, {v(T[0])}, {v(T[12])}")
    a(f"v_cvt_pk_bf16_f32 {v(T[0])}, {v(T[0])}, {v(T[0])}")
    srd(SA, P_OUT, 2048)
    a(f"v_lshrrev_b32 {vc}, 1, {vc}")
    a(f"s_lshl_b32 {t3}, {sGI}, 6")
    a("s_mov_b32 exec_lo, 0x00ff00ff")
    a("s_mov_b32 exec_hi, 0x00ff00ff")
    a(f"buffer_store_short {v(T[0])}, {vc}, {SA}, {t3} offen")
    a("s_mov_b64 exec, -1")
    stamp(13)
    a(f"s_cmp_eq_u32 {sGI}, 0")
    a("s_cbranch_scc0 L_fin")
    a(f"v_mov_b32 {v(T[0])}, {sT32}")
    a(f"v_mov_b32 {v(T[1])}, {EPOCH}")
    a("s_mov_b64 exec, 1")
    a(f"buffer_store_dword {v(T[0])}, {v(T[1])}, {WS}, 0 offen")
    a("s_mov_b64 exec, -1")
    a("s_branch L_fin")

    a.label("L_Q")
    a.c("======== Q: S1")
    a("s_waitcnt vmcnt(14)")
    silu_c()
    a("s_waitcnt vmcnt(12)")
    stamp(1)
    gemv_regs(D0, WB, vXB)
    red_write_B(D0, L_RED0)
    barrier()
    a("s_waitcnt vmcnt(8)")
    XU = WB + 40
    for i in range(8):
        a(f"v_lshlrev_b32 {v(XU + 2 * i)}, 16, {v(T[12 + i])}")
        a(f"v_and_b32 {v(XU + 2 * i + 1)}, 0xffff0000, {v(T[12 + i])}")
    a(f"v_lshlrev_b32 {v(XU + 16)}, 16, {v(T[20])}")
    a(f"s_lshr_b32 {t4}, s2, 3")
    a(f"s_lshl_b32 {t4}, {t4}, 8")
    finalize_B(0, L_RED0, t4)
    stamp(2)
    a(f"v_add_f32 {v(T[0])}, {v(XU)}, {v(XU + 1)}")
    for i in range(2, 16):
        a(f"v_add_f32 {v(T[0])}, {v(T[0])}, {v(XU + i)}")
    allsum(v(T[0]), v(T[1]))
    a(f"v_mul_f32 {v(T[0])}, 0x3a800000, {v(T[0])}")
    a(f"v_mov_b32 {v(T[2])}, 0")
    for i in range(16):
        a(f"v_sub_f32 {v(XU + i)}, {v(XU + i)}, {v(T[0])}")
        a(f"v_fmac_f32 {v(T[2])}, {v(XU + i)}, {v(XU + i)}")
    allsum(v(T[2]), v(T[1]))
    a(f"v_mul_f32 {v(T[2])}, 0x3a800000, {v(T[2])}")
    ln_finish(v(XU + 16), v(T[0]), v(T[2]), v(T[1]))
    a.c("======== Q: S2")
    a("s_waitcnt vmcnt(0)")
    stamp(3)
    mod_pair_poll("h1", 0, "s66")
    stamp(4)
    modulate()
    gemv_bcast(D0, WB + 8, 8)
    red_write_A(D0, L_RED1)
    barrier()
    a(f"s_and_b32 {t4}, {sGI}, 3")
    a(f"s_lshl_b32 {t4}, {t4}, 14")
    a(f"s_lshr_b32 {t3}, {sGI}, 2")
    a(f"s_lshl_b32 {t3}, {t3}, 9")
    a(f"s_add_u32 {t4}, {t4}, {t3}")
    a(f"s_add_u32 {t4}, {t4}, {H2}")
    finalize_A(L_RED1, t4)
    a("s_barrier")
    stamp(5)
    a.c("======== Q: wo tile. rs = gi&31 (g' = rs>>3, dblk = rs&7), cs = gi>>5")
    srd(SA, P_WO, 8388608)
    a(f"s_and_b32 s66, {sGI}, 31")
    a(f"s_lshr_b32 s67, {sGI}, 5")
    a(f"s_lshr_b32 {t1}, s66, 3")
    a(f"s_lshl_b32 {t0}, {t1}, 10")
    a(f"s_and_b32 {t1}, s66, 7")
    a(f"s_lshl_b32 {t1}, {t1}, 4")
    a(f"s_add_u32 {t0}, {t0}, {t1}")
    a(f"s_and_b32 {t1}, {sW}, 3")
    a(f"s_lshl_b32 {t1}, {t1}, 2")
    a(f"s_add_u32 {t0}, {t0}, {t1}")
    a(f"s_lshl_b32 {t0}, {t0}, 11")
    a(f"s_lshl_b32 {t1}, s67, 9")
    a(f"s_add_u32 {t0}, {t0}, {t1}")
    a(f"s_lshr_b32 {t1}, {sW}, 2")
    a(f"s_lshl_b32 {t1}, {t1}, 8")
    a(f"s_add_u32 {t0}, {t0}, {t1}")
    load_tileA(SA, WB, 8, 2048, t0, 128 * 2048, 2048)
    a(f"s_and_b32 {t1}, {sW}, 3")
    a(f"s_lshl_b32 {t1}, {t1}, 8")
    a(f"s_add_u32 {t1}, {t1}, {L_XL}")
    a(f"v_add_u32 {v(T[33])}, {t1}, {vL4}")
    a("s_waitcnt vmcnt(0)")
    stamp(6)
    a(f"s_cmp_lt_u32 {sW}, 4")
    a("s_cbranch_scc0 L_s4_wait")
    va, vb = v(T[31]), v(T[32])
    a(f"v_lshrrev_b32 {v(T[28])}, 3, {vL}")
    a(f"v_and_b32 {v(T[29])}, 7, {vL}")
    a(f"v_lshlrev_b32 {va}, 11, {v(T[28])}")
    a(f"v_lshl_add_u32 {va}, {v(T[29])}, 4, {va}")
    a(f"v_lshlrev_b32 {vb}, 5, {v(T[28])}")
    a(f"v_lshl_add_u32 {vb}, {v(T[29])}, 8, {vb}")
    a(f"s_lshl_b32 {t2}, s66, 14")
    a(f"s_lshl_b32 {t1}, {sW}, 7")
    a(f"s_add_u32 {t2}, {t2}, {t1}")
    a(f"s_add_u32 {t2}, {t2}, {H3O}")
    a(f"s_lshr_b32 {t3}, s66, 3")
    a(f"s_lshl_b32 {t3}, {t3}, 11")
    a(f"s_add_u32 {t3}, {t3}, {H3ML}")

    def h3_loads():
        a(f"buffer_load_dwordx4 {vr(T[16], 4)}, {vb}, {WS}, {t3} offen sc1")
        a(f"buffer_load_dwordx4 {vr(T[20], 4)}, {vb}, {WS}, {t3} offen offset:16 sc1")
        for i in range(4):
            a(f"buffer_load_dwordx4 {vr(T[4 * i], 4)}, {va}, {WS}, {t2} offen offset:{512 * i} sc1")

    def h3_checks():
        check4([T[0], T[4], T[8], T[12]], True)
        for i in range(4):
            a(f"v_bitop3_b32 {vBAD}, {vBAD}, {v(T[17 + 2 * i])}, {sT[0]} bitop3:0xf6")
        a(f"v_and_b32 {vBAD}, 0xff, {vBAD}")
        a(f"v_xor_b32 {v(T[24])}, {sT16}, {v(T[16])}")
        for i in range(1, 4):
            a(f"v_bitop3_b32 {v(T[24])}, {v(T[24])}, {v(T[16 + 2 * i])}, {sT16} bitop3:0xf6")
        a(f"v_and_b32 {v(T[24])}, 0xffff, {v(T[24])}")
        a(f"v_or_b32 {vBAD}, {vBAD}, {v(T[24])}")
    poll("h3", h3_loads, h3_checks)
    stamp(7)
    for i in range(4):
        a(f"v_and_b32 {v(T[16 + 2 * i])}, 0xffff0000, {v(T[16 + 2 * i])}")
    a(f"v_max3_f32 {v(T[24])}, {v(T[16])}, {v(T[18])}, {v(T[20])}")
    a(f"v_max_f32 {v(T[24])}, {v(T[24])}, {v(T[22])}")
    a(f"v_max_f32_dpp {v(T[24])}, {v(T[24])}, {v(T[24])} row_ror:8{DPP}")
    rowsum(v(T[24]), v(T[25]), "max")
    a(f"s_mov_b32 {t1}, {LOG2E}")
    for i in range(4):
        a(f"v_sub_f32 {v(T[16 + 2 * i])}, {v(T[16 + 2 * i])}, {v(T[24])}")
    for i in range(4):
        a(f"v_mul_f32 {v(T[16 + 2 * i])}, {t1}, {v(T[16 + 2 * i])}")
    for i in range(4):
        a(f"v_exp_f32 {v(T[16 + 2 * i])}, {v(T[16 + 2 * i])}")
    a(f"v_mul_f32 {v(T[24])}, {v(T[16])}, {v(T[17])}")
    for i in range(1, 4):
        a(f"v_fmac_f32 {v(T[24])}, {v(T[16 + 2 * i])}, {v(T[17 + 2 * i])}")
    for d in range(4):
        a(f"v_mul_f32 {v(T[d])}, {v(T[16])}, {v(T[d])}")
    a(f"v_add_f32_dpp {v(T[24])}, {v(T[24])}, {v(T[24])} row_ror:8{DPP}")
    for i in range(1, 4):
        for d in range(4):
            a(f"v_fmac_f32 {v(T[d])}, {v(T[16 + 2 * i])}, {v(T[4 * i + d])}")
    rowsum(v(T[24]), v(T[25]), "add")
    a(f"v_rcp_f32 {v(T[24])}, {v(T[24])}")
    col32_reduce(T[0])
    a(f"v_mul_f32 {v(T[0])}, {v(T[0])}, {v(T[24])}")
    a(f"v_cvt_pk_bf16_f32 {vX}, {v(T[0])}, {v(T[0])}")
    a(f"ds_write_b32 {v(T[33])}, {vX}")
    a.label("L_s4_wait")
    barrier()
    a(f"ds_read_b32 {vX}, {v(T[33])}")
    a("s_waitcnt lgkmcnt(0)")
    gemv_bcast(D0, WB, 8)
    red_write_A(D0, L_RED0)
    barrier()
    sk = a.newlabel("f4")
    a(f"s_cmp_lt_u32 {sW}, 4")
    a(f"s_cbranch_scc0 {sk}")
    a(f"s_lshr_b32 {t0}, {sW}, 1")
    a(f"s_lshl_b32 {t0}, {t0}, 11")
    a(f"s_and_b32 {t1}, {sW}, 1")
    a(f"s_lshl_b32 {t1}, {t1}, 8")
    a(f"s_add_u32 {t0}, {t0}, {t1}")
    a(f"s_add_u32 {t0}, {t0}, {L_RED0}")
    a(f"v_add_u32 {v(T[20])}, {t0}, {vL4}")
    a(f"s_lshl_b32 {t5}, s66, 12")
    a(f"s_lshl_b32 {t1}, s67, 10")
    a(f"s_add_u32 {t5}, {t5}, {t1}")
    a(f"s_lshl_b32 {t1}, {sW}, 8")
    a(f"s_add_u32 {t5}, {t5}, {t1}")
    a(f"s_add_u32 {t5}, {t5}, {H4}")
    finalize(v(T[20]), [0, 2, 4, 6], t5)
    a.label(sk)
    a("s_barrier")
    stamp(10)
    a(f"s_cmp_ge_u32 {sGI}, 96")
    a("s_cbranch_scc1 L_R")
    a.c("======== Q: gate/up tile")
    a(f"s_add_u32 {t4}, {sGI}, 128")
    load_stage6(WB + 16)
    stage6(WB + 16, L_RED1)
    a("s_branch L_gb")
    a.label("L_R")
    a.c("======== R: x1 slice (wave 0)")
    a(f"s_cmp_eq_u32 {sW}, 0")
    a("s_cbranch_scc0 L_gb")
    va, vb, vc = v(T[24]), v(T[25]), v(T[26])
    a(f"v_lshrrev_b32 {v(T[27])}, 3, {vL}")
    a(f"v_and_b32 {v(T[28])}, 7, {vL}")
    a(f"v_lshlrev_b32 {v(T[28])}, 4, {v(T[28])}")
    a(f"v_lshl_add_u32 {va}, {v(T[27])}, 12, {v(T[28])}")
    a(f"v_mul_u32_u24 {vb}, 24576, {v(T[27])}")
    a(f"v_add_u32 {vb}, {vb}, {v(T[28])}")
    lane_q8e(vc, v(T[27]), 2)
    a(f"s_and_b32 s66, {sGI}, 31")
    a(f"s_lshl_b32 {t5}, s66, 7")
    a(f"s_add_u32 {t0}, {t5}, {H4}")
    a(f"s_add_u32 {t1}, {t0}, 32768")
    a(f"s_add_u32 {t2}, {t0}, 65536")
    a(f"s_add_u32 {t3}, {t0}, 98304")
    a(f"s_add_u32 {t4}, {t5}, {MODP + 2048 * 4}")
    a("s_waitcnt vmcnt(0)")

    def h4_loads():
        for i, s_ in enumerate((t0, t1, t2, t3)):
            a(f"buffer_load_dwordx4 {vr(T[4 * i], 4)}, {va}, {WS}, {s_} offen sc1")
        a(f"buffer_load_dwordx4 {vr(T[16], 4)}, {vb}, {WS}, {t4} offen sc1")

    def h4_checks():
        check4([T[0], T[4], T[8], T[12], T[16]], True)
        a(f"v_and_b32 {vBAD}, 0xff, {vBAD}")
    poll("h4", h4_loads, h4_checks)
    stamp(8)
    for d in range(4):
        a(f"v_add_f32 {v(T[d])}, {v(T[d])}, {v(T[4 + d])}")
        a(f"v_add_f32 {v(T[8 + d])}, {v(T[8 + d])}, {v(T[12 + d])}")
    for d in range(4):
        a(f"v_add_f32 {v(T[d])}, {v(T[d])}, {v(T[8 + d])}")
    col32_reduce(T[0])
    col32_reduce(T[16])
    rnd(v(T[0]), v(T[0]))
    rnd(v(T[16]), v(T[16]))
    a(f"v_mul_f32 {v(T[0])}, {v(T[0])}, {v(T[16])}")
    rnd(v(T[0]), v(T[0]))
    a("v_lshlrev_b32 v79, 16, v79")
    a(f"v_add_f32 {v(T[0])}, {v(T[0])}, v79")
    rnd(v(T[0]), v(T[0]))
    a(f"v_bfi_b32 {v(T[1])}, {vFF}, {vTE}, {v(T[0])}")
    a(f"s_add_u32 {t0}, {t5}, {X1}")
    a("s_mov_b32 exec_lo, 0x00ff00ff")
    a("s_mov_b32 exec_hi, 0x00ff00ff")
    a(f"buffer_store_dword {v(T[1])}, {vc}, {WS}, {t0} offen sc1")
    a("s_mov_b64 exec, -1")
    a(f"v_mov_b32 {v(T[4])}, {v(T[0])}")
    allsum(v(T[4]), v(T[2]))
    a(f"v_mul_f32 {v(T[4])}, 0x3c800000, {v(T[4])}")
    a(f"v_sub_f32 {v(T[6])}, {v(T[0])}, {v(T[4])}")
    a(f"v_mul_f32 {v(T[6])}, {v(T[6])}, {v(T[6])}")
    allsum(v(T[6]), v(T[2]))
    a(f"v_mul_f32 {v(T[6])}, 0.5, {v(T[6])}")
    a(f"v_mov_b32 {v(T[5])}, {sT32}")
    a(f"v_mov_b32 {v(T[7])}, {sT32}")
    a(f"v_mov_b32 {v(T[2])}, 0")
    a(f"s_lshl_b32 {t0}, s66, 4")
    a(f"s_add_u32 {t0}, {t0}, {ST}")
    a("s_mov_b64 exec, 1")
    a(f"buffer_store_dwordx4 {vr(T[4], 4)}, {v(T[2])}, {WS}, {t0} offen sc1")
    a("s_mov_b64 exec, -1")
    stamp(9)
    a.label("L_gb")
    a("s_barrier")
    a.c("======== Q: gb tile")
    srd(SA, P_WM, 12582912)
    a(f"s_lshl_b32 {t3}, {sCS}, 7")
    a(f"s_add_u32 {t3}, {t3}, 10240")
    load_tileB(WB, t3)
    a("s_waitcnt vmcnt(0)")
    stamp(11)
    gemv_regs(D0, WB, vXB)
    red_write_B(D0, L_RED0)
    barrier()
    a(f"s_lshl_b32 {t4}, {sCS}, 8")
    a(f"s_add_u32 {t4}, {t4}, 20480")
    finalize_B(0, L_RED0, t4)
    stamp(12)
    a.label("L_fin")
    write_stamps()
    a.label("L_end")
    a("s_endpgm")

    hdr = open("cdna_kernels/" + NAME + ".s.ref").read().split("; @launch")[0]
    out = hdr
    out += f"; @launch grid=(256,1,1) block=(512,1,1) lds={LDS_BYTES}\n"
    out += '.amdgcn_target "amdgcn-amd-amdhsa--gfx950"\n.text\n'
    out += f".globl {NAME}_kernel\n.p2align 8\n.type {NAME}_kernel,@function\n"
    out += a.text()
    out += f""".section .rodata,"a"
.p2align 6
.amdhsa_kernel {NAME}_kernel
  .amdhsa_next_free_vgpr 144
  .amdhsa_next_free_sgpr 102
  .amdhsa_accum_offset 144
  .amdhsa_group_segment_fixed_size 0
  .amdhsa_kernarg_size 112
  .amdhsa_user_sgpr_count 2
  .amdhsa_user_sgpr_kernarg_segment_ptr 1
  .amdhsa_system_sgpr_workgroup_id_x 1
.end_amdhsa_kernel
"""
    return out, a.ninstr


if __name__ == "__main__":
    cfg = Cfg()
    outp = sys.argv[1]
    for kv in sys.argv[2:]:
        k, val = kv.split("=")
        setattr(cfg, k, type(getattr(cfg, k))(int(val)))
    txt, n = gen(cfg)
    open(outp, "w").write(txt)
    print("wrote", outp, n, "instructions")
```

```python
import sys
from asmlib import Asm

NAME = "adaLN_cond__sliding_block_cached__swiglu_ffn__decode"

EPOCH = 0
MODP = 0x1000
H2 = 0x31000
H3O = 0x41000
H3ML = 0xC1000
H4 = 0xD1000
XR = 0xF1000
H5 = 0xF3000
H6 = 0x10F000
FLG = 0x120000
STAMP = 0x150000
WS_USED = 0x160000
F_H2, F_H3, F_X1, F_H5, F_H1 = 0, 1, 2, 3, 4

L_K = 0
L_V = 32768
L_RED0 = 65536
L_RED1 = L_RED0 + 8192
L_QS = L_RED1 + 4096
L_PS = L_QS + 8 * 272
L_WM = L_PS + 8 * 272
L_XL = L_WM + 256
LDS_BYTES = L_XL + 1024

TAGK = 0x9D6B5A37
LOG2E = 0x3FB8AA3B
SCALE = 0x3DB504F3
EPS = 0x3727C5AC


class Cfg:
    nt = True
    stamps = False
    amp = 0
    backoff = 4
    kv0 = 0
    kv1 = 0
    p3a = 4
    p7a = 0
    p7b = 3
    q2a = 0
    q6a = 0
    q6b = 3
    gbe = 1


def gen(cfg):
    a = Asm()
    NT = " nt" if cfg.nt else ""
    P_X, P_K, P_V, P_WQ, P_WO, P_BX, P_WG, P_WU = 8, 10, 12, 14, 16, 18, 20, 22
    P_WD, P_C, P_WM, P_OUT, P_DBG, P_WS = 24, 26, 28, 30, 32, 34
    WS = "s[36:39]"
    SA = "s[40:43]"
    SB = "s[44:47]"
    SM = "s[4:7]"
    sW, sGI, sKS, sCS = "s48", "s49", "s50", "s51"
    sT = ["s52", "s53", "s54", "s55"]
    sT32, sT16 = "s56", "s57"
    sMROW = "s58"
    t0, t1, t2, t3, t4, t5 = "s60", "s61", "s62", "s63", "s64", "s65"
    sSPIN = "s70"
    sO6, sR6 = "s18", "s19"
    sKVL, sKVO = "s59", "s8"
    sFA, sW2, sMODK = "s3", "s32", "s33"
    vL, vN, vG = "v1", "v2", "v3"
    vM = ["v4", "v5", "v6", "v7"]
    vFF, vTL, vTE = "v8", "v9", "v10"
    vOB = "v11"
    vRW = "v12"
    vRB = "v13"
    vL4 = "v14"
    vXB = ["v15", "v16"]
    vXA = ["v17", "v18", "v19", "v20"]
    vBAD = "v21"
    vX = "v22"
    vLN = "v23"
    vT32 = "v0"
    A0, A1 = 24, 28
    D0, D1 = 32, 36
    T = list(range(40, 76))
    vXR, vONE, vFA, vMP = "v76", "v77", "v78", "v79"
    F0 = 80
    vQE4 = "v96"
    vA1, vA2, vA3, vA4 = "v97", "v98", "v99", "v100"
    vKV = [101, 102, 103, 104, 105, 106]
    vSTA = "v107"
    W0, W1, W2, W3 = 108, 140, 172, 204

    def v(i):
        return f"v{i}"

    def vr(i, n):
        return f"v[{i}:{i + n - 1}]"

    def srd(dst, ptr, nbytes):
        b = int(dst[2:dst.index(":")])
        a(f"s_mov_b32 s{b}, s{ptr}")
        a(f"s_mov_b32 s{b + 1}, s{ptr + 1}")
        a(f"s_mov_b32 s{b + 2}, {nbytes}")
        a(f"s_mov_b32 s{b + 3}, 0x00020000")

    def stamp(i):
        if cfg.stamps:
            a(f"s_memrealtime s[{72 + 2 * i}:{73 + 2 * i}]")

    def rnd(dst, src):
        a(f"v_cvt_pk_bf16_f32 {dst}, {src}, {src}")
        a(f"v_and_b32 {dst}, 0xffff0000, {dst}")

    DPP = " row_mask:0xf bank_mask:0xf"

    def allsum(x, tmp, op="add"):
        o = f"v_{op}_f32"
        a(f"{o}_dpp {x}, {x}, {x} quad_perm:[1,0,3,2]{DPP}")
        a(f"{o}_dpp {x}, {x}, {x} quad_perm:[2,3,0,1]{DPP}")
        a(f"{o}_dpp {x}, {x}, {x} row_half_mirror{DPP}")
        a(f"{o}_dpp {x}, {x}, {x} row_mirror{DPP}")
        rowsum(x, tmp, op)

    def rowsum(x, tmp, op="add"):
        o = f"v_{op}_f32"
        a(f"v_mov_b32 {tmp}, {x}")
        a(f"v_permlane16_swap_b32 {x}, {tmp}")
        a(f"{o} {x}, {x}, {tmp}")
        a(f"v_mov_b32 {tmp}, {x}")
        a(f"v_permlane32_swap_b32 {x}, {tmp}")
        a(f"{o} {x}, {x}, {tmp}")

    def swapred(x):
        a(f"v_permlane32_swap_b32 {v(x)}, {v(x + 2)}")
        a(f"v_permlane32_swap_b32 {v(x + 1)}, {v(x + 3)}")
        a(f"v_add_f32 {v(x)}, {v(x)}, {v(x + 2)}")
        a(f"v_add_f32 {v(x + 1)}, {v(x + 1)}, {v(x + 3)}")
        a(f"v_permlane16_swap_b32 {v(x)}, {v(x + 1)}")
        a(f"v_add_f32 {v(x)}, {v(x)}, {v(x + 1)}")

    def swapred2(x, y):
        for z in (x, y):
            a(f"v_permlane32_swap_b32 {v(z)}, {v(z + 2)}")
            a(f"v_permlane32_swap_b32 {v(z + 1)}, {v(z + 3)}")
        for z in (x, y):
            a(f"v_add_f32 {v(z)}, {v(z)}, {v(z + 2)}")
            a(f"v_add_f32 {v(z + 1)}, {v(z + 1)}, {v(z + 3)}")
        for z in (x, y):
            a(f"v_permlane16_swap_b32 {v(z)}, {v(z + 1)}")
        for z in (x, y):
            a(f"v_add_f32 {v(z)}, {v(z)}, {v(z + 1)}")

    def silu(dst, src, tmp):
        a(f"v_mul_f32 {tmp}, 0xbfb8aa3b, {src}")
        a(f"v_exp_f32 {tmp}, {tmp}")
        a(f"v_add_f32 {tmp}, 1.0, {tmp}")
        a(f"v_rcp_f32 {tmp}, {tmp}")
        a(f"v_mul_f32 {dst}, {src}, {tmp}")

    def clean(pairs):
        for r, t in pairs:
            a(f"v_xor_b32 {v(r)}, {t}, {v(r)}")
        regs = [r for r, _ in pairs]
        if len(regs) == 1:
            a(f"v_mov_b32 {vBAD}, {v(regs[0])}")
            return
        if len(regs) % 2 == 0:
            a(f"v_or_b32 {vBAD}, {v(regs[0])}, {v(regs[1])}")
            regs = regs[2:]
        else:
            a(f"v_or3_b32 {vBAD}, {v(regs[0])}, {v(regs[1])}, {v(regs[2])}")
            regs = regs[3:]
        for i in range(0, len(regs), 2):
            a(f"v_or3_b32 {vBAD}, {vBAD}, {v(regs[i])}, {v(regs[i + 1])}")

    def g4(regs):
        return [(r + d, sT[d]) for r in regs for d in range(4)]

    def poll(name, loads, checks, after=None, nafter=0):
        lw = a.newlabel(name + "_w")
        ld = a.newlabel(name + "_d")
        loads()
        if after:
            after()
        a(f"s_waitcnt vmcnt({nafter})")
        VM.q = []
        a.label(lw)
        checks()
        a(f"v_cmp_ne_u32 vcc, 0, {vBAD}")
        a(f"s_cbranch_vccz {ld}")
        a(f"s_sleep {cfg.backoff}")
        loads()
        if cfg.stamps:
            a("s_add_u32 s71, s71, 1")
        a(f"s_sub_u32 {sSPIN}, {sSPIN}, 1")
        a("s_waitcnt vmcnt(0)")
        a(f"s_cbranch_scc0 {lw}")
        a(f"s_mov_b32 {sSPIN}, 0")
        a.label(ld)

    def gate(h):
        lp = a.newlabel("gate")
        ld = a.newlabel("gated")
        a(f"s_cmp_eq_u32 {sW}, 0")
        a(f"s_cbranch_scc0 {ld}")
        a("s_lshl_b32 s68, s2, 7")
        a(f"s_add_u32 s68, s68, {FLG + h * 32768}")
        a.label(lp)
        a(f"s_buffer_load_dword s69, {WS}, s68 glc")
        a("s_waitcnt lgkmcnt(0)")
        a(f"s_cmp_eq_u32 s69, {sT32}")
        a(f"s_cbranch_scc1 {ld}")
        a(f"s_sub_u32 {sSPIN}, {sSPIN}, 1")
        a(f"s_cbranch_scc0 {lp}")
        a(f"s_mov_b32 {sSPIN}, 0")
        a.label(ld)
        barrier()

    def signal_partner(h):
        a("s_xor_b32 s68, s2, 8")
        a("s_lshl_b32 s68, s68, 7")
        a(f"s_add_u32 s68, s68, {FLG + h * 32768}")
        a("s_mov_b64 exec, 1")
        a(f"buffer_store_dword {vT32}, {vL4}, {WS}, s68 offen sc1")
        a("s_mov_b64 exec, -1")

    def gemv_bcast(D, wbase, nt_):
        def prep(t):
            A = A0 if t % 2 == 0 else A1
            for d in range(4):
                a(f"v_and_b32_dpp {v(A + d)}, {vX}, {vM[d]} row_newbcast:{t}{DPP}")
        prep(0)
        for t in range(nt_):
            if t + 1 < nt_:
                prep(t + 1)
            A = A0 if t % 2 == 0 else A1
            c = "0" if t == 0 else vr(D, 4)
            a(f"v_mfma_f32_16x16x32_bf16 {vr(D, 4)}, {vr(A, 4)}, {vr(wbase + 4 * t, 4)}, {c}")

    def gemv_regs(D, wbase, xs):
        def prep(t):
            A = A0 if t % 2 == 0 else A1
            for d in range(4):
                a(f"v_and_b32 {v(A + d)}, {xs[t]}, {vM[d]}")
        prep(0)
        for t in range(len(xs)):
            if t + 1 < len(xs):
                prep(t + 1)
            A = A0 if t % 2 == 0 else A1
            c = "0" if t == 0 else vr(D, 4)
            a(f"v_mfma_f32_16x16x32_bf16 {vr(D, 4)}, {vr(A, 4)}, {vr(wbase + 4 * t, 4)}, {c}")

    def red_write_A(D, red):
        a("s_mov_b32 exec_hi, 0")
        a(f"ds_write_b128 {vRW}, {vr(D, 4)} offset:{red - L_RED0}")
        a("s_mov_b32 exec_hi, -1")

    def red_write_B(D, red):
        a("s_mov_b32 exec_lo, 0x00ff00ff")
        a("s_mov_b32 exec_hi, 0xff00ff00")
        a(f"ds_write_b128 {vRB}, {vr(D, 4)} offset:{red - L_RED0}")
        a("s_mov_b64 exec, -1")

    def finalize(vaddr, offs, soff, sig=None):
        n = len(offs)
        for i in range(0, n, 2):
            a(f"ds_read2st64_b32 {vr(F0 + i, 2)}, {vaddr} offset0:{offs[i]} offset1:{offs[i + 1]}")
        a("s_waitcnt lgkmcnt(0)")
        step = 1
        while step < n:
            for i in range(0, n, 2 * step):
                a(f"v_add_f32 {v(F0 + i)}, {v(F0 + i)}, {v(F0 + i + step)}")
            step *= 2
        a(f"v_bfi_b32 {v(F0)}, {vFF}, {vTL}, {v(F0)}")
        a(f"buffer_store_dword {v(F0)}, {vL4}, {WS}, {soff} offen sc1")

    def barrier():
        a("s_waitcnt lgkmcnt(0)")
        a("s_barrier")

    def finalize_A(red, sbase, w0=0, sig=None):
        sk = a.newlabel("fa")
        a(f"s_add_u32 {t5}, {sFA}, {sbase}")
        a(f"s_cmp_eq_u32 {sW2}, {w0 // 2}")
        a(f"s_cbranch_scc0 {sk}")
        o = (red - L_RED0) // 256
        finalize(vFA, [o + 2 * i for i in range(8)], t5)
        if sig is not None:
            a(f"s_cmp_eq_u32 {sW}, {w0}")
            a(f"s_cbranch_scc0 {sk}")
            signal_partner(sig)
        a.label(sk)

    def finalize_B(wave, red, colbytes):
        assert wave % 2 == 0
        sk = a.newlabel("fb")
        a(f"s_add_u32 {t5}, {sMODK}, {colbytes}")
        a(f"s_cmp_eq_u32 {sW}, {wave}")
        a(f"s_cbranch_scc0 {sk}")
        o = (red - L_RED0) // 256
        finalize(vFA, [o + i for i in range(16)], t5)
        a.label(sk)

    def modulate():
        rnd(v(T[0]), v(T[0]))
        a(f"v_add_f32_dpp {v(T[1])}, {v(T[0])}, {vONE} row_ror:8{DPP}")
        rnd(v(T[1]), v(T[1]))
        a(f"v_mul_f32 {v(T[1])}, {vLN}, {v(T[1])}")
        rnd(v(T[1]), v(T[1]))
        a(f"v_add_f32 {v(T[1])}, {v(T[1])}, {v(T[0])}")
        a(f"v_cvt_pk_bf16_f32 {vX}, {v(T[1])}, {v(T[1])}")

    def ln_stats(mean, var):
        rnd(var, var)
        rnd(mean, mean)
        a(f"v_add_f32 {var}, {EPS}, {var}")
        rnd(var, var)
        a(f"v_sqrt_f32 {var}, {var}")
        rnd(var, var)
        a(f"v_rcp_f32 {var}, {var}")

    def ln_apply(xval, mean, rstd, tmp):
        a(f"v_sub_f32 {tmp}, {xval}, {mean}")
        rnd(tmp, tmp)
        a(f"v_mul_f32 {tmp}, {tmp}, {rstd}")
        rnd(vLN, tmp)

    def ln_finish(xval, mean, var, tmp):
        ln_stats(mean, var)
        ln_apply(xval, mean, var, tmp)

    class VM:
        q = []

    def vm_add(tag):
        VM.q.append(tag)

    def vm_wait(tag=None):
        if tag is None:
            n = 0
        else:
            idx = max(i for i, t in enumerate(VM.q) if t == tag)
            n = len(VM.q) - 1 - idx
        a(f"s_waitcnt vmcnt({n})")
        VM.q = VM.q[len(VM.q) - n:] if n else []

    class Tile:
        def __init__(self, name, srdname, wreg, n, va, tstep):
            self.name, self.srd, self.wreg, self.n, self.va, self.tstep = name, srdname, wreg, n, va, tstep
            self.next = 0

        def addr(self, sbase, gstep):
            a(f"v_mul_u32_u24 {self.va}, {gstep}, {vG}")
            a(f"v_lshl_add_u32 {self.va}, {vN}, 4, {self.va}")
            a(f"v_add_u32 {self.va}, {sbase}, {self.va}")

        def issue(self, upto=None):
            upto = self.n if upto is None else min(upto, self.n)
            while self.next < upto:
                t = self.next
                so = "0"
                if t:
                    so = "s69" if t % 2 else "s68"
                    a(f"s_mov_b32 {so}, {t * self.tstep}")
                a(f"buffer_load_dwordx4 {vr(self.wreg + 4 * t, 4)}, {self.va}, {self.srd}, {so} offen{NT}")
                vm_add(self.name)
                self.next += 1

    def tileB(name, wreg, va, colbase):
        tl = Tile(name, SM, wreg, 2, va, 12288)
        a(f"s_lshl_b32 {t0}, {sCS}, 7")
        a(f"s_add_u32 {t0}, {t0}, {sMROW}")
        a(f"s_add_u32 {t0}, {t0}, {colbase}")
        a(f"v_add_u32 {va}, {t0}, {vOB}")
        return tl

    def tile6(srdname, wreg, va):
        b = int(srdname[2:srdname.index(":")])
        a(f"s_and_b32 {t0}, {t4}, 3")
        a(f"s_lshr_b32 {t1}, {t4}, 2")
        a(f"s_lshl_b32 {sR6}, {t0}, 8")
        a(f"s_lshl_b32 {t2}, {sW}, 5")
        a(f"s_add_u32 {sR6}, {sR6}, {t2}")
        a(f"s_mul_i32 {sO6}, {t0}, 28672")
        a(f"s_lshl_b32 {t2}, {t1}, 9")
        a(f"s_add_u32 {sO6}, {sO6}, {t2}")
        a(f"s_add_u32 {sO6}, {sO6}, {H5}")
        a(f"s_cmp_ge_u32 {t1}, 28")
        a(f"s_cselect_b32 s{b}, s{P_WU}, s{P_WG}")
        a(f"s_cselect_b32 s{b + 1}, s{P_WU + 1}, s{P_WG + 1}")
        a(f"s_cselect_b32 {t2}, 28, 0")
        a(f"s_mov_b32 s{b + 2}, 7340032")
        a(f"s_mov_b32 s{b + 3}, 0x00020000")
        a(f"s_sub_u32 {t1}, {t1}, {t2}")
        a(f"s_lshl_b32 {t1}, {t1}, 8")
        a(f"s_mul_i32 {t0}, {sR6}, 7168")
        a(f"s_add_u32 {t0}, {t0}, {t1}")
        tl = Tile("gu", srdname, wreg, 8, va, 4 * 7168)
        tl.addr(t0, 7168)
        return tl

    def pair_sum():
        for d in range(4):
            a(f"v_add_f32 {v(T[d])}, {v(T[d])}, {v(T[4 + d])}")
        swapred(T[0])

    def stage6(wreg, red, ok=None, sig=None):
        vs = v(T[27])
        a(f"v_and_b32 {vs}, 31, {vL}")
        a(f"v_lshlrev_b32 {vs}, 8, {vs}")
        a(f"s_lshl_b32 {t0}, {sR6}, 2")
        a(f"s_add_u32 {t0}, {t0}, {MODP + 3072 * 4}")
        a(f"s_add_u32 {t1}, {t0}, {4 * 24576}")
        a(f"s_lshl_b32 {t2}, {sR6}, 3")
        a(f"s_add_u32 {t2}, {t2}, {XR}")
        a(f"s_mov_b32 {t3}, {XR + 128}")
        vm_wait()
        stamp(7)
        gate(F_X1)
        stamp(8)

        lo = a.newlabel("s6o")
        lj = a.newlabel("s6j")

        def loads():
            a(f"buffer_load_dword {v(T[8])}, {vQE4}, {WS}, {t2} offen sc1")
            a(f"buffer_load_dwordx4 {vr(T[0], 4)}, {vMP}, {WS}, {t0} offen sc1")
            a(f"buffer_load_dwordx4 {vr(T[4], 4)}, {vMP}, {WS}, {t1} offen sc1")

        def checks():
            clean(g4([T[0], T[4]]) + [(T[8], vTE)])
            a(f"v_and_b32 {vBAD}, 0xff, {vBAD}")

        def loads0():
            a(f"buffer_load_dwordx4 {vr(T[12], 4)}, {vs}, {WS}, {t3} offen sc1")
            loads()

        def checks0():
            checks()
            a(f"v_bitop3_b32 {vBAD}, {vBAD}, {v(T[13])}, {sT32} bitop3:0xf6")
            a(f"v_bitop3_b32 {vBAD}, {vBAD}, {v(T[15])}, {sT32} bitop3:0xf6")
        a(f"s_cmp_eq_u32 {sW}, 0")
        a(f"s_cbranch_scc0 {lo}")
        poll("h5a", loads0, checks0)
        stamp(9)
        a(f"v_mov_b32 {v(T[16])}, {v(T[12])}")
        for d in range(4):
            a(f"v_add_f32 {v(T[d])}, {v(T[d])}, {v(T[4 + d])}")
        allsum(v(T[16]), v(T[10]))
        a(f"v_mul_f32 {v(T[16])}, 0x3c800000, {v(T[16])}")
        a(f"v_sub_f32 {v(T[10])}, {v(T[12])}, {v(T[16])}")
        a(f"v_mul_f32 {v(T[10])}, {v(T[10])}, {v(T[10])}")
        a(f"v_fmac_f32 {v(T[14])}, 0x42000000, {v(T[10])}")
        swapred(T[0])
        allsum(v(T[14]), v(T[10]))
        a(f"v_mul_f32 {v(T[17])}, 0x3a000000, {v(T[14])}")
        ln_stats(v(T[16]), v(T[17]))
        a("s_mov_b64 exec, 1")
        a(f"ds_write_b64 {vSTA}, {vr(T[16], 2)}")
        a("s_mov_b64 exec, -1")
        a(f"s_branch {lj}")
        a.label(lo)
        poll("h5b", loads, checks)
        pair_sum()
        a.label(lj)
        barrier()
        a(f"ds_read_b64 {vr(T[16], 2)}, {vSTA}")
        if ok:
            ok()
        a("s_waitcnt lgkmcnt(0)")
        ln_apply(v(T[8]), v(T[16]), v(T[17]), v(T[10]))
        modulate()
        gemv_bcast(D0, wreg, 8)
        red_write_A(D0, red)
        barrier()
        finalize_A(red, sO6, sig=sig)
        stamp(10)

    def col32_reduce(x):
        swapred(x)
        a(f"v_add_f32_dpp {v(x)}, {v(x)}, {v(x)} row_ror:8{DPP}")

    def write_stamps():
        if not cfg.stamps:
            return
        sk = a.newlabel("st")
        a(f"s_cmp_eq_u32 {sW}, 0")
        a(f"s_cbranch_scc0 {sk}")
        a("s_waitcnt lgkmcnt(0)")
        a("s_mov_b64 exec, 1")
        a(f"s_lshl_b32 {t0}, s2, 6")
        a(f"s_add_u32 {t0}, {t0}, {STAMP}")
        a(f"v_mov_b32 {v(T[1])}, 0")
        for i in range(15):
            a(f"v_mov_b32 {v(T[2 + i])}, s{72 + 2 * i}")
            a(f"buffer_store_dword {v(T[2 + i])}, {v(T[1])}, {WS}, {t0} offen offset:{4 * i}")
        a(f"v_mov_b32 {v(T[20])}, s71")
        a(f"buffer_store_dword {v(T[20])}, {v(T[1])}, {WS}, {t0} offen offset:60")
        a("s_mov_b64 exec, -1")
        a.label(sk)

    def mask_n8():
        a("s_mov_b32 exec_lo, 0x00ff00ff")
        a("s_mov_b32 exec_hi, 0x00ff00ff")

    def common():
        a(f"s_load_dword {sT32}, s[{P_WS}:{P_WS + 1}], {EPOCH}")
        srd(WS, P_WS, WS_USED)
        a(f"v_and_b32 {v(T[0])}, 1, {vL}")
        a(f"v_mov_b32 {v(T[1])}, 0xffff")
        a(f"v_lshlrev_b32 {v(T[0])}, 4, {v(T[0])}")
        a(f"v_lshlrev_b32 {v(T[1])}, {v(T[0])}, {v(T[1])}")
        a(f"v_bfe_u32 {v(T[0])}, {vL}, 1, 2")
        for d in range(4):
            a(f"v_cmp_eq_u32 vcc, {d}, {v(T[0])}")
            a(f"v_cndmask_b32 {vM[d]}, 0, {v(T[1])}, vcc")
        a(f"v_mov_b32 {vFF}, 0xff")
        a(f"v_mov_b32 {vONE}, 1.0")
        a(f"v_mov_b32 {vSTA}, {L_WM}")
        a(f"s_lshl_b32 {t0}, {sW}, 9")
        a(f"s_add_u32 {t0}, {t0}, {L_RED0}")
        a(f"v_lshlrev_b32 {vRW}, 5, {vN}")
        a(f"v_lshl_add_u32 {vRW}, {vG}, 4, {vRW}")
        a(f"v_add_u32 {vRW}, {t0}, {vRW}")
        a(f"v_and_b32 {v(T[0])}, 7, {vL}")
        a(f"v_lshlrev_b32 {vRB}, 5, {v(T[0])}")
        a(f"v_and_b32 {v(T[1])}, 1, {vG}")
        a(f"v_lshl_add_u32 {vRB}, {v(T[1])}, 4, {vRB}")
        a(f"v_lshrrev_b32 {v(T[1])}, 1, {vG}")
        a(f"v_lshl_add_u32 {vRB}, {v(T[1])}, 8, {vRB}")
        a(f"v_add_u32 {vRB}, {t0}, {vRB}")
        a(f"s_and_b32 {sFA}, {sW}, 1")
        a(f"s_lshl_b32 {sFA}, {sFA}, 8")
        a(f"s_lshr_b32 {sW2}, {sW}, 1")
        a(f"s_add_u32 {t0}, {sFA}, {L_RED0}")
        a(f"v_add_u32 {vFA}, {t0}, {vL4}")
        a(f"s_mul_i32 {sMODK}, {sKS}, 24576")
        a(f"s_add_u32 {sMODK}, {sMODK}, {MODP}")
        a(f"v_mul_u32_u24 {vMP}, 24576, {vG}")
        a(f"v_bfe_u32 {v(T[1])}, {vL}, 3, 1")
        a(f"v_lshl_add_u32 {vMP}, {v(T[1])}, 12, {vMP}")
        a(f"v_lshl_add_u32 {vMP}, {v(T[0])}, 4, {vMP}")
        a("s_waitcnt lgkmcnt(0)")
        a(f"s_xor_b32 {sT32}, {sT32}, {TAGK}")
        for d in range(4):
            a(f"s_bfe_u32 {sT[d]}, {sT32}, {(8 << 16) | (8 * d)}")
        a(f"s_lshr_b32 {sT16}, {sT32}, 16")
        a(f"v_mov_b32 {vT32}, {sT32}")
        a(f"v_and_b32 {v(T[0])}, 3, {vL}")
        a(f"v_lshlrev_b32 {v(T[0])}, 3, {v(T[0])}")
        a(f"v_bfe_u32 {vTL}, {vT32}, {v(T[0])}, 8")
        a(f"v_lshlrev_b32 {v(T[0])}, 3, {vG}")
        a(f"v_bfe_u32 {vTE}, {vT32}, {v(T[0])}, 8")

    a.raw(f"{NAME}_kernel:")
    a("s_cmp_ge_u32 s2, 256")
    a("s_cbranch_scc1 L_end")
    a("s_load_dwordx8 s[24:31], s[0:1], 64")
    a("s_load_dwordx16 s[8:23], s[0:1], 0")
    a("s_load_dwordx4 s[32:35], s[0:1], 96")
    if cfg.stamps:
        for i in range(15):
            a(f"s_mov_b64 s[{72 + 2 * i}:{73 + 2 * i}], 0")
        a("s_mov_b32 s71, 0")
    stamp(0)
    if cfg.amp:
        a("s_memrealtime s[100:101]")
    a(f"v_and_b32 {vL}, 63, v0")
    a(f"v_lshrrev_b32 {v(T[0])}, 6, v0")
    a(f"v_and_b32 {vN}, 15, v0")
    a(f"v_readfirstlane_b32 {sW}, {v(T[0])}")
    a(f"v_lshrrev_b32 {vG}, 4, {vL}")
    a(f"s_and_b32 {sKS}, s2, 7")
    a(f"s_lshr_b32 {sCS}, s2, 4")
    a(f"s_lshl_b32 {sGI}, {sCS}, 3")
    a(f"s_or_b32 {sGI}, {sGI}, {sKS}")
    a(f"s_mov_b32 {sSPIN}, 200000")
    a(f"v_lshrrev_b32 {v(T[0])}, 3, {vL}")
    a(f"v_mul_u32_u24 {vOB}, 24576, {v(T[0])}")
    a(f"v_and_b32 {v(T[1])}, 7, {vL}")
    a(f"v_lshl_add_u32 {vOB}, {v(T[1])}, 4, {vOB}")
    a(f"v_lshlrev_b32 {v(T[2])}, 2, {v(T[0])}")
    a(f"v_lshlrev_b32 {v(T[3])}, 3, {vG}")
    a(f"v_lshlrev_b32 {vL4}, 2, {vL}")
    a(f"v_lshl_add_u32 {vQE4}, {v(T[1])}, 2, {vG}")
    a(f"v_lshlrev_b32 {v(T[9])}, 1, {vQE4}")
    a(f"v_lshlrev_b32 {vQE4}, 2, {vQE4}")
    a(f"v_lshlrev_b32 {v(T[8])}, 5, {vL}")
    a(f"s_lshl_b32 {t2}, {sKS}, 7")
    a(f"s_lshl_b32 {t3}, {sW}, 4")
    a(f"s_add_u32 {t2}, {t2}, {t3}")
    a(f"s_mul_i32 {sMROW}, {t2}, 12288")
    a(f"s_lshl_b32 {t2}, {t2}, 1")
    a("s_mov_b32 s6, 12582912")
    a("s_mov_b32 s7, 0x00020000")
    a("s_mov_b32 s46, 2048")
    a("s_mov_b32 s47, 0x00020000")
    a("s_bitcmp1_b32 s2, 3")
    a("s_cbranch_scc1 L_Q_pre")
    a(f"s_lshl_b32 {t0}, {sCS}, 8")
    a(f"s_add_u32 {t0}, {t0}, {sMROW}")
    tS1 = Tile("s1", SM, W0, 4, vA1, 12288)
    tS1.addr(t0, 4 * 12288)
    a("s_waitcnt lgkmcnt(0)")
    a(f"s_mov_b32 s4, s{P_WM}")
    a(f"s_mov_b32 s5, s{P_WM + 1}")
    a(f"s_mov_b32 s44, s{P_C}")
    a(f"s_mov_b32 s45, s{P_C + 1}")
    VM.q = []
    a(f"buffer_load_dwordx2 {vr(T[6], 2)}, {v(T[3])}, {SB}, {t2} offen")
    vm_add("c")
    tS1.issue()
    a(f"s_and_b32 s66, {sGI}, 3")
    a(f"s_lshr_b32 s67, {sGI}, 2")
    a(f"s_lshl_b32 {t2}, s66, 24")
    a(f"s_lshl_b32 {t1}, s67, 15")
    a(f"s_add_u32 {t2}, {t2}, {t1}")
    a(f"s_lshl_b32 {sKVL}, {sW}, 12")
    a(f"s_add_u32 {t2}, {t2}, {sKVL}")
    a(f"s_add_u32 {sKVO}, {t2}, {61440 * 256}")
    srd(SA, P_K, 67108864)
    srd(SB, P_V, 67108864)
    a(f"v_xor_b32 {v(vKV[0])}, {vN}, {vG}")
    a(f"v_lshlrev_b32 {v(vKV[0])}, 4, {v(vKV[0])}")
    a(f"v_lshl_add_u32 {v(vKV[0])}, {vG}, 8, {v(vKV[0])}")
    for u in range(1, 4):
        a(f"v_xor_b32 {v(vKV[u])}, {64 * u}, {v(vKV[0])}")
    a(f"v_lshlrev_b32 {v(vKV[4])}, 1, {vG}")
    a(f"v_xor_b32 {v(vKV[4])}, {vN}, {v(vKV[4])}")
    a(f"v_lshlrev_b32 {v(vKV[4])}, 4, {v(vKV[4])}")
    a(f"v_lshl_add_u32 {v(vKV[4])}, {vG}, 8, {v(vKV[4])}")
    a(f"v_xor_b32 {v(vKV[5])}, 128, {v(vKV[4])}")
    kvn = [0]

    def kv_issue(upto):
        while kvn[0] < upto:
            u = kvn[0]
            if u == 0:
                a(f"s_mov_b32 m0, {sKVL}")
            if u == 4:
                a(f"s_add_u32 m0, {sKVL}, {L_V}")
            if u < 4:
                a(f"buffer_load_dwordx4 {v(vKV[u])}, {SA}, {sKVO} offen offset:{1024 * u}{NT} lds")
            else:
                a(f"buffer_load_dwordx4 {v(vKV[4 + ((u - 4) >> 1)])}, {SB}, {sKVO} offen offset:{1024 * (u - 4)}{NT} lds")
            vm_add("kv")
            kvn[0] += 1
    if cfg.kv0:
        a("s_barrier")
    kv_issue(cfg.kv0)
    VMP = list(VM.q)
    common()

    def silu_c(typeA):
        if typeA:
            srcs = [(T[6], vXA[0], vXA[1]), (T[7], vXA[2], vXA[3])]
        else:
            srcs = [(T[4], vXB[0], vXB[1])]
        for s_, lo, hi in srcs:
            a(f"v_lshlrev_b32 {v(T[0])}, 16, {v(s_)}")
            a(f"v_and_b32 {v(T[1])}, 0xffff0000, {v(s_)}")
            silu(v(T[0]), v(T[0]), v(T[2]))
            silu(v(T[1]), v(T[1]), v(T[3]))
            a(f"v_cvt_pk_bf16_f32 {lo}, {v(T[0])}, {v(T[0])}")
            a(f"v_cvt_pk_bf16_f32 {hi}, {v(T[1])}, {v(T[1])}")

    a.c("======== P: S1")
    VM.q = VMP
    vm_wait("c")
    silu_c(True)
    a(f"s_lshl_b32 {t4}, {sCS}, 9")
    a(f"s_add_u32 {t4}, {t4}, {sMODK}")
    a(f"s_lshl_b32 {t0}, {sCS}, 8")
    a(f"s_add_u32 {t0}, {t0}, 6144")
    a(f"s_add_u32 {t0}, {t0}, {sMROW}")
    tSC = Tile("sc", SM, W0 + 16, 4, vA2, 12288)
    tSC.addr(t0, 4 * 12288)
    vm_wait("s1")
    stamp(1)
    kv_issue(cfg.kv1)
    gemv_regs(D0, W0, vXA)
    red_write_A(D0, L_RED0)
    barrier()
    finalize_A(L_RED0, t4, sig=F_H1)
    a("s_barrier")
    stamp(2)
    kv_issue(8)
    a(f"s_mov_b32 {t4}, {sGI}")
    tGU = tile6(SA, W1, vA3)
    srd(SB, P_WD, 7340032)
    a(f"s_and_b32 {t0}, {sGI}, 15")
    a(f"s_mul_i32 s59, {t0}, 224")
    a(f"s_mul_i32 {t1}, {sW}, 28")
    a(f"s_add_u32 s59, s59, {t1}")
    a(f"s_lshl_b32 {t4}, s59, 11")
    a(f"s_lshr_b32 {t1}, {sGI}, 4")
    a(f"s_lshl_b32 {t1}, {t1}, 8")
    a(f"s_add_u32 {t4}, {t4}, {t1}")
    tWD = Tile("wd", SB, W2, 7, vA4, 4 * 2048)
    tWD.addr(t4, 2048)
    KF, VF, QF = W3, W3 + 16, W3 + 32
    vKA, vVA, vQA, vH2, vQW, vPW = v(T[30]), v(T[31]), v(T[32]), v(T[33]), v(T[34]), v(T[35])
    vWMr, vWMw, vOA, vMLA = v(T[26]), v(T[27]), v(T[28]), v(T[29])
    a(f"v_xor_b32 {vKA}, {vN}, {vG}")
    a(f"v_lshlrev_b32 {vKA}, 4, {vKA}")
    a(f"v_lshl_add_u32 {vKA}, {vN}, 8, {vKA}")
    a(f"s_lshl_b32 {t1}, {sW}, 12")
    a(f"v_add_u32 {vKA}, {t1}, {vKA}")
    a(f"v_bfe_u32 {v(T[0])}, {vL}, 2, 2")
    a(f"v_and_b32 {v(T[1])}, 1, {vG}")
    a(f"v_lshl_or_b32 {v(T[1])}, {v(T[1])}, 2, {v(T[0])}")
    a(f"v_lshlrev_b32 {v(T[1])}, 1, {v(T[1])}")
    a(f"v_bfe_u32 {v(T[2])}, {vL}, 1, 1")
    a(f"s_lshl_b32 {t1}, {sW}, 1")
    a(f"v_or_b32 {v(T[2])}, {t1}, {v(T[2])}")
    a(f"v_xor_b32 {v(T[2])}, {v(T[2])}, {v(T[1])}")
    a(f"v_lshl_add_u32 {v(T[0])}, {vG}, 3, {v(T[0])}")
    a(f"v_lshlrev_b32 {vVA}, 8, {v(T[0])}")
    a(f"v_lshl_add_u32 {vVA}, {v(T[2])}, 4, {vVA}")
    a(f"v_and_b32 {v(T[0])}, 1, {vL}")
    a(f"v_lshl_add_u32 {vVA}, {v(T[0])}, 3, {vVA}")
    a(f"v_add_u32 {vVA}, {L_V}, {vVA}")
    a(f"v_and_b32 {v(T[0])}, 7, {vL}")
    a(f"v_mul_u32_u24 {vQA}, 272, {v(T[0])}")
    a(f"v_lshl_add_u32 {vPW}, {vG}, 3, {vQA}")
    a(f"v_lshl_add_u32 {vQA}, {vG}, 4, {vQA}")
    a(f"v_add_u32 {vQA}, {L_QS}, {vQA}")
    a(f"s_lshl_b32 {t1}, {sW}, 5")
    a(f"s_add_u32 {t1}, {t1}, {L_PS}")
    a(f"v_add_u32 {vPW}, {t1}, {vPW}")
    a(f"v_lshlrev_b32 {vWMr}, 5, {v(T[0])}")
    a(f"v_add_u32 {vWMr}, {L_WM}, {vWMr}")
    a(f"s_lshl_b32 {t1}, {sW}, 2")
    a(f"v_add_u32 {vWMw}, {t1}, {vWMr}")
    a(f"v_lshlrev_b32 {vH2}, 14, {vG}")
    a(f"v_lshl_add_u32 {vH2}, {vN}, 4, {vH2}")
    a(f"v_lshl_add_u32 {vQW}, {vN}, 2, {vG}")
    a(f"v_lshlrev_b32 {vQW}, 1, {vQW}")
    a(f"s_mul_i32 {t1}, {sW}, 272")
    a(f"s_add_u32 {t1}, {t1}, {L_QS}")
    a(f"v_add_u32 {vQW}, {t1}, {vQW}")
    a(f"v_lshlrev_b32 {vOA}, 7, {vG}")
    a(f"v_lshl_add_u32 {vOA}, {vN}, 4, {vOA}")
    a(f"v_lshlrev_b32 {vMLA}, 3, {vL}")
    a(f"s_lshl_b32 {t2}, s66, 3")
    a(f"s_add_u32 {t2}, {t2}, {sW}")
    a(f"s_lshl_b32 {t3}, {t2}, 5")
    a(f"s_add_u32 {t3}, {t3}, s67")
    a(f"s_lshl_b32 {t2}, {t2}, 9")
    a(f"s_add_u32 {t2}, {t2}, {H2}")
    a(f"s_lshl_b32 s66, {t3}, 9")
    a(f"s_add_u32 s66, s66, {H3O}")
    a(f"s_lshl_b32 s67, {t3}, 6")
    a(f"s_add_u32 s67, s67, {H3ML}")
    vm_wait()
    stamp(3)
    a("s_barrier")
    for s_ in range(4):
        if s_:
            a(f"v_xor_b32 {v(T[10])}, {64 * s_}, {vKA}")
        a(f"ds_read_b128 {vr(KF + 4 * s_, 4)}, {v(T[10]) if s_ else vKA}")
    for s_ in range(4):
        for u in range(2):
            a(f"ds_read_b64_tr_b16 {vr(VF + 4 * s_ + 2 * u, 2)}, {vVA} offset:{8192 * s_ + 1024 * u}")
    for d in range(4):
        a(f"v_mov_b32 {v(A0 + d)}, 0x3f803f80")
    a(f"s_mov_b32 {t1}, {LOG2E}")
    gate(F_H2)
    stamp(4)

    def h2_loads():
        a(f"buffer_load_dwordx4 {vr(T[0], 4)}, {vH2}, {WS}, {t2} offen sc1")
        a(f"buffer_load_dwordx4 {vr(T[4], 4)}, {vH2}, {WS}, {t2} offen offset:256 sc1")

    def h2_checks():
        clean(g4([T[0], T[4]]))
        a(f"v_and_b32 {vBAD}, 0xff, {vBAD}")
    poll("h2", h2_loads, h2_checks)
    stamp(5)
    swapred2(T[0], T[4])
    a(f"v_cvt_pk_bf16_f32 {v(T[0])}, {v(T[0])}, {v(T[4])}")
    a(f"ds_write_b16 {vQW}, {v(T[0])}")
    a(f"ds_write_b16_d16_hi {vQW}, {v(T[0])} offset:128")
    barrier()
    for s_ in range(4):
        a(f"ds_read_b128 {vr(QF + 4 * s_, 4)}, {vQA} offset:{64 * s_}")
    tSC.issue(cfg.p3a)
    tGU.issue(cfg.p3a - 4)
    for s_ in range(4):
        a(f"s_waitcnt lgkmcnt({3 - s_})")
        c = "0" if s_ == 0 else vr(D0, 4)
        a(f"v_mfma_f32_16x16x32_bf16 {vr(D0, 4)}, {vr(KF + 4 * s_, 4)}, {vr(QF + 4 * s_, 4)}, {c}")
    a(f"v_cvt_pk_bf16_f32 {v(T[0])}, {v(D0)}, {v(D0 + 1)}")
    a(f"v_cvt_pk_bf16_f32 {v(T[2])}, {v(D0 + 2)}, {v(D0 + 3)}")
    for p in (0, 2):
        a(f"v_and_b32 {v(T[p + 1])}, 0xffff0000, {v(T[p])}")
        a(f"v_lshlrev_b32 {v(T[p])}, 16, {v(T[p])}")
    for r in range(4):
        a(f"v_mul_f32 {v(T[r])}, {SCALE}, {v(T[r])}")
    a(f"v_cvt_pk_bf16_f32 {v(T[0])}, {v(T[0])}, {v(T[1])}")
    a(f"v_cvt_pk_bf16_f32 {v(T[2])}, {v(T[2])}, {v(T[3])}")
    for p in (0, 2):
        a(f"v_and_b32 {v(T[p + 1])}, 0xffff0000, {v(T[p])}")
        a(f"v_lshlrev_b32 {v(T[p])}, 16, {v(T[p])}")
    a(f"v_max3_f32 {v(T[4])}, {v(T[0])}, {v(T[1])}, {v(T[2])}")
    a(f"v_max_f32 {v(T[4])}, {v(T[4])}, {v(T[3])}")
    rowsum(v(T[4]), v(T[5]), "max")
    a("s_mov_b64 exec, 0xff")
    a(f"ds_write_b32 {vWMw}, {v(T[4])}")
    a("s_mov_b64 exec, -1")
    barrier()
    a(f"ds_read_b128 {vr(T[12], 4)}, {vWMr}")
    a(f"ds_read_b128 {vr(T[16], 4)}, {vWMr} offset:16")
    a("s_waitcnt lgkmcnt(0)")
    a(f"v_max3_f32 {v(T[4])}, {v(T[12])}, {v(T[13])}, {v(T[14])}")
    a(f"v_max3_f32 {v(T[5])}, {v(T[15])}, {v(T[16])}, {v(T[17])}")
    a(f"v_max3_f32 {v(T[4])}, {v(T[4])}, {v(T[18])}, {v(T[19])}")
    a(f"v_max_f32 {v(T[4])}, {v(T[4])}, {v(T[5])}")
    for r in range(4):
        a(f"v_sub_f32 {v(T[r])}, {v(T[r])}, {v(T[4])}")
    for r in range(4):
        a(f"v_mul_f32 {v(T[r])}, {t1}, {v(T[r])}")
    for r in range(4):
        a(f"v_exp_f32 {v(T[r])}, {v(T[r])}")
    a(f"v_cvt_pk_bf16_f32 {v(T[6])}, {v(T[0])}, {v(T[1])}")
    a(f"v_cvt_pk_bf16_f32 {v(T[7])}, {v(T[2])}, {v(T[3])}")
    mask_n8()
    a(f"ds_write_b64 {vPW}, {vr(T[6], 2)}")
    a("s_mov_b64 exec, -1")
    a(f"v_or_b32 {v(T[4])}, {sT16}, {v(T[4])}")
    barrier()
    for s_ in range(4):
        a(f"ds_read_b128 {vr(QF + 4 * s_, 4)}, {vQA} offset:{L_PS - L_QS + 64 * s_}")
    for s_ in range(4):
        a(f"s_waitcnt lgkmcnt({3 - s_})")
        c = "0" if s_ == 0 else vr(D0, 4)
        a(f"v_mfma_f32_16x16x32_bf16 {vr(D0, 4)}, {vr(VF + 4 * s_, 4)}, {vr(QF + 4 * s_, 4)}, {c}")
        c = "0" if s_ == 0 else vr(D1, 4)
        a(f"v_mfma_f32_16x16x32_bf16 {vr(D1, 4)}, {vr(A0, 4)}, {vr(QF + 4 * s_, 4)}, {c}")
    for d in range(4):
        a(f"v_bfi_b32 {v(D0 + d)}, {vFF}, {sT[d]}, {v(D0 + d)}")
    a(f"v_bfi_b32 {v(T[5])}, {vFF}, {sT[0]}, {v(D1)}")
    mask_n8()
    a(f"buffer_store_dwordx4 {vr(D0, 4)}, {vOA}, {WS}, s66 offen sc1")
    a("s_mov_b64 exec, 0xff")
    a(f"buffer_store_dwordx2 {vr(T[4], 2)}, {vMLA}, {WS}, s67 offen sc1")
    a("s_mov_b64 exec, -1")
    vm_add("st")
    vm_add("st")
    sk = a.newlabel("s3s")
    a(f"s_cmp_eq_u32 {sW}, 0")
    a(f"s_cbranch_scc0 {sk}")
    signal_partner(F_H3)
    a.label(sk)
    a("s_barrier")
    stamp(6)
    a.c("======== P: sb/cb tile, gate/up tile, w_down tile")
    tSC.issue()
    tGU.issue(3)
    vm_wait("sc")
    gemv_regs(D0, W0 + 16, vXA)
    red_write_A(D0, L_RED1)
    barrier()
    a(f"s_lshl_b32 {t4}, {sCS}, 9")
    a(f"s_add_u32 {t4}, {t4}, {sMODK}")
    a(f"s_add_u32 {t4}, {t4}, {3072 * 4}")
    finalize_A(L_RED1, t4, w0=2)
    tGU.issue()
    tWD.issue(cfg.p7a)
    stage6(W1, L_RED0, ok=lambda: tWD.issue(cfg.p7b))
    a("s_barrier")
    tWD.issue()
    va = v(T[24])
    a(f"v_mul_u32_u24 {va}, 28672, {vG}")
    a(f"v_bfe_u32 {v(T[25])}, {vL}, 3, 1")
    a(f"v_mul_u32_u24 {v(T[25])}, 14336, {v(T[25])}")
    a(f"v_add_u32 {va}, {va}, {v(T[25])}")
    a(f"v_and_b32 {v(T[25])}, 7, {vL}")
    a(f"v_min_u32 {v(T[25])}, 6, {v(T[25])}")
    a(f"v_lshl_add_u32 {va}, {v(T[25])}, 4, {va}")
    a(f"s_lshl_b32 {t2}, s59, 2")
    a(f"s_add_u32 {t2}, {t2}, {H5}")
    a(f"s_and_b32 {t4}, {sGI}, 15")
    a(f"s_lshl_b32 {t4}, {t4}, 12")
    a(f"s_lshr_b32 {t3}, {sGI}, 4")
    a(f"s_lshl_b32 {t3}, {t3}, 9")
    a(f"s_add_u32 {t4}, {t4}, {t3}")
    a(f"s_add_u32 {t4}, {t4}, {H6}")
    vm_wait()
    stamp(11)
    gate(F_H5)

    def h5_loads():
        a(f"buffer_load_dwordx4 {vr(T[0], 4)}, {va}, {WS}, {t2} offen sc1")

    def h5_checks():
        clean(g4([T[0]]))
        a(f"v_and_b32 {vBAD}, 0xff, {vBAD}")
    poll("h5", h5_loads, h5_checks)
    stamp(12)
    swapred(T[0])
    rnd(v(T[0]), v(T[0]))
    silu(v(T[2]), v(T[0]), v(T[3]))
    rnd(v(T[2]), v(T[2]))
    a(f"v_mul_f32_dpp {v(T[2])}, {v(T[0])}, {v(T[2])} row_ror:8{DPP}")
    a(f"v_cvt_pk_bf16_f32 {vX}, {v(T[2])}, {v(T[2])}")
    gemv_bcast(D0, W2, 7)
    red_write_A(D0, L_RED1)
    barrier()
    finalize_A(L_RED1, t4)
    stamp(13)
    a.c("======== P: final reduction on gi < 32, wave 0")
    a(f"s_cmp_lt_u32 {sGI}, 32")
    a("s_cbranch_scc0 L_fin")
    a(f"s_cmp_eq_u32 {sW}, 0")
    a("s_cbranch_scc0 L_fin")
    va = v(T[24])
    a(f"v_lshrrev_b32 {v(T[27])}, 3, {vL}")
    a(f"v_and_b32 {v(T[28])}, 7, {vL}")
    a(f"v_lshlrev_b32 {v(T[28])}, 4, {v(T[28])}")
    a(f"v_lshl_add_u32 {va}, {v(T[27])}, 12, {v(T[28])}")
    a(f"s_lshl_b32 {t3}, {sGI}, 7")
    a(f"s_add_u32 {t0}, {t3}, {H6}")
    a(f"s_add_u32 {t1}, {t0}, 32768")
    a(f"s_add_u32 {t2}, {t3}, {MODP + 5120 * 4}")
    a(f"s_lshl_b32 {t3}, {sGI}, 8")
    a(f"s_add_u32 {t3}, {t3}, {XR}")
    srd(SA, P_OUT, 2048)
    a(f"v_lshrrev_b32 {v(T[26])}, 1, {vQE4}")
    a(f"s_lshl_b32 {t4}, {sGI}, 6")
    a("s_waitcnt vmcnt(0)")

    def h6_loads():
        a(f"buffer_load_dwordx4 {vr(T[0], 4)}, {va}, {WS}, {t0} offen sc1")
        a(f"buffer_load_dwordx4 {vr(T[4], 4)}, {va}, {WS}, {t1} offen sc1")
        a(f"buffer_load_dwordx4 {vr(T[8], 4)}, {vOB}, {WS}, {t2} offen sc1")
        a(f"buffer_load_dword {v(T[12])}, {vQE4}, {WS}, {t3} offen sc1")

    def h6_checks():
        clean(g4([T[0], T[4], T[8]]) + [(T[12], vTE)])
        a(f"v_and_b32 {vBAD}, 0xff, {vBAD}")
    poll("h6", h6_loads, h6_checks)
    for d in range(4):
        a(f"v_add_f32 {v(T[d])}, {v(T[d])}, {v(T[4 + d])}")
    swapred2(T[0], T[8])
    a(f"v_add_f32_dpp {v(T[0])}, {v(T[0])}, {v(T[0])} row_ror:8{DPP}")
    a(f"v_add_f32_dpp {v(T[8])}, {v(T[8])}, {v(T[8])} row_ror:8{DPP}")
    rnd(v(T[0]), v(T[0]))
    rnd(v(T[8]), v(T[8]))
    a(f"v_mul_f32 {v(T[0])}, {v(T[0])}, {v(T[8])}")
    rnd(v(T[0]), v(T[0]))
    a(f"v_add_f32 {v(T[0])}, {v(T[0])}, {v(T[12])}")
    a(f"v_cvt_pk_bf16_f32 {v(T[0])}, {v(T[0])}, {v(T[0])}")
    mask_n8()
    a(f"buffer_store_short {v(T[0])}, {v(T[26])}, {SA}, {t4} offen")
    a("s_mov_b64 exec, -1")
    stamp(14)
    a(f"s_cmp_eq_u32 {sGI}, 0")
    a("s_cbranch_scc0 L_fin")
    a("s_mov_b64 exec, 1")
    a(f"buffer_store_dword {vT32}, {vL4}, {WS}, 0 offen offset:{EPOCH}")
    a("s_mov_b64 exec, -1")
    if cfg.amp:
        a("s_memrealtime s[60:61]")
        a("s_waitcnt lgkmcnt(0)")
        a("s_sub_u32 s62, s60, s100")
        a(f"s_mul_i32 s62, s62, {cfg.amp}")
        a.label("L_amp")
        a("s_memrealtime s[64:65]")
        a("s_waitcnt lgkmcnt(0)")
        a("s_sub_u32 s63, s64, s60")
        a("s_cmp_lt_u32 s63, s62")
        a("s_cbranch_scc1 L_amp")
    a("s_branch L_fin")

    a.label("L_Q_pre")
    a(f"s_and_b32 {t0}, {sGI}, 3")
    a(f"s_lshl_b32 s66, {t0}, 8")
    a(f"s_lshl_b32 {t1}, {sW}, 5")
    a(f"s_add_u32 s66, s66, {t1}")
    a(f"s_lshr_b32 {t1}, {sGI}, 2")
    a(f"s_lshl_b32 {t1}, {t1}, 8")
    a(f"s_lshl_b32 {t0}, s66, 13")
    a(f"s_add_u32 {t0}, {t0}, {t1}")
    tWQ = Tile("wq", SA, W0, 8, vA1, 4 * 8192)
    tWQ.addr(t0, 8192)
    a("s_mov_b32 s42, 8388608")
    a("s_mov_b32 s43, 0x00020000")
    a("s_waitcnt lgkmcnt(0)")
    a(f"s_mov_b32 s40, s{P_WQ}")
    a(f"s_mov_b32 s41, s{P_WQ + 1}")
    a(f"s_mov_b32 s44, s{P_X}")
    a(f"s_mov_b32 s45, s{P_X + 1}")
    VM.q = []
    a(f"buffer_load_dwordx4 {vr(T[12], 4)}, {v(T[8])}, {SB}, 0 offen")
    a(f"buffer_load_dwordx4 {vr(T[16], 4)}, {v(T[8])}, {SB}, 0 offen offset:16")
    a(f"s_lshl_b32 {t1}, s66, 1")
    a(f"buffer_load_ushort {v(T[20])}, {v(T[9])}, {SB}, {t1} offen")
    a(f"s_and_b32 {t1}, {sGI}, 31")
    a(f"s_lshl_b32 {t1}, {t1}, 6")
    a(f"buffer_load_ushort {vXR}, {v(T[9])}, {SB}, {t1} offen")
    a(f"s_mov_b32 s44, s{P_C}")
    a(f"s_mov_b32 s45, s{P_C + 1}")
    a(f"buffer_load_dword {v(T[4])}, {v(T[2])}, {SB}, {t2} offen")
    vm_add("c")
    tWQ.issue()
    a(f"s_mov_b32 s4, s{P_WM}")
    a(f"s_mov_b32 s5, s{P_WM + 1}")
    VMQ = list(VM.q)
    common()
    a.c("======== Q: layernorm of x, silu(c)")
    VM.q = VMQ
    vm_wait("c")
    stamp(1)
    silu_c(False)
    XU = W3
    for i in range(8):
        a(f"v_lshlrev_b32 {v(XU + 2 * i)}, 16, {v(T[12 + i])}")
        a(f"v_and_b32 {v(XU + 2 * i + 1)}, 0xffff0000, {v(T[12 + i])}")
    a(f"v_lshlrev_b32 {v(T[20])}, 16, {v(T[20])}")
    a(f"v_add_f32 {v(T[0])}, {v(XU)}, {v(XU + 1)}")
    for i in range(2, 16):
        a(f"v_add_f32 {v(T[0])}, {v(T[0])}, {v(XU + i)}")
    allsum(v(T[0]), v(T[1]))
    a(f"v_mul_f32 {v(T[0])}, 0x3a800000, {v(T[0])}")
    a(f"v_mov_b32 {v(T[2])}, 0")
    for i in range(16):
        a(f"v_sub_f32 {v(XU + i)}, {v(XU + i)}, {v(T[0])}")
        a(f"v_fmac_f32 {v(T[2])}, {v(XU + i)}, {v(XU + i)}")
    allsum(v(T[2]), v(T[1]))
    a(f"v_mul_f32 {v(T[2])}, 0x3a800000, {v(T[2])}")
    ln_finish(v(T[20]), v(T[0]), v(T[2]), v(T[1]))
    a.c("======== Q: S2")
    tGA = tileB("ga", W3, vA3, 4096)
    tGB = tileB("gb", W3 + 8, vA4, 10240)
    a(f"s_add_u32 {t4}, {sGI}, 128")
    tGQ = tile6(SB, W2, v(vKV[0]))
    a(f"s_lshl_b32 {t0}, s66, 2")
    a(f"s_add_u32 {t0}, {t0}, {MODP}")
    a(f"s_add_u32 {t1}, {t0}, {4 * 24576}")
    a(f"s_and_b32 {t4}, {sGI}, 3")
    a(f"s_lshl_b32 {t4}, {t4}, 14")
    a(f"s_lshr_b32 {t3}, {sGI}, 2")
    a(f"s_lshl_b32 {t3}, {t3}, 9")
    a(f"s_add_u32 {t4}, {t4}, {t3}")
    a(f"s_add_u32 {t4}, {t4}, {H2}")
    srd(SA, P_WO, 8388608)
    a(f"s_and_b32 s66, {sGI}, 31")
    a(f"s_lshr_b32 s67, {sGI}, 5")
    a(f"s_lshr_b32 {t3}, s66, 3")
    a(f"s_lshl_b32 {t2}, {t3}, 10")
    a(f"s_and_b32 {t3}, s66, 7")
    a(f"s_lshl_b32 {t3}, {t3}, 4")
    a(f"s_add_u32 {t2}, {t2}, {t3}")
    a(f"s_and_b32 {t3}, {sW}, 3")
    a(f"s_lshl_b32 {t3}, {t3}, 2")
    a(f"s_add_u32 {t2}, {t2}, {t3}")
    a(f"s_lshl_b32 {t2}, {t2}, 11")
    a(f"s_lshl_b32 {t3}, s67, 9")
    a(f"s_add_u32 {t2}, {t2}, {t3}")
    a(f"s_lshr_b32 {t3}, {sW}, 2")
    a(f"s_lshl_b32 {t3}, {t3}, 8")
    a(f"s_add_u32 {t2}, {t2}, {t3}")
    tWO = Tile("wo", SA, W1, 8, vA2, 128 * 2048)
    tWO.addr(t2, 2048)
    vm_wait()
    stamp(3)
    gate(F_H1)
    stamp(2)

    def h1_loads():
        a(f"buffer_load_dwordx4 {vr(T[0], 4)}, {vMP}, {WS}, {t0} offen sc1")
        a(f"buffer_load_dwordx4 {vr(T[4], 4)}, {vMP}, {WS}, {t1} offen sc1")
    poll("h1", h1_loads, h2_checks)
    stamp(4)
    tWO.issue(cfg.q2a)
    pair_sum()
    modulate()
    gemv_bcast(D0, W0, 8)
    red_write_A(D0, L_RED1)
    barrier()
    finalize_A(L_RED1, t4, sig=F_H2)
    a("s_barrier")
    stamp(5)
    a.c("======== Q: wo tile + gb tile")
    tGA.issue()
    tWO.issue()
    tGQ.issue(cfg.q6a)
    a(f"s_and_b32 {t1}, {sW}, 3")
    a(f"s_lshl_b32 {t1}, {t1}, 8")
    a(f"s_add_u32 {t1}, {t1}, {L_XL}")
    a(f"v_add_u32 {v(T[33])}, {t1}, {vL4}")
    va, vb = v(T[31]), v(T[32])
    a(f"v_lshrrev_b32 {v(T[28])}, 3, {vL}")
    a(f"v_and_b32 {v(T[29])}, 7, {vL}")
    a(f"v_lshlrev_b32 {va}, 11, {v(T[28])}")
    a(f"v_lshl_add_u32 {va}, {v(T[29])}, 4, {va}")
    a(f"v_lshlrev_b32 {vb}, 8, {v(T[28])}")
    a(f"v_lshl_add_u32 {vb}, {v(T[29])}, 3, {vb}")
    a(f"s_lshl_b32 {t2}, s66, 14")
    a(f"s_lshl_b32 {t1}, {sW}, 7")
    a(f"s_add_u32 {t2}, {t2}, {t1}")
    a(f"s_add_u32 {t2}, {t2}, {H3O}")
    a(f"s_lshl_b32 {t3}, s66, 11")
    a(f"s_add_u32 {t3}, {t3}, {H3ML}")
    a(f"s_lshl_b32 {t0}, {sW2}, 11")
    a(f"v_add_u32 {v(T[34])}, {t0}, {vFA}")
    a(f"s_lshl_b32 s59, s66, 12")
    a(f"s_lshl_b32 {t1}, s67, 10")
    a(f"s_add_u32 s59, s59, {t1}")
    a(f"s_lshl_b32 {t1}, {sW}, 8")
    a(f"s_add_u32 s59, s59, {t1}")
    a(f"s_add_u32 s59, s59, {H4}")
    vm_wait("ga")
    gemv_regs(D0, W3, vXB)
    red_write_B(D0, L_RED0 + 4096)
    barrier()
    a(f"s_lshl_b32 {t4}, {sCS}, 8")
    a(f"s_add_u32 {t4}, {t4}, 8192")
    finalize_B(4, L_RED0 + 4096, t4)
    a(f"s_mov_b32 {t1}, {LOG2E}")
    vm_wait()
    stamp(6)
    gate(F_H3)
    stamp(11)
    a(f"s_cmp_lt_u32 {sW}, 4")
    a("s_cbranch_scc0 L_s4_wait")

    def h3_loads():
        for i in range(4):
            a(f"buffer_load_dwordx2 {vr(T[16 + 2 * i], 2)}, {vb}, {WS}, {t3} offen offset:{64 * i} sc1")
        for i in range(4):
            a(f"buffer_load_dwordx4 {vr(T[4 * i], 4)}, {va}, {WS}, {t2} offen offset:{512 * i} sc1")

    def h3_checks():
        clean(g4([T[0], T[4], T[8], T[12]]) + [(T[17 + 2 * i], sT[0]) for i in range(4)])
        a(f"v_and_b32 {v(T[24])}, 0xff, {vBAD}")
        clean([(T[16 + 2 * i], sT16) for i in range(4)])
        a(f"v_and_b32 {vBAD}, 0xffff, {vBAD}")
        a(f"v_or_b32 {vBAD}, {vBAD}, {v(T[24])}")
    poll("h3", h3_loads, h3_checks)
    stamp(12)
    a(f"v_max3_f32 {v(T[24])}, {v(T[16])}, {v(T[18])}, {v(T[20])}")
    a(f"v_max_f32 {v(T[24])}, {v(T[24])}, {v(T[22])}")
    a(f"v_max_f32_dpp {v(T[24])}, {v(T[24])}, {v(T[24])} row_ror:8{DPP}")
    rowsum(v(T[24]), v(T[25]), "max")
    for i in range(4):
        a(f"v_sub_f32 {v(T[16 + 2 * i])}, {v(T[16 + 2 * i])}, {v(T[24])}")
    for i in range(4):
        a(f"v_mul_f32 {v(T[16 + 2 * i])}, {t1}, {v(T[16 + 2 * i])}")
    for i in range(4):
        a(f"v_exp_f32 {v(T[16 + 2 * i])}, {v(T[16 + 2 * i])}")
    a(f"v_mul_f32 {v(T[24])}, {v(T[16])}, {v(T[17])}")
    for i in range(1, 4):
        a(f"v_fmac_f32 {v(T[24])}, {v(T[16 + 2 * i])}, {v(T[17 + 2 * i])}")
    for d in range(4):
        a(f"v_mul_f32 {v(T[d])}, {v(T[16])}, {v(T[d])}")
    a(f"v_add_f32_dpp {v(T[24])}, {v(T[24])}, {v(T[24])} row_ror:8{DPP}")
    for i in range(1, 4):
        for d in range(4):
            a(f"v_fmac_f32 {v(T[d])}, {v(T[16 + 2 * i])}, {v(T[4 * i + d])}")
    rowsum(v(T[24]), v(T[25]), "add")
    a(f"v_rcp_f32 {v(T[24])}, {v(T[24])}")
    col32_reduce(T[0])
    a(f"v_mul_f32 {v(T[0])}, {v(T[0])}, {v(T[24])}")
    a(f"v_cvt_pk_bf16_f32 {vX}, {v(T[0])}, {v(T[0])}")
    a(f"ds_write_b32 {v(T[33])}, {vX}")
    a.label("L_s4_wait")
    barrier()
    a(f"ds_read_b32 {vX}, {v(T[33])}")
    if cfg.q6b > cfg.q6a:
        sk = a.newlabel("nr")
        a(f"s_cmp_ge_u32 {sGI}, 96")
        a(f"s_cbranch_scc1 {sk}")
        tGQ.issue(cfg.q6b)
        a.label(sk)
    a("s_waitcnt lgkmcnt(0)")
    gemv_bcast(D0, W1, 8)
    red_write_A(D0, L_RED0)
    barrier()
    sk = a.newlabel("f4")
    a(f"s_cmp_lt_u32 {sW}, 4")
    a(f"s_cbranch_scc0 {sk}")
    finalize(v(T[34]), [0, 2, 4, 6], "s59")
    a.label(sk)
    stamp(13)
    a(f"s_cmp_ge_u32 {sGI}, 96")
    a("s_cbranch_scc1 L_R")
    a("s_barrier")
    a.c("======== Q: gate/up tile")
    tGQ.issue()
    stage6(W2, L_RED1, ok=(lambda: tGB.issue()) if cfg.gbe else None, sig=F_H5)
    a("s_branch L_gb2" if cfg.gbe else "s_branch L_gb")
    a.label("L_R")
    a.c("======== R: x1 slice (wave 0)")
    a(f"s_cmp_eq_u32 {sW}, 0")
    a("s_cbranch_scc0 L_gb")
    va = v(T[24])
    a(f"v_lshrrev_b32 {v(T[27])}, 3, {vL}")
    a(f"v_and_b32 {v(T[28])}, 7, {vL}")
    a(f"v_lshlrev_b32 {v(T[28])}, 4, {v(T[28])}")
    a(f"v_lshl_add_u32 {va}, {v(T[27])}, 12, {v(T[28])}")
    a(f"s_lshl_b32 {t5}, s66, 7")
    a(f"s_add_u32 {t0}, {t5}, {H4}")
    a(f"s_add_u32 {t1}, {t0}, 32768")
    a(f"s_add_u32 {t2}, {t0}, 65536")
    a(f"s_add_u32 {t3}, {t0}, 98304")
    a(f"s_add_u32 {t4}, {t5}, {MODP + 2048 * 4}")
    a(f"s_lshl_b32 s59, s66, 8")
    a(f"s_add_u32 s59, s59, {XR}")
    a(f"s_add_u32 s67, {t5}, {FLG + F_X1 * 32768}")
    a(f"v_lshlrev_b32 {v(T[25])}, 12, {vL}")
    a(f"v_lshlrev_b32 {vXR}, 16, {vXR}")
    a(f"v_mov_b32 {v(T[21])}, {sT32}")
    a(f"v_mov_b32 {v(T[23])}, {sT32}")
    a("s_waitcnt vmcnt(0)")

    def h4_loads():
        for i, s_ in enumerate((t0, t1, t2, t3)):
            a(f"buffer_load_dwordx4 {vr(T[4 * i], 4)}, {va}, {WS}, {s_} offen sc1")
        a(f"buffer_load_dwordx4 {vr(T[16], 4)}, {vOB}, {WS}, {t4} offen sc1")

    def h4_checks():
        clean(g4([T[0], T[4], T[8], T[12], T[16]]))
        a(f"v_and_b32 {vBAD}, 0xff, {vBAD}")
    poll("h4", h4_loads, h4_checks)
    stamp(8)
    for d in range(4):
        a(f"v_add_f32 {v(T[d])}, {v(T[d])}, {v(T[4 + d])}")
        a(f"v_add_f32 {v(T[8 + d])}, {v(T[8 + d])}, {v(T[12 + d])}")
    for d in range(4):
        a(f"v_add_f32 {v(T[d])}, {v(T[d])}, {v(T[8 + d])}")
    swapred2(T[0], T[16])
    a(f"v_add_f32_dpp {v(T[0])}, {v(T[0])}, {v(T[0])} row_ror:8{DPP}")
    a(f"v_add_f32_dpp {v(T[16])}, {v(T[16])}, {v(T[16])} row_ror:8{DPP}")
    rnd(v(T[0]), v(T[0]))
    rnd(v(T[16]), v(T[16]))
    a(f"v_mul_f32 {v(T[0])}, {v(T[0])}, {v(T[16])}")
    rnd(v(T[0]), v(T[0]))
    a(f"v_add_f32 {v(T[0])}, {v(T[0])}, {vXR}")
    rnd(v(T[0]), v(T[0]))
    a(f"v_or_b32 {v(T[1])}, {vTE}, {v(T[0])}")
    a(f"v_mov_b32 {v(T[20])}, {v(T[0])}")
    mask_n8()
    a(f"buffer_store_dword {v(T[1])}, {vQE4}, {WS}, s59 offen sc1")
    a("s_mov_b64 exec, -1")
    allsum(v(T[20]), v(T[2]))
    a(f"v_mul_f32 {v(T[20])}, 0x3c800000, {v(T[20])}")
    a(f"v_sub_f32 {v(T[22])}, {v(T[0])}, {v(T[20])}")
    a(f"v_mul_f32 {v(T[22])}, {v(T[22])}, {v(T[22])}")
    allsum(v(T[22]), v(T[2]))
    a(f"v_mul_f32 {v(T[22])}, 0.5, {v(T[22])}")
    a("s_mov_b64 exec, 1")
    a(f"buffer_store_dwordx4 {vr(T[20], 4)}, {vL4}, {WS}, s59 offen offset:128 sc1")
    a("s_mov_b64 exec, 0xff")
    a(f"buffer_store_dword {vT32}, {v(T[25])}, {WS}, s67 offen sc1")
    a("s_mov_b64 exec, -1")
    signal_partner(F_H5)
    stamp(9)
    a.label("L_gb")
    a("s_barrier")
    tGB.next = 0
    tGB.issue()
    a.label("L_gb2")
    a(f"s_lshl_b32 {t4}, {sCS}, 8")
    a(f"s_add_u32 {t4}, {t4}, 20480")
    a("s_waitcnt vmcnt(0)")
    gemv_regs(D0, W3 + 8, vXB)
    red_write_B(D0, L_RED0 + 4096)
    barrier()
    finalize_B(0, L_RED0 + 4096, t4)
    stamp(14)
    a.label("L_fin")
    write_stamps()
    a.label("L_end")
    a("s_endpgm")

    hdr = open("cdna_kernels/" + NAME + ".s.ref").read().split("; @launch")[0]
    out = hdr
    out += f"; @launch grid=(256,1,1) block=(512,1,1) lds={LDS_BYTES}\n"
    out += '.amdgcn_target "amdgcn-amd-amdhsa--gfx950"\n.text\n'
    out += f".globl {NAME}_kernel\n.p2align 8\n.type {NAME}_kernel,@function\n"
    out += a.text()
    out += f""".section .rodata,"a"
.p2align 6
.amdhsa_kernel {NAME}_kernel
  .amdhsa_next_free_vgpr 252
  .amdhsa_next_free_sgpr 102
  .amdhsa_accum_offset 252
  .amdhsa_group_segment_fixed_size 0
  .amdhsa_kernarg_size 112
  .amdhsa_user_sgpr_count 2
  .amdhsa_user_sgpr_kernarg_segment_ptr 1
  .amdhsa_system_sgpr_workgroup_id_x 1
.end_amdhsa_kernel
"""
    return out, a.ninstr


if __name__ == "__main__":
    cfg = Cfg()
    outp = sys.argv[1]
    for kv in sys.argv[2:]:
        k, val = kv.split("=")
        setattr(cfg, k, type(getattr(cfg, k))(int(val)))
    txt, n = gen(cfg)
    open(outp, "w").write(txt)
    print("wrote", outp, n, "instructions")
```

```python
import sys
from asmlib import Asm

NAME = "adaLN_cond__sliding_block_cached__swiglu_ffn__decode"

EPOCH = 0
MODP = 0x1000
H2 = 0x31000
H3O = 0x41000
H3ML = 0xC1000
H4 = 0xD1000
H6 = 0xF1000
FLG = 0x101000
STAMP = 0x120000
XR = 0x130000
H5 = 0x140000
GOFF = 0x30000
WS_USED = 0x190000
F_H2, F_H3, F_H1 = 0, 1, 2

L_K = 0
L_V = 32768
L_RED0 = 65536
L_RED1 = L_RED0 + 8192
L_QS = L_RED1 + 4096
L_PS = L_QS + 8 * 272
L_WM = L_PS + 8 * 272
L_XL = L_WM + 256
LDS_BYTES = L_XL + 1024

TAGK = 0x9D6B5A37
LOG2E = 0x3FB8AA3B
SCALE = 0x3DB504F3
EPS = 0x3727C5AC


class Cfg:
    nt = True
    stamps = False
    amp = 0
    backoff = 4
    lback = 1
    far = 0
    predirty = 0
    qA = 8
    capP3 = 0
    capQ6 = 0
    capQ2 = 0
    early = 0
    nomem = 0
    kv0 = 0
    kv1 = 2
    p3a = 4
    p7a = 7
    p7b = 7
    q2a = 0
    q6a = 0
    q6b = 3
    gbe = 1


def gen(cfg):
    a = Asm()
    NT = " nt" if cfg.nt else ""
    P_X, P_K, P_V, P_WQ, P_WO, P_BX, P_WG, P_WU = 8, 10, 12, 14, 16, 18, 20, 22
    P_WD, P_C, P_WM, P_OUT, P_DBG, P_WS = 24, 26, 28, 30, 32, 34
    WS = "s[36:39]"
    SA = "s[40:43]"
    SB = "s[44:47]"
    SM = "s[4:7]"
    sLG, tG = "s0", "s1"
    pH5, pH6 = "s14", "s15"
    qXR, qR = "s10", "s11"
    sW, sGI, sKS, sCS = "s48", "s49", "s50", "s51"
    sT = ["s52", "s53", "s54", "s55"]
    sT32, sT16 = "s56", "s57"
    sMROW = "s58"
    t0, t1, t2, t3, t4, t5 = "s60", "s61", "s62", "s63", "s64", "s65"
    sSPIN = "s70"
    sO6, sR6 = "s18", "s19"
    sKVL, sKVO = "s59", "s8"
    sFA, sW2, sMODK = "s3", "s32", "s33"
    vL, vN, vG = "v1", "v2", "v3"
    vM = ["v4", "v5", "v6", "v7"]
    vFF, vTL, vTE = "v8", "v9", "v10"
    vOB = "v11"
    vRW = "v12"
    vRB = "v13"
    vL4 = "v14"
    vXB = ["v15", "v16"]
    vXA = ["v17", "v18", "v19", "v20"]
    vBAD = "v21"
    vX = "v22"
    vLN = "v23"
    vT32 = "v0"
    A0, A1 = 24, 28
    D0, D1 = 32, 36
    T = list(range(40, 76))
    vXR, vONE, vFA, vMP = "v76", "v77", "v78", "v79"
    F0 = 80
    vQE4 = "v96"
    vA1, GU, vA4 = "v97", 98, "v100"
    vA2, vA3, vSH, vSC = "v252", "v253", "v254", "v255"
    vKV = [101, 102, 103, 104, 105, 106]
    vSTA = "v107"
    W0, W1, W2, W3 = 108, 140, 172, 204

    def v(i):
        return f"v{i}"

    def vr(i, n):
        return f"v[{i}:{i + n - 1}]"

    def srd(dst, ptr, nbytes):
        b = int(dst[2:dst.index(":")])
        a(f"s_mov_b32 s{b}, s{ptr}")
        a(f"s_mov_b32 s{b + 1}, s{ptr + 1}")
        a(f"s_mov_b32 s{b + 2}, {nbytes}")
        a(f"s_mov_b32 s{b + 3}, 0x00020000")

    def stamp(i):
        if cfg.stamps:
            a(f"s_memrealtime s[{72 + 2 * i}:{73 + 2 * i}]")

    def rnd(dst, src):
        a(f"v_cvt_pk_bf16_f32 {dst}, {src}, {src}")
        a(f"v_and_b32 {dst}, 0xffff0000, {dst}")

    DPP = " row_mask:0xf bank_mask:0xf"

    def allsum(x, tmp, op="add"):
        o = f"v_{op}_f32"
        a(f"{o}_dpp {x}, {x}, {x} quad_perm:[1,0,3,2]{DPP}")
        a(f"{o}_dpp {x}, {x}, {x} quad_perm:[2,3,0,1]{DPP}")
        a(f"{o}_dpp {x}, {x}, {x} row_half_mirror{DPP}")
        a(f"{o}_dpp {x}, {x}, {x} row_mirror{DPP}")
        rowsum(x, tmp, op)

    def rowsum(x, tmp, op="add"):
        o = f"v_{op}_f32"
        a(f"v_mov_b32 {tmp}, {x}")
        a(f"v_permlane16_swap_b32 {x}, {tmp}")
        a(f"{o} {x}, {x}, {tmp}")
        a(f"v_mov_b32 {tmp}, {x}")
        a(f"v_permlane32_swap_b32 {x}, {tmp}")
        a(f"{o} {x}, {x}, {tmp}")

    def swapred(x):
        a(f"v_permlane32_swap_b32 {v(x)}, {v(x + 2)}")
        a(f"v_permlane32_swap_b32 {v(x + 1)}, {v(x + 3)}")
        a(f"v_add_f32 {v(x)}, {v(x)}, {v(x + 2)}")
        a(f"v_add_f32 {v(x + 1)}, {v(x + 1)}, {v(x + 3)}")
        a(f"v_permlane16_swap_b32 {v(x)}, {v(x + 1)}")
        a(f"v_add_f32 {v(x)}, {v(x)}, {v(x + 1)}")

    def swapred2(x, y):
        for z in (x, y):
            a(f"v_permlane32_swap_b32 {v(z)}, {v(z + 2)}")
            a(f"v_permlane32_swap_b32 {v(z + 1)}, {v(z + 3)}")
        for z in (x, y):
            a(f"v_add_f32 {v(z)}, {v(z)}, {v(z + 2)}")
            a(f"v_add_f32 {v(z + 1)}, {v(z + 1)}, {v(z + 3)}")
        for z in (x, y):
            a(f"v_permlane16_swap_b32 {v(z)}, {v(z + 1)}")
        for z in (x, y):
            a(f"v_add_f32 {v(z)}, {v(z)}, {v(z + 1)}")

    def silu(dst, src, tmp):
        a(f"v_mul_f32 {tmp}, 0xbfb8aa3b, {src}")
        a(f"v_exp_f32 {tmp}, {tmp}")
        a(f"v_add_f32 {tmp}, 1.0, {tmp}")
        a(f"v_rcp_f32 {tmp}, {tmp}")
        a(f"v_mul_f32 {dst}, {src}, {tmp}")

    def clean(pairs):
        for r, t in pairs:
            a(f"v_xor_b32 {v(r)}, {t}, {v(r)}")
        regs = [r for r, _ in pairs]
        if len(regs) == 1:
            a(f"v_mov_b32 {vBAD}, {v(regs[0])}")
            return
        if len(regs) % 2 == 0:
            a(f"v_or_b32 {vBAD}, {v(regs[0])}, {v(regs[1])}")
            regs = regs[2:]
        else:
            a(f"v_or3_b32 {vBAD}, {v(regs[0])}, {v(regs[1])}, {v(regs[2])}")
            regs = regs[3:]
        for i in range(0, len(regs), 2):
            a(f"v_or3_b32 {vBAD}, {vBAD}, {v(regs[i])}, {v(regs[i + 1])}")

    def g4(regs):
        return [(r + d, sT[d]) for r in regs for d in range(4)]

    def poll(name, loads, checks, back=None):
        lw = a.newlabel(name + "_w")
        ld = a.newlabel(name + "_d")
        loads()
        a("s_waitcnt vmcnt(0)")
        VM.q = []
        a.label(lw)
        checks()
        a(f"v_cmp_ne_u32 vcc, 0, {vBAD}")
        a(f"s_cbranch_vccz {ld}")
        back = cfg.backoff if back is None else back
        if back:
            a(f"s_sleep {back}")
        loads()
        if cfg.stamps:
            a("s_add_u32 s71, s71, 1")
        a(f"s_sub_u32 {sSPIN}, {sSPIN}, 1")
        a("s_waitcnt vmcnt(0)")
        a(f"s_cbranch_scc0 {lw}")
        a(f"s_mov_b32 {sSPIN}, 0")
        a.label(ld)

    def gate(h):
        lp = a.newlabel("gate")
        ld = a.newlabel("gated")
        a(f"s_cmp_eq_u32 {sW}, 0")
        a(f"s_cbranch_scc0 {ld}")
        a("s_lshl_b32 s68, s2, 7")
        a(f"s_add_u32 s68, s68, {FLG + h * 32768}")
        a.label(lp)
        a(f"s_buffer_load_dword s69, {WS}, s68 glc")
        a("s_waitcnt lgkmcnt(0)")
        a(f"s_cmp_eq_u32 s69, {sT32}")
        a(f"s_cbranch_scc1 {ld}")
        a(f"s_sub_u32 {sSPIN}, {sSPIN}, 1")
        a(f"s_cbranch_scc0 {lp}")
        a(f"s_mov_b32 {sSPIN}, 0")
        a.label(ld)
        barrier()

    def signal_partner(h):
        a("s_xor_b32 s68, s2, 8")
        a("s_lshl_b32 s68, s68, 7")
        a(f"s_add_u32 s68, s68, {FLG + h * 32768}")
        a("s_mov_b64 exec, 1")
        a(f"buffer_store_dword {vT32}, {vL4}, {WS}, s68 offen sc1")
        a("s_mov_b64 exec, -1")

    def signal_w(h, wave=7):
        sk = a.newlabel("sg")
        a(f"s_cmp_eq_u32 {sW}, {wave}")
        a(f"s_cbranch_scc0 {sk}")
        signal_partner(h)
        a.label(sk)

    def setexec(m):
        if m == -1:
            a("s_mov_b64 exec, -1")
        elif m < 64:
            a(f"s_mov_b64 exec, {m}")
        else:
            a(f"s_mov_b32 exec_lo, {m & 0xffffffff:#x}")
            a(f"s_mov_b32 exec_hi, {m >> 32:#x}")

    def store2(items, defer=False):
        l1 = a.newlabel("sn")
        l2 = a.newlabel("sf")

        def emit(far, sc):
            cur = -1
            for op, data, va, so, imm, m in items:
                if m != cur:
                    setexec(m)
                    cur = m
                if far:
                    a(f"s_add_u32 {tG}, {so}, {GOFF}")
                    so = tG
                a(f"{op} {data}, {va}, {WS}, {so} offen offset:{imm}{sc}")
            if cur != -1:
                setexec(-1)
        a(f"s_cmp_eq_u32 {sLG}, 0")
        a(f"s_cbranch_scc0 {l1}")
        emit(False, "")
        if defer:
            a(f"s_branch {l2}")
        a.label(l1)
        emit(True, " sc1")
        if not defer:
            a(f"s_cmp_eq_u32 {sLG}, 0")
            a(f"s_cbranch_scc1 {l2}")
        emit(False, " sc1")
        a.label(l2)

    def far_A(soff):
        sk = a.newlabel("df")
        a(f"s_add_u32 {tG}, {soff}, {GOFF}")
        a(f"s_cmp_eq_u32 {sW2}, 0")
        a(f"s_cbranch_scc0 {sk}")
        a(f"buffer_store_dword {v(F0)}, {vL4}, {WS}, {tG} offen sc1")
        a.label(sk)

    def predirty(items):
        if not cfg.predirty:
            return
        l1 = a.newlabel("pd")
        a(f"s_cmp_eq_u32 {sLG}, 0")
        a(f"s_cbranch_scc0 {l1}")
        for op, data, va, so, imm, m in items:
            setexec(m)
            a(f"{op} {data}, {va}, {WS}, {so} offen offset:{imm}")
        setexec(-1)
        a.label(l1)

    def gemv_bcast(D, wbase, nt_):
        def prep(t):
            A = A0 if t % 2 == 0 else A1
            for d in range(4):
                a(f"v_and_b32_dpp {v(A + d)}, {vX}, {vM[d]} row_newbcast:{t}{DPP}")
        prep(0)
        for t in range(nt_):
            if t + 1 < nt_:
                prep(t + 1)
            A = A0 if t % 2 == 0 else A1
            c = "0" if t == 0 else vr(D, 4)
            a(f"v_mfma_f32_16x16x32_bf16 {vr(D, 4)}, {vr(A, 4)}, {vr(wbase + 4 * t, 4)}, {c}")

    def gemv_regs(D, wbase, xs):
        def prep(t):
            A = A0 if t % 2 == 0 else A1
            for d in range(4):
                a(f"v_and_b32 {v(A + d)}, {xs[t]}, {vM[d]}")
        prep(0)
        for t in range(len(xs)):
            if t + 1 < len(xs):
                prep(t + 1)
            A = A0 if t % 2 == 0 else A1
            c = "0" if t == 0 else vr(D, 4)
            a(f"v_mfma_f32_16x16x32_bf16 {vr(D, 4)}, {vr(A, 4)}, {vr(wbase + 4 * t, 4)}, {c}")

    def red_write_A(D, red):
        a("s_mov_b32 exec_hi, 0")
        a(f"ds_write_b128 {vRW}, {vr(D, 4)} offset:{red - L_RED0}")
        a("s_mov_b32 exec_hi, -1")

    def red_write_B(D, red):
        a("s_mov_b32 exec_lo, 0x00ff00ff")
        a("s_mov_b32 exec_hi, 0xff00ff00")
        a(f"ds_write_b128 {vRB}, {vr(D, 4)} offset:{red - L_RED0}")
        a("s_mov_b64 exec, -1")

    def finalize(vaddr, offs, soff, near=0):
        n = len(offs)
        for i in range(0, n, 2):
            a(f"ds_read2st64_b32 {vr(F0 + i, 2)}, {vaddr} offset0:{offs[i]} offset1:{offs[i + 1]}")
        a("s_waitcnt lgkmcnt(0)")
        step = 1
        while step < n:
            for i in range(0, n, 2 * step):
                a(f"v_add_f32 {v(F0 + i)}, {v(F0 + i)}, {v(F0 + i + step)}")
            step *= 2
        a(f"v_bfi_b32 {v(F0)}, {vFF}, {vTL}, {v(F0)}")
        if near:
            store2([("buffer_store_dword", v(F0), vL4, soff, 0, -1)], defer=near == 2)
        else:
            a(f"buffer_store_dword {v(F0)}, {vL4}, {WS}, {soff} offen sc1")

    def barrier():
        a("s_waitcnt lgkmcnt(0)")
        a("s_barrier")

    def finalize_A(red, sbase, w0=0, sig=None, near=0):
        sk = a.newlabel("fa")
        if not near:
            a(f"s_add_u32 {t5}, {sFA}, {sbase}")
        a(f"s_cmp_eq_u32 {sW2}, {w0 // 2}")
        a(f"s_cbranch_scc0 {sk}")
        o = (red - L_RED0) // 256
        finalize(vFA, [o + 2 * i for i in range(8)], sbase if near else t5, near)
        if sig is not None:
            a(f"s_cmp_eq_u32 {sW}, {w0}")
            a(f"s_cbranch_scc0 {sk}")
            signal_partner(sig)
        a.label(sk)

    def finalize_B(wave, red, colbytes):
        assert wave % 2 == 0
        sk = a.newlabel("fb")
        a(f"s_add_u32 {t5}, {sMODK}, {colbytes}")
        a(f"s_cmp_eq_u32 {sW}, {wave}")
        a(f"s_cbranch_scc0 {sk}")
        o = (red - L_RED0) // 256
        finalize(vFA, [o + i for i in range(16)], t5)
        a.label(sk)

    def predirty_A(soff):
        sk = a.newlabel("pa")
        a(f"s_cmp_eq_u32 {sW2}, 0")
        a(f"s_cbranch_scc0 {sk}")
        a(f"v_not_b32 {v(F0 + 8)}, {vTL}")
        predirty([("buffer_store_dword", v(F0 + 8), vL4, soff, 0, -1)])
        a.label(sk)

    def mod_prep():
        rnd(vSH, v(T[0]))
        a(f"v_add_f32_dpp {vSC}, {vSH}, {vONE} row_ror:8{DPP}")
        rnd(vSC, vSC)

    def modulate(sc=vSC):
        a(f"v_mul_f32 {v(T[1])}, {vLN}, {sc}")
        rnd(v(T[1]), v(T[1]))
        a(f"v_add_f32 {v(T[1])}, {v(T[1])}, {vSH}")
        a(f"v_cvt_pk_bf16_f32 {vX}, {v(T[1])}, {v(T[1])}")

    def ln_stats(mean, var):
        rnd(var, var)
        rnd(mean, mean)
        a(f"v_add_f32 {var}, {EPS}, {var}")
        rnd(var, var)
        a(f"v_sqrt_f32 {var}, {var}")
        rnd(var, var)
        a(f"v_rcp_f32 {var}, {var}")

    def ln_apply(xval, mean, rstd, tmp):
        a(f"v_sub_f32 {tmp}, {xval}, {mean}")
        rnd(tmp, tmp)
        a(f"v_mul_f32 {tmp}, {tmp}, {rstd}")
        rnd(vLN, tmp)

    def ln_finish(xval, mean, var, tmp):
        ln_stats(mean, var)
        ln_apply(xval, mean, var, tmp)

    class VM:
        q = []

    def vm_add(tag):
        VM.q.append(tag)

    def vm_wait(tag=None):
        if tag is None:
            n = 0
        else:
            if tag not in VM.q:
                return
            idx = max(i for i, t in enumerate(VM.q) if t == tag)
            n = len(VM.q) - 1 - idx
        a(f"s_waitcnt vmcnt({n})")
        VM.q = VM.q[len(VM.q) - n:] if n else []

    class Tile:
        def __init__(self, name, srdname, wreg, n, va, tstep):
            self.name, self.srd, self.wreg, self.n, self.va, self.tstep = name, srdname, wreg, n, va, tstep
            self.next = 0

        def addr(self, sbase, gstep):
            a(f"v_mul_u32_u24 {self.va}, {gstep}, {vG}")
            a(f"v_lshl_add_u32 {self.va}, {vN}, 4, {self.va}")
            a(f"v_add_u32 {self.va}, {sbase}, {self.va}")

        def issue(self, upto=None, cap=0):
            upto = self.n if upto is None else min(upto, self.n)
            while self.next < upto:
                t = self.next
                if cap and len(VM.q) >= cap:
                    a(f"s_waitcnt vmcnt({cap - 1})")
                    VM.q = VM.q[len(VM.q) - (cap - 1):] if cap > 1 else []
                self.load(t)
                vm_add(self.name)
                self.next += 1

        def load(self, t):
            so = "0"
            if t:
                so = "s69" if t % 2 else "s68"
                a(f"s_mov_b32 {so}, {t * self.tstep}")
            a(f"buffer_load_dwordx4 {vr(self.wreg + 4 * t, 4)}, {self.va}, {self.srd}, {so} offen{NT}")

    class TileG(Tile):
        def load(self, t):
            if cfg.nomem:
                a(f"buffer_load_dwordx4 {vr(self.wreg + 4 * t, 4)}, {vL4}, {SM}, 0 offen{NT}")
                return
            if t:
                a(f"v_add_co_u32 {v(GU)}, vcc, {4 * 7168}, {v(GU)}")
                a(f"v_addc_co_u32 {v(GU + 1)}, vcc, 0, {v(GU + 1)}, vcc")
            a(f"global_load_dwordx4 {vr(self.wreg + 4 * t, 4)}, {vr(GU, 2)}, off{NT}")

    def tileB(name, wreg, va, colbase):
        tl = Tile(name, SM, wreg, 2, va, 12288)
        a(f"s_lshl_b32 {t0}, {sCS}, 7")
        a(f"s_add_u32 {t0}, {t0}, {sMROW}")
        a(f"s_add_u32 {t0}, {t0}, {colbase}")
        a(f"v_add_u32 {va}, {t0}, {vOB}")
        return tl

    def tile6(wreg):
        a(f"s_and_b32 {t0}, {t4}, 3")
        a(f"s_lshr_b32 {t1}, {t4}, 2")
        a(f"s_lshl_b32 {sR6}, {t0}, 8")
        a(f"s_lshl_b32 {t2}, {sW}, 5")
        a(f"s_add_u32 {sR6}, {sR6}, {t2}")
        a(f"s_mul_i32 {sO6}, {t0}, 3584")
        a(f"s_mul_i32 {t2}, {sKS}, 14336")
        a(f"s_add_u32 {sO6}, {sO6}, {t2}")
        a(f"s_add_u32 {sO6}, {sO6}, {H5}")
        a(f"s_cmp_ge_u32 {t1}, 3")
        a(f"s_cselect_b32 s69, 1, 0")
        a(f"s_cselect_b32 {t2}, 3, 0")
        a(f"s_sub_u32 {t2}, {t1}, {t2}")
        a(f"s_lshl_b32 {t2}, {t2}, 7")
        a(f"s_and_b32 {t0}, {sKS}, 1")
        a(f"s_lshl_b32 {t0}, {t0}, 6")
        a(f"s_add_u32 {t2}, {t2}, {t0}")
        a(f"s_cmp_eq_u32 {t2}, 448")
        a(f"s_cselect_b32 {t2}, 0, {t2}")
        a(f"s_add_u32 {t3}, {t2}, 64")
        a(f"s_cmp_eq_u32 {t1}, 6")
        a(f"s_cselect_b32 {t3}, {t2}, {t3}")
        a(f"s_cselect_b32 s68, 0, s69")
        a(f"s_mul_i32 {t0}, s68, 448")
        a(f"s_add_u32 {t0}, {t0}, {t2}")
        a(f"s_mul_i32 {t1}, s69, 448")
        a(f"s_add_u32 {t1}, {t1}, {t3}")
        a(f"s_bitcmp1_b32 {sW}, 0")
        a(f"s_cselect_b32 {t0}, {t1}, {t0}")
        a(f"s_lshl_b32 {t0}, {t0}, 2")
        a(f"s_add_u32 {sO6}, {sO6}, {t0}")
        a(f"s_mul_i32 {t0}, {sR6}, 7168")
        a(f"s_mul_i32 {t1}, {sKS}, 896")
        a(f"s_add_u32 {t0}, {t0}, {t1}")
        a(f"s_lshl_b32 {t2}, {t2}, 1")
        a(f"s_lshl_b32 {t3}, {t3}, 1")
        a(f"s_add_u32 {t2}, {t2}, {t0}")
        a(f"s_add_u32 {t3}, {t3}, {t0}")
        for sel, off, lo, hi in (("s68", t2, T[0], T[1]), ("s69", t3, T[2], T[3])):
            a(f"s_cmp_eq_u32 {sel}, 1")
            a(f"s_cselect_b32 {t0}, s{P_WU}, s{P_WG}")
            a(f"s_cselect_b32 {t1}, s{P_WU + 1}, s{P_WG + 1}")
            a(f"s_add_u32 {t0}, {t0}, {off}")
            a(f"s_addc_u32 {t1}, {t1}, 0")
            a(f"v_mov_b32 {v(lo)}, {t0}")
            a(f"v_mov_b32 {v(hi)}, {t1}")
        a(f"v_cmp_lt_u32 vcc, 7, {vN}")
        a(f"v_cndmask_b32 {v(GU)}, {v(T[0])}, {v(T[2])}, vcc")
        a(f"v_cndmask_b32 {v(GU + 1)}, {v(T[1])}, {v(T[3])}, vcc")
        a(f"v_mul_u32_u24 {v(T[0])}, {0 if cfg.nomem else 7168}, {vG}")
        a(f"v_and_b32 {v(T[1])}, 7, {vL}")
        a(f"v_lshl_add_u32 {v(T[0])}, {v(T[1])}, 4, {v(T[0])}")
        a(f"v_add_co_u32 {v(GU)}, vcc, {v(GU)}, {v(T[0])}")
        a(f"v_addc_co_u32 {v(GU + 1)}, vcc, 0, {v(GU + 1)}, vcc")

        return TileG("gu", None, wreg, 8, None, 0)

    def pair_sum():
        for d in range(4):
            a(f"v_add_f32 {v(T[d])}, {v(T[d])}, {v(T[4 + d])}")
        swapred(T[0])

    def pair_checks():
        clean(g4([T[0], T[4]]))
        a(f"v_and_b32 {vBAD}, 0xff, {vBAD}")

    def pair_loads():
        a(f"buffer_load_dwordx4 {vr(T[0], 4)}, {vMP}, {WS}, {t0} offen sc1")
        a(f"buffer_load_dwordx4 {vr(T[4], 4)}, {vMP}, {WS}, {t1} offen sc1")

    def stage6(wreg, red, ok=None, gated=False):
        vs = v(T[27])
        a(f"v_and_b32 {vs}, 31, {vL}")
        a(f"v_lshlrev_b32 {vs}, 8, {vs}")
        a(f"s_lshl_b32 {t0}, {sR6}, 2")
        a(f"s_add_u32 {t0}, {t0}, {MODP + 3072 * 4}")
        a(f"s_add_u32 {t1}, {t0}, {4 * 24576}")
        a(f"s_lshl_b32 {t3}, {sKS}, 13")
        a(f"s_add_u32 {t3}, {t3}, {XR}")
        a(f"s_add_u32 {t3}, {t3}, {sLG}")
        a(f"s_lshl_b32 {t2}, {sR6}, 3")
        a(f"s_add_u32 {t2}, {t2}, {t3}")
        poll("sbcb", pair_loads, pair_checks)
        stamp(7)
        pair_sum()
        mod_prep()
        stamp(8)

        lo = a.newlabel("s6o")
        lj = a.newlabel("s6j")

        def loads():
            a(f"buffer_load_dword {v(T[8])}, {vQE4}, {WS}, {t2} offen sc1")

        def checks():
            a(f"v_xor_b32 {v(T[8])}, {vTE}, {v(T[8])}")
            a(f"v_and_b32 {vBAD}, 0xff, {v(T[8])}")

        def loads0():
            a(f"buffer_load_dwordx4 {vr(T[12], 4)}, {vs}, {WS}, {t3} offen offset:128 sc1")
            loads()

        def checks0():
            checks()
            a(f"v_bitop3_b32 {vBAD}, {vBAD}, {v(T[13])}, {sT32} bitop3:0xf6")
            a(f"v_bitop3_b32 {vBAD}, {vBAD}, {v(T[15])}, {sT32} bitop3:0xf6")
        a(f"s_cmp_eq_u32 {sW}, 0")
        a(f"s_cbranch_scc0 {lo}")
        poll("h5a", loads0, checks0, back=cfg.lback)
        stamp(9)
        a(f"v_mov_b32 {v(T[16])}, {v(T[12])}")
        allsum(v(T[16]), v(T[10]))
        a(f"v_mul_f32 {v(T[16])}, 0x3c800000, {v(T[16])}")
        a(f"v_sub_f32 {v(T[10])}, {v(T[12])}, {v(T[16])}")
        a(f"v_mul_f32 {v(T[10])}, {v(T[10])}, {v(T[10])}")
        a(f"v_fmac_f32 {v(T[14])}, 0x42000000, {v(T[10])}")
        allsum(v(T[14]), v(T[10]))
        a(f"v_mul_f32 {v(T[17])}, 0x3a000000, {v(T[14])}")
        ln_stats(v(T[16]), v(T[17]))
        a("s_mov_b64 exec, 1")
        a(f"ds_write_b64 {vSTA}, {vr(T[16], 2)}")
        a("s_mov_b64 exec, -1")
        a(f"s_branch {lj}")
        a.label(lo)
        poll("h5b", loads, checks, back=cfg.lback)
        a.label(lj)
        barrier()
        a(f"ds_read_b64 {vr(T[16], 2)}, {vSTA}")
        if ok:
            ok()
        a("s_waitcnt lgkmcnt(0)")
        ln_apply(v(T[8]), v(T[16]), v(T[17]), v(T[10]))
        modulate()
        gemv_bcast(D0, wreg, 8)
        red_write_A(D0, red)
        barrier()
        finalize_A(red, sO6, near=2 if gated else 1)
        stamp(10)

    def col32_reduce(x):
        swapred(x)
        a(f"v_add_f32_dpp {v(x)}, {v(x)}, {v(x)} row_ror:8{DPP}")

    def write_stamps():
        if not cfg.stamps:
            return
        sk = a.newlabel("st")
        a(f"s_cmp_eq_u32 {sW}, 0")
        a(f"s_cbranch_scc0 {sk}")
        a("s_waitcnt lgkmcnt(0)")
        a("s_mov_b64 exec, 1")
        a(f"s_lshl_b32 {t0}, s2, 6")
        a(f"s_add_u32 {t0}, {t0}, {STAMP}")
        a(f"v_mov_b32 {v(T[1])}, 0")
        for i in range(15):
            a(f"v_mov_b32 {v(T[2 + i])}, s{72 + 2 * i}")
            a(f"buffer_store_dword {v(T[2 + i])}, {v(T[1])}, {WS}, {t0} offen offset:{4 * i}")
        a(f"v_mov_b32 {v(T[20])}, s71")
        a(f"buffer_store_dword {v(T[20])}, {v(T[1])}, {WS}, {t0} offen offset:60")
        a("s_mov_b64 exec, -1")
        a.label(sk)

    M_N8 = 0x00ff00ff00ff00ff

    def mask_n8():
        a("s_mov_b32 exec_lo, 0x00ff00ff")
        a("s_mov_b32 exec_hi, 0x00ff00ff")

    def common():
        a(f"s_load_dword {sT32}, s[{P_WS}:{P_WS + 1}], {EPOCH}")
        srd(WS, P_WS, WS_USED)
        a(f"s_getreg_b32 {t0}, hwreg(HW_REG_XCC_ID, 0, 4)")
        if cfg.far == 1:
            a(f"s_mov_b32 {t0}, 99")
        if cfg.far == 2:
            a(f"s_bitcmp1_b32 s2, 5")
            a(f"s_cselect_b32 {t0}, 99, {t0}")
        a(f"s_cmp_eq_u32 {t0}, {sKS}")
        a(f"s_cselect_b32 {sLG}, 0, {GOFF}")
        a(f"v_and_b32 {v(T[0])}, 1, {vL}")
        a(f"v_mov_b32 {v(T[1])}, 0xffff")
        a(f"v_lshlrev_b32 {v(T[0])}, 4, {v(T[0])}")
        a(f"v_lshlrev_b32 {v(T[1])}, {v(T[0])}, {v(T[1])}")
        a(f"v_bfe_u32 {v(T[0])}, {vL}, 1, 2")
        for d in range(4):
            a(f"v_cmp_eq_u32 vcc, {d}, {v(T[0])}")
            a(f"v_cndmask_b32 {vM[d]}, 0, {v(T[1])}, vcc")
        a(f"v_mov_b32 {vFF}, 0xff")
        a(f"v_mov_b32 {vONE}, 1.0")
        a(f"v_mov_b32 {vSTA}, {L_WM}")
        a(f"s_lshl_b32 {t0}, {sW}, 9")
        a(f"s_add_u32 {t0}, {t0}, {L_RED0}")
        a(f"v_lshlrev_b32 {vRW}, 5, {vN}")
        a(f"v_lshl_add_u32 {vRW}, {vG}, 4, {vRW}")
        a(f"v_add_u32 {vRW}, {t0}, {vRW}")
        a(f"v_and_b32 {v(T[0])}, 7, {vL}")
        a(f"v_lshlrev_b32 {vRB}, 5, {v(T[0])}")
        a(f"v_and_b32 {v(T[1])}, 1, {vG}")
        a(f"v_lshl_add_u32 {vRB}, {v(T[1])}, 4, {vRB}")
        a(f"v_lshrrev_b32 {v(T[1])}, 1, {vG}")
        a(f"v_lshl_add_u32 {vRB}, {v(T[1])}, 8, {vRB}")
        a(f"v_add_u32 {vRB}, {t0}, {vRB}")
        a(f"s_and_b32 {sFA}, {sW}, 1")
        a(f"s_lshl_b32 {sFA}, {sFA}, 8")
        a(f"s_lshr_b32 {sW2}, {sW}, 1")
        a(f"s_add_u32 {t0}, {sFA}, {L_RED0}")
        a(f"v_add_u32 {vFA}, {t0}, {vL4}")
        a(f"s_mul_i32 {sMODK}, {sKS}, 24576")
        a(f"s_add_u32 {sMODK}, {sMODK}, {MODP}")
        a(f"v_mul_u32_u24 {vMP}, 24576, {vG}")
        a(f"v_bfe_u32 {v(T[1])}, {vL}, 3, 1")
        a(f"v_lshl_add_u32 {vMP}, {v(T[1])}, 12, {vMP}")
        a(f"v_lshl_add_u32 {vMP}, {v(T[0])}, 4, {vMP}")
        a("s_waitcnt lgkmcnt(0)")
        a(f"s_xor_b32 {sT32}, {sT32}, {TAGK}")
        for d in range(4):
            a(f"s_bfe_u32 {sT[d]}, {sT32}, {(8 << 16) | (8 * d)}")
        a(f"s_lshr_b32 {sT16}, {sT32}, 16")
        a(f"v_mov_b32 {vT32}, {sT32}")
        a(f"v_and_b32 {v(T[0])}, 3, {vL}")
        a(f"v_lshlrev_b32 {v(T[0])}, 3, {v(T[0])}")
        a(f"v_bfe_u32 {vTL}, {vT32}, {v(T[0])}, 8")
        a(f"v_lshlrev_b32 {v(T[0])}, 3, {vG}")
        a(f"v_bfe_u32 {vTE}, {vT32}, {v(T[0])}, 8")

    a.raw(f"{NAME}_kernel:")
    a("s_cmp_ge_u32 s2, 256")
    a("s_cbranch_scc1 L_end")
    a("s_load_dwordx8 s[24:31], s[0:1], 64")
    a("s_load_dwordx16 s[8:23], s[0:1], 0")
    a("s_load_dwordx4 s[32:35], s[0:1], 96")
    if cfg.stamps:
        for i in range(15):
            a(f"s_mov_b64 s[{72 + 2 * i}:{73 + 2 * i}], 0")
        a("s_mov_b32 s71, 0")
    stamp(0)
    if cfg.amp:
        a("s_memrealtime s[100:101]")
    a(f"v_and_b32 {vL}, 63, v0")
    a(f"v_lshrrev_b32 {v(T[0])}, 6, v0")
    a(f"v_and_b32 {vN}, 15, v0")
    a(f"v_readfirstlane_b32 {sW}, {v(T[0])}")
    a(f"v_lshrrev_b32 {vG}, 4, {vL}")
    a(f"s_and_b32 {sKS}, s2, 7")
    a(f"s_lshr_b32 {sCS}, s2, 4")
    a(f"s_lshl_b32 {sGI}, {sCS}, 3")
    a(f"s_or_b32 {sGI}, {sGI}, {sKS}")
    a(f"s_mov_b32 {sSPIN}, 200000")
    a(f"v_lshrrev_b32 {v(T[0])}, 3, {vL}")
    a(f"v_mul_u32_u24 {vOB}, 24576, {v(T[0])}")
    a(f"v_and_b32 {v(T[1])}, 7, {vL}")
    a(f"v_lshl_add_u32 {vOB}, {v(T[1])}, 4, {vOB}")
    a(f"v_lshlrev_b32 {v(T[2])}, 2, {v(T[0])}")
    a(f"v_lshlrev_b32 {v(T[3])}, 3, {vG}")
    a(f"v_lshlrev_b32 {vL4}, 2, {vL}")
    a(f"v_lshl_add_u32 {vQE4}, {v(T[1])}, 2, {vG}")
    a(f"v_lshlrev_b32 {v(T[9])}, 1, {vQE4}")
    a(f"v_lshlrev_b32 {vQE4}, 2, {vQE4}")
    a(f"v_lshlrev_b32 {v(T[8])}, 5, {vL}")
    a(f"s_lshl_b32 {t2}, {sKS}, 7")
    a(f"s_lshl_b32 {t3}, {sW}, 4")
    a(f"s_add_u32 {t2}, {t2}, {t3}")
    a(f"s_mul_i32 {sMROW}, {t2}, 12288")
    a(f"s_lshl_b32 {t2}, {t2}, 1")
    a("s_mov_b32 s6, 12582912")
    a("s_mov_b32 s7, 0x00020000")
    a("s_mov_b32 s46, 2048")
    a("s_mov_b32 s47, 0x00020000")
    a("s_bitcmp1_b32 s2, 3")
    a("s_cbranch_scc1 L_Q_pre")
    a(f"s_lshl_b32 {t0}, {sCS}, 8")
    a(f"s_add_u32 {t0}, {t0}, {sMROW}")
    tS1 = Tile("s1", SM, W0, 4, vA1, 12288)
    tS1.addr(t0, 4 * 12288)
    a("s_waitcnt lgkmcnt(0)")
    a(f"s_mov_b32 s4, s{P_WM}")
    a(f"s_mov_b32 s5, s{P_WM + 1}")
    a(f"s_mov_b32 s44, s{P_C}")
    a(f"s_mov_b32 s45, s{P_C + 1}")
    VM.q = []
    a(f"buffer_load_dwordx2 {vr(T[6], 2)}, {v(T[3])}, {SB}, {t2} offen")
    vm_add("c")
    tS1.issue()
    a(f"s_and_b32 s66, {sGI}, 3")
    a(f"s_lshr_b32 s67, {sGI}, 2")
    a(f"s_lshl_b32 {t2}, s66, 24")
    a(f"s_lshl_b32 {t1}, s67, 15")
    a(f"s_add_u32 {t2}, {t2}, {t1}")
    a(f"s_lshl_b32 {sKVL}, {sW}, 12")
    a(f"s_add_u32 {t2}, {t2}, {sKVL}")
    a(f"s_add_u32 {sKVO}, {t2}, {61440 * 256}")
    srd(SA, P_K, 67108864)
    srd(SB, P_V, 67108864)
    a(f"v_xor_b32 {v(vKV[0])}, {vN}, {vG}")
    a(f"v_lshlrev_b32 {v(vKV[0])}, 4, {v(vKV[0])}")
    a(f"v_lshl_add_u32 {v(vKV[0])}, {vG}, 8, {v(vKV[0])}")
    for u in range(1, 4):
        a(f"v_xor_b32 {v(vKV[u])}, {64 * u}, {v(vKV[0])}")
    a(f"v_lshlrev_b32 {v(vKV[4])}, 1, {vG}")
    a(f"v_xor_b32 {v(vKV[4])}, {vN}, {v(vKV[4])}")
    a(f"v_lshlrev_b32 {v(vKV[4])}, 4, {v(vKV[4])}")
    a(f"v_lshl_add_u32 {v(vKV[4])}, {vG}, 8, {v(vKV[4])}")
    a(f"v_xor_b32 {v(vKV[5])}, 128, {v(vKV[4])}")
    kvn = [0]

    def kv_issue(upto):
        while kvn[0] < upto:
            u = kvn[0]
            if u == 0:
                a(f"s_mov_b32 m0, {sKVL}")
            if u == 4:
                a(f"s_add_u32 m0, {sKVL}, {L_V}")
            if u < 4:
                a(f"buffer_load_dwordx4 {v(vKV[u])}, {SA}, {sKVO} offen offset:{1024 * u}{NT} lds")
            else:
                a(f"buffer_load_dwordx4 {v(vKV[4 + ((u - 4) >> 1)])}, {SB}, {sKVO} offen offset:{1024 * (u - 4)}{NT} lds")
            vm_add("kv")
            kvn[0] += 1
    if cfg.kv0:
        a("s_barrier")
    kv_issue(cfg.kv0)
    VMP = list(VM.q)
    common()

    def silu_c(typeA):
        if typeA:
            srcs = [(T[6], vXA[0], vXA[1]), (T[7], vXA[2], vXA[3])]
        else:
            srcs = [(T[4], vXB[0], vXB[1])]
        for s_, lo, hi in srcs:
            a(f"v_lshlrev_b32 {v(T[0])}, 16, {v(s_)}")
            a(f"v_and_b32 {v(T[1])}, 0xffff0000, {v(s_)}")
            silu(v(T[0]), v(T[0]), v(T[2]))
            silu(v(T[1]), v(T[1]), v(T[3]))
            a(f"v_cvt_pk_bf16_f32 {lo}, {v(T[0])}, {v(T[0])}")
            a(f"v_cvt_pk_bf16_f32 {hi}, {v(T[1])}, {v(T[1])}")

    a.c("======== P: S1")
    VM.q = VMP
    vm_wait("c")
    silu_c(True)
    a(f"s_lshl_b32 {t4}, {sCS}, 9")
    a(f"s_add_u32 {t4}, {t4}, {sMODK}")
    a(f"s_lshl_b32 {t0}, {sCS}, 8")
    a(f"s_add_u32 {t0}, {t0}, 6144")
    a(f"s_add_u32 {t0}, {t0}, {sMROW}")
    tSC = Tile("sc", SM, W0 + 16, 4, vA2, 12288)
    tSC.addr(t0, 4 * 12288)
    vm_wait("s1")
    stamp(1)
    kv_issue(cfg.kv1)
    gemv_regs(D0, W0, vXA)
    red_write_A(D0, L_RED0)
    barrier()
    finalize_A(L_RED0, t4, sig=F_H1)
    a("s_barrier")
    stamp(2)
    kv_issue(8)
    a(f"s_mov_b32 {t4}, {sCS}")
    tGU = tile6(W1)
    srd(SB, P_WD, 7340032)
    a(f"s_and_b32 {t0}, {sCS}, 1")
    a(f"s_mul_i32 {t2}, {t0}, 224")
    a(f"s_mul_i32 {t1}, {sW}, 28")
    a(f"s_add_u32 {t2}, {t2}, {t1}")
    a(f"s_mul_i32 {t1}, {sKS}, 448")
    a(f"s_add_u32 {t4}, {t2}, {t1}")
    a(f"s_lshl_b32 {t4}, {t4}, 11")
    a(f"s_lshr_b32 {t3}, {sCS}, 1")
    a(f"s_lshl_b32 {t1}, {t3}, 8")
    a(f"s_add_u32 {t4}, {t4}, {t1}")
    tWD = Tile("wd", SB, W2, 7, vA4, 4 * 2048)
    tWD.addr(t4, 2048)
    a(f"s_lshl_b32 {pH5}, {t2}, 2")
    a(f"s_mul_i32 {t1}, {sKS}, 14336")
    a(f"s_add_u32 {pH5}, {pH5}, {t1}")
    a(f"s_add_u32 {pH5}, {pH5}, {H5}")
    a(f"s_add_u32 {pH5}, {pH5}, {sLG}")
    a(f"s_lshl_b32 {pH6}, {sKS}, 1")
    a(f"s_add_u32 {pH6}, {pH6}, {t0}")
    a(f"s_lshl_b32 {pH6}, {pH6}, 12")
    a(f"s_lshl_b32 {t1}, {t3}, 9")
    a(f"s_add_u32 {pH6}, {pH6}, {t1}")
    a(f"s_add_u32 {pH6}, {pH6}, {H6}")
    predirty_A(sO6)
    KF, VF, QF = W3, W3 + 16, W3 + 32
    vKA, vVA, vQA, vH2, vQW, vPW = v(T[30]), v(T[31]), v(T[32]), v(T[33]), v(T[34]), v(T[35])
    vWMr, vWMw, vOA, vMLA = v(T[26]), v(T[27]), v(T[28]), v(T[29])
    a(f"v_xor_b32 {vKA}, {vN}, {vG}")
    a(f"v_lshlrev_b32 {vKA}, 4, {vKA}")
    a(f"v_lshl_add_u32 {vKA}, {vN}, 8, {vKA}")
    a(f"s_lshl_b32 {t1}, {sW}, 12")
    a(f"v_add_u32 {vKA}, {t1}, {vKA}")
    a(f"v_bfe_u32 {v(T[0])}, {vL}, 2, 2")
    a(f"v_and_b32 {v(T[1])}, 1, {vG}")
    a(f"v_lshl_or_b32 {v(T[1])}, {v(T[1])}, 2, {v(T[0])}")
    a(f"v_lshlrev_b32 {v(T[1])}, 1, {v(T[1])}")
    a(f"v_bfe_u32 {v(T[2])}, {vL}, 1, 1")
    a(f"s_lshl_b32 {t1}, {sW}, 1")
    a(f"v_or_b32 {v(T[2])}, {t1}, {v(T[2])}")
    a(f"v_xor_b32 {v(T[2])}, {v(T[2])}, {v(T[1])}")
    a(f"v_lshl_add_u32 {v(T[0])}, {vG}, 3, {v(T[0])}")
    a(f"v_lshlrev_b32 {vVA}, 8, {v(T[0])}")
    a(f"v_lshl_add_u32 {vVA}, {v(T[2])}, 4, {vVA}")
    a(f"v_and_b32 {v(T[0])}, 1, {vL}")
    a(f"v_lshl_add_u32 {vVA}, {v(T[0])}, 3, {vVA}")
    a(f"v_add_u32 {vVA}, {L_V}, {vVA}")
    a(f"v_and_b32 {v(T[0])}, 7, {vL}")
    a(f"v_mul_u32_u24 {vQA}, 272, {v(T[0])}")
    a(f"v_lshl_add_u32 {vPW}, {vG}, 3, {vQA}")
    a(f"v_lshl_add_u32 {vQA}, {vG}, 4, {vQA}")
    a(f"v_add_u32 {vQA}, {L_QS}, {vQA}")
    a(f"s_lshl_b32 {t1}, {sW}, 5")
    a(f"s_add_u32 {t1}, {t1}, {L_PS}")
    a(f"v_add_u32 {vPW}, {t1}, {vPW}")
    a(f"v_lshlrev_b32 {vWMr}, 5, {v(T[0])}")
    a(f"v_add_u32 {vWMr}, {L_WM}, {vWMr}")
    a(f"s_lshl_b32 {t1}, {sW}, 2")
    a(f"v_add_u32 {vWMw}, {t1}, {vWMr}")
    a(f"v_lshlrev_b32 {vH2}, 14, {vG}")
    a(f"v_lshl_add_u32 {vH2}, {vN}, 4, {vH2}")
    a(f"v_lshl_add_u32 {vQW}, {vN}, 2, {vG}")
    a(f"v_lshlrev_b32 {vQW}, 1, {vQW}")
    a(f"s_mul_i32 {t1}, {sW}, 272")
    a(f"s_add_u32 {t1}, {t1}, {L_QS}")
    a(f"v_add_u32 {vQW}, {t1}, {vQW}")
    a(f"v_lshlrev_b32 {vOA}, 7, {vG}")
    a(f"v_lshl_add_u32 {vOA}, {vN}, 4, {vOA}")
    a(f"v_lshlrev_b32 {vMLA}, 3, {vL}")
    a(f"s_lshl_b32 {t2}, s66, 3")
    a(f"s_add_u32 {t2}, {t2}, {sW}")
    a(f"s_lshl_b32 {t3}, {t2}, 5")
    a(f"s_add_u32 {t3}, {t3}, s67")
    a(f"s_lshl_b32 {t2}, {t2}, 9")
    a(f"s_add_u32 {t2}, {t2}, {H2}")
    a(f"s_lshl_b32 s66, {t3}, 9")
    a(f"s_add_u32 s66, s66, {H3O}")
    a(f"s_lshl_b32 s67, {t3}, 6")
    a(f"s_add_u32 s67, s67, {H3ML}")
    vm_wait()
    stamp(3)
    a("s_barrier")
    for s_ in range(4):
        if s_:
            a(f"v_xor_b32 {v(T[10])}, {64 * s_}, {vKA}")
        a(f"ds_read_b128 {vr(KF + 4 * s_, 4)}, {v(T[10]) if s_ else vKA}")
    for s_ in range(4):
        for u in range(2):
            a(f"ds_read_b64_tr_b16 {vr(VF + 4 * s_ + 2 * u, 2)}, {vVA} offset:{8192 * s_ + 1024 * u}")
    for d in range(4):
        a(f"v_mov_b32 {v(A0 + d)}, 0x3f803f80")
    a(f"s_mov_b32 {t1}, {LOG2E}")
    gate(F_H2)
    stamp(4)

    def h2_loads():
        a(f"buffer_load_dwordx4 {vr(T[0], 4)}, {vH2}, {WS}, {t2} offen sc1")
        a(f"buffer_load_dwordx4 {vr(T[4], 4)}, {vH2}, {WS}, {t2} offen offset:256 sc1")

    def h2_checks():
        clean(g4([T[0], T[4]]))
        a(f"v_and_b32 {vBAD}, 0xff, {vBAD}")
    poll("h2", h2_loads, h2_checks)
    stamp(5)
    swapred2(T[0], T[4])
    a(f"v_cvt_pk_bf16_f32 {v(T[0])}, {v(T[0])}, {v(T[4])}")
    a(f"ds_write_b16 {vQW}, {v(T[0])}")
    a(f"ds_write_b16_d16_hi {vQW}, {v(T[0])} offset:128")
    barrier()
    for s_ in range(4):
        a(f"ds_read_b128 {vr(QF + 4 * s_, 4)}, {vQA} offset:{64 * s_}")
    tSC.issue(cfg.p3a)
    tGU.issue(cfg.p3a - 4)
    for s_ in range(4):
        a(f"s_waitcnt lgkmcnt({3 - s_})")
        c = "0" if s_ == 0 else vr(D0, 4)
        a(f"v_mfma_f32_16x16x32_bf16 {vr(D0, 4)}, {vr(KF + 4 * s_, 4)}, {vr(QF + 4 * s_, 4)}, {c}")
    a(f"v_cvt_pk_bf16_f32 {v(T[0])}, {v(D0)}, {v(D0 + 1)}")
    a(f"v_cvt_pk_bf16_f32 {v(T[2])}, {v(D0 + 2)}, {v(D0 + 3)}")
    for p in (0, 2):
        a(f"v_and_b32 {v(T[p + 1])}, 0xffff0000, {v(T[p])}")
        a(f"v_lshlrev_b32 {v(T[p])}, 16, {v(T[p])}")
    for r in range(4):
        a(f"v_mul_f32 {v(T[r])}, {SCALE}, {v(T[r])}")
    a(f"v_cvt_pk_bf16_f32 {v(T[0])}, {v(T[0])}, {v(T[1])}")
    a(f"v_cvt_pk_bf16_f32 {v(T[2])}, {v(T[2])}, {v(T[3])}")
    for p in (0, 2):
        a(f"v_and_b32 {v(T[p + 1])}, 0xffff0000, {v(T[p])}")
        a(f"v_lshlrev_b32 {v(T[p])}, 16, {v(T[p])}")
    a(f"v_max3_f32 {v(T[4])}, {v(T[0])}, {v(T[1])}, {v(T[2])}")
    a(f"v_max_f32 {v(T[4])}, {v(T[4])}, {v(T[3])}")
    rowsum(v(T[4]), v(T[5]), "max")
    a("s_mov_b64 exec, 0xff")
    a(f"ds_write_b32 {vWMw}, {v(T[4])}")
    a("s_mov_b64 exec, -1")
    barrier()
    a(f"ds_read_b128 {vr(T[12], 4)}, {vWMr}")
    a(f"ds_read_b128 {vr(T[16], 4)}, {vWMr} offset:16")
    if cfg.early & 4:
        signal_w(F_H3)
    a("s_waitcnt lgkmcnt(0)")
    a(f"v_max3_f32 {v(T[4])}, {v(T[12])}, {v(T[13])}, {v(T[14])}")
    a(f"v_max3_f32 {v(T[5])}, {v(T[15])}, {v(T[16])}, {v(T[17])}")
    a(f"v_max3_f32 {v(T[4])}, {v(T[4])}, {v(T[18])}, {v(T[19])}")
    a(f"v_max_f32 {v(T[4])}, {v(T[4])}, {v(T[5])}")
    for r in range(4):
        a(f"v_sub_f32 {v(T[r])}, {v(T[r])}, {v(T[4])}")
    for r in range(4):
        a(f"v_mul_f32 {v(T[r])}, {t1}, {v(T[r])}")
    for r in range(4):
        a(f"v_exp_f32 {v(T[r])}, {v(T[r])}")
    a(f"v_cvt_pk_bf16_f32 {v(T[6])}, {v(T[0])}, {v(T[1])}")
    a(f"v_cvt_pk_bf16_f32 {v(T[7])}, {v(T[2])}, {v(T[3])}")
    mask_n8()
    a(f"ds_write_b64 {vPW}, {vr(T[6], 2)}")
    a("s_mov_b64 exec, -1")
    a(f"v_or_b32 {v(T[4])}, {sT16}, {v(T[4])}")
    barrier()
    for s_ in range(4):
        a(f"ds_read_b128 {vr(QF + 4 * s_, 4)}, {vQA} offset:{L_PS - L_QS + 64 * s_}")
    if cfg.early & 2:
        signal_w(F_H3)
    for s_ in range(4):
        a(f"s_waitcnt lgkmcnt({3 - s_})")
        c = "0" if s_ == 0 else vr(D0, 4)
        a(f"v_mfma_f32_16x16x32_bf16 {vr(D0, 4)}, {vr(VF + 4 * s_, 4)}, {vr(QF + 4 * s_, 4)}, {c}")
        c = "0" if s_ == 0 else vr(D1, 4)
        a(f"v_mfma_f32_16x16x32_bf16 {vr(D1, 4)}, {vr(A0, 4)}, {vr(QF + 4 * s_, 4)}, {c}")
    for d in range(4):
        a(f"v_bfi_b32 {v(D0 + d)}, {vFF}, {sT[d]}, {v(D0 + d)}")
    a(f"v_bfi_b32 {v(T[5])}, {vFF}, {sT[0]}, {v(D1)}")
    mask_n8()
    a(f"buffer_store_dwordx4 {vr(D0, 4)}, {vOA}, {WS}, s66 offen sc1")
    a("s_mov_b64 exec, 0xff")
    a(f"buffer_store_dwordx2 {vr(T[4], 2)}, {vMLA}, {WS}, s67 offen sc1")
    a("s_mov_b64 exec, -1")
    if not cfg.early & 6:
        signal_w(F_H3, 0)
    a("s_barrier")
    stamp(6)
    a.c("======== P: sb/cb tile, gate/up tile, w_down tile")
    tSC.issue(cap=cfg.capP3)
    tGU.issue(3, cap=cfg.capP3)
    vm_wait("sc")
    gemv_regs(D0, W0 + 16, vXA)
    red_write_A(D0, L_RED1)
    barrier()
    a(f"s_lshl_b32 {t4}, {sCS}, 9")
    a(f"s_add_u32 {t4}, {t4}, {sMODK}")
    a(f"s_add_u32 {t4}, {t4}, {3072 * 4}")
    finalize_A(L_RED1, t4, w0=2)
    tGU.issue(cap=cfg.capP3)
    tWD.issue(cfg.p7a, cap=cfg.capP3)
    stage6(W1, L_RED0, ok=lambda: tWD.issue(cfg.p7b), gated=True)
    a("s_barrier")
    tWD.issue()
    va = v(T[24])
    a(f"v_mul_u32_u24 {va}, 3584, {vG}")
    a(f"v_bfe_u32 {v(T[25])}, {vL}, 3, 1")
    a(f"v_mul_u32_u24 {v(T[25])}, 1792, {v(T[25])}")
    a(f"v_add_u32 {va}, {va}, {v(T[25])}")
    a(f"v_and_b32 {v(T[25])}, 7, {vL}")
    a(f"v_min_u32 {v(T[25])}, 6, {v(T[25])}")
    a(f"v_lshl_add_u32 {va}, {v(T[25])}, 4, {va}")
    stamp(11)

    def h5_loads():
        a(f"buffer_load_dwordx4 {vr(T[0], 4)}, {va}, {WS}, {pH5} offen sc1")

    def one_checks():
        clean(g4([T[0]]))
        a(f"v_and_b32 {vBAD}, 0xff, {vBAD}")
    poll("h5", h5_loads, one_checks, back=cfg.lback)
    stamp(12)
    swapred(T[0])
    rnd(v(T[0]), v(T[0]))
    silu(v(T[2]), v(T[0]), v(T[3]))
    rnd(v(T[2]), v(T[2]))
    a(f"v_mul_f32_dpp {v(T[2])}, {v(T[0])}, {v(T[2])} row_ror:8{DPP}")
    a(f"v_cvt_pk_bf16_f32 {vX}, {v(T[2])}, {v(T[2])}")
    gemv_bcast(D0, W2, 7)
    far_A(sO6)
    red_write_A(D0, L_RED1)
    barrier()
    finalize_A(L_RED1, pH6)
    stamp(13)
    a.c("======== P: final reduction on gi < 32, wave 0")
    a(f"s_cmp_lt_u32 {sGI}, 32")
    a("s_cbranch_scc0 L_fin")
    a(f"s_cmp_eq_u32 {sW}, 0")
    a("s_cbranch_scc0 L_fin")
    va = v(T[24])
    a(f"v_lshrrev_b32 {v(T[27])}, 3, {vL}")
    a(f"v_and_b32 {v(T[28])}, 7, {vL}")
    a(f"v_lshlrev_b32 {v(T[28])}, 4, {v(T[28])}")
    a(f"v_lshl_add_u32 {va}, {v(T[27])}, 12, {v(T[28])}")
    a(f"s_lshl_b32 {t3}, {sGI}, 7")
    a(f"s_add_u32 {t0}, {t3}, {H6}")
    a(f"s_add_u32 {t1}, {t0}, 32768")
    a(f"s_add_u32 {t2}, {t3}, {MODP + 5120 * 4}")
    a(f"s_lshl_b32 {t3}, {sGI}, 8")
    a(f"s_lshl_b32 {t4}, {sKS}, 13")
    a(f"s_add_u32 {t3}, {t3}, {t4}")
    a(f"s_add_u32 {t3}, {t3}, {XR}")
    a(f"s_add_u32 {t3}, {t3}, {sLG}")
    srd(SA, P_OUT, 2048)
    a(f"v_lshrrev_b32 {v(T[26])}, 1, {vQE4}")
    a(f"s_lshl_b32 {t4}, {sGI}, 6")
    if not cfg.early & 64:
        a("s_waitcnt vmcnt(0)")

    def h6_loads():
        a(f"buffer_load_dwordx4 {vr(T[0], 4)}, {va}, {WS}, {t0} offen sc1")
        a(f"buffer_load_dwordx4 {vr(T[4], 4)}, {va}, {WS}, {t1} offen sc1")
        a(f"buffer_load_dwordx4 {vr(T[8], 4)}, {vOB}, {WS}, {t2} offen sc1")
        a(f"buffer_load_dword {v(T[12])}, {vQE4}, {WS}, {t3} offen sc1")

    def h6_checks():
        clean(g4([T[0], T[4], T[8]]) + [(T[12], vTE)])
        a(f"v_and_b32 {vBAD}, 0xff, {vBAD}")
    poll("h6", h6_loads, h6_checks)
    for d in range(4):
        a(f"v_add_f32 {v(T[d])}, {v(T[d])}, {v(T[4 + d])}")
    swapred2(T[0], T[8])
    a(f"v_add_f32_dpp {v(T[0])}, {v(T[0])}, {v(T[0])} row_ror:8{DPP}")
    a(f"v_add_f32_dpp {v(T[8])}, {v(T[8])}, {v(T[8])} row_ror:8{DPP}")
    rnd(v(T[0]), v(T[0]))
    rnd(v(T[8]), v(T[8]))
    a(f"v_mul_f32 {v(T[0])}, {v(T[0])}, {v(T[8])}")
    rnd(v(T[0]), v(T[0]))
    a(f"v_add_f32 {v(T[0])}, {v(T[0])}, {v(T[12])}")
    a(f"v_cvt_pk_bf16_f32 {v(T[0])}, {v(T[0])}, {v(T[0])}")
    mask_n8()
    a(f"buffer_store_short {v(T[0])}, {v(T[26])}, {SA}, {t4} offen")
    a("s_mov_b64 exec, -1")
    stamp(14)
    a(f"s_cmp_eq_u32 {sGI}, 0")
    a("s_cbranch_scc0 L_fin")
    a("s_mov_b64 exec, 1")
    a(f"buffer_store_dword {vT32}, {vL4}, {WS}, 0 offen offset:{EPOCH}")
    a("s_mov_b64 exec, -1")
    if cfg.amp:
        a("s_memrealtime s[60:61]")
        a("s_waitcnt lgkmcnt(0)")
        a("s_sub_u32 s62, s60, s100")
        a(f"s_mul_i32 s62, s62, {cfg.amp}")
        a.label("L_amp")
        a("s_memrealtime s[64:65]")
        a("s_waitcnt lgkmcnt(0)")
        a("s_sub_u32 s63, s64, s60")
        a("s_cmp_lt_u32 s63, s62")
        a("s_cbranch_scc1 L_amp")
    a("s_branch L_fin")

    a.label("L_Q_pre")
    a(f"s_and_b32 {t0}, {sGI}, 3")
    a(f"s_lshl_b32 s66, {t0}, 8")
    a(f"s_lshl_b32 {t1}, {sW}, 5")
    a(f"s_add_u32 s66, s66, {t1}")
    a(f"s_lshr_b32 {t1}, {sGI}, 2")
    a(f"s_lshl_b32 {t1}, {t1}, 8")
    a(f"s_lshl_b32 {t0}, s66, 13")
    a(f"s_add_u32 {t0}, {t0}, {t1}")
    tWQ = Tile("wq", SA, W0, 8, vA1, 4 * 8192)
    tWQ.addr(t0, 8192)
    a("s_mov_b32 s42, 8388608")
    a("s_mov_b32 s43, 0x00020000")
    a("s_waitcnt lgkmcnt(0)")
    a(f"s_mov_b32 s40, s{P_WQ}")
    a(f"s_mov_b32 s41, s{P_WQ + 1}")
    a(f"s_mov_b32 s44, s{P_X}")
    a(f"s_mov_b32 s45, s{P_X + 1}")
    VM.q = []
    a(f"buffer_load_dwordx4 {vr(T[12], 4)}, {v(T[8])}, {SB}, 0 offen")
    a(f"buffer_load_dwordx4 {vr(T[16], 4)}, {v(T[8])}, {SB}, 0 offen offset:16")
    a(f"s_lshl_b32 {t1}, s66, 1")
    a(f"buffer_load_ushort {v(T[20])}, {v(T[9])}, {SB}, {t1} offen")
    a(f"s_and_b32 {qR}, {sCS}, 3")
    a(f"s_lshl_b32 {qR}, {qR}, 3")
    a(f"s_add_u32 {qR}, {qR}, {sW}")
    a(f"s_lshl_b32 {t1}, {qR}, 6")
    a(f"buffer_load_ushort {vXR}, {v(T[9])}, {SB}, {t1} offen")
    a(f"s_mov_b32 s44, s{P_C}")
    a(f"s_mov_b32 s45, s{P_C + 1}")
    a(f"buffer_load_dword {v(T[4])}, {v(T[2])}, {SB}, {t2} offen")
    vm_add("c")
    tWQ.issue(cfg.qA)
    a(f"s_mov_b32 s4, s{P_WM}")
    a(f"s_mov_b32 s5, s{P_WM + 1}")
    VMQ = list(VM.q)
    common()
    a.c("======== Q: layernorm of x, silu(c)")
    VM.q = VMQ
    vm_wait("c")
    stamp(1)
    tWQ.issue()
    silu_c(False)
    XU = W3
    for i in range(8):
        a(f"v_lshlrev_b32 {v(XU + 2 * i)}, 16, {v(T[12 + i])}")
        a(f"v_and_b32 {v(XU + 2 * i + 1)}, 0xffff0000, {v(T[12 + i])}")
    a(f"v_lshlrev_b32 {v(T[20])}, 16, {v(T[20])}")
    a(f"v_add_f32 {v(T[0])}, {v(XU)}, {v(XU + 1)}")
    for i in range(2, 16):
        a(f"v_add_f32 {v(T[0])}, {v(T[0])}, {v(XU + i)}")
    allsum(v(T[0]), v(T[1]))
    a(f"v_mul_f32 {v(T[0])}, 0x3a800000, {v(T[0])}")
    a(f"v_mov_b32 {v(T[2])}, 0")
    for i in range(16):
        a(f"v_sub_f32 {v(XU + i)}, {v(XU + i)}, {v(T[0])}")
        a(f"v_fmac_f32 {v(T[2])}, {v(XU + i)}, {v(XU + i)}")
    allsum(v(T[2]), v(T[1]))
    a(f"v_mul_f32 {v(T[2])}, 0x3a800000, {v(T[2])}")
    ln_finish(v(T[20]), v(T[0]), v(T[2]), v(T[1]))
    a.c("======== Q: S2")
    tGA = tileB("ga", W3, vA3, 4096)
    tGB = tileB("gb", W3 + 8, vA4, 10240)
    a(f"s_min_u32 {t4}, {sCS}, 11")
    a(f"s_add_u32 {t4}, {t4}, 16")
    tGQ = tile6(W2)
    a(f"s_lshl_b32 {qXR}, {sKS}, 13")
    a(f"s_lshl_b32 {t3}, {qR}, 8")
    a(f"s_add_u32 {qXR}, {qXR}, {t3}")
    a(f"s_add_u32 {qXR}, {qXR}, {XR}")
    xr_items = [("buffer_store_dword", v(T[1]), vQE4, qXR, 0, M_N8),
                ("buffer_store_dwordx4", vr(T[20], 4), vL4, qXR, 128, 1)]
    lr = a.newlabel("pdr")
    lj = a.newlabel("pdj")
    a(f"s_cmp_ge_u32 {sCS}, 12")
    a(f"s_cbranch_scc1 {lr}")
    predirty_A(sO6)
    a(f"s_branch {lj}")
    a.label(lr)
    a(f"v_not_b32 {v(T[1])}, {vTE}")
    for d in range(4):
        a(f"v_not_b32 {v(T[20 + d])}, {sT32}")
    predirty(xr_items)
    a.label(lj)

    a(f"s_lshl_b32 {t0}, s66, 2")
    a(f"s_add_u32 {t0}, {t0}, {MODP}")
    a(f"s_add_u32 {t1}, {t0}, {4 * 24576}")
    a(f"s_and_b32 {t4}, {sGI}, 3")
    a(f"s_lshl_b32 {t4}, {t4}, 14")
    a(f"s_lshr_b32 {t3}, {sGI}, 2")
    a(f"s_lshl_b32 {t3}, {t3}, 9")
    a(f"s_add_u32 {t4}, {t4}, {t3}")
    a(f"s_add_u32 {t4}, {t4}, {H2}")
    srd(SA, P_WO, 8388608)
    a(f"s_and_b32 s66, {sGI}, 31")
    a(f"s_lshr_b32 s67, {sGI}, 5")
    a(f"s_lshr_b32 {t3}, s66, 3")
    a(f"s_lshl_b32 {t2}, {t3}, 10")
    a(f"s_and_b32 {t3}, s66, 7")
    a(f"s_lshl_b32 {t3}, {t3}, 4")
    a(f"s_add_u32 {t2}, {t2}, {t3}")
    a(f"s_and_b32 {t3}, {sW}, 3")
    a(f"s_lshl_b32 {t3}, {t3}, 2")
    a(f"s_add_u32 {t2}, {t2}, {t3}")
    a(f"s_lshl_b32 {t2}, {t2}, 11")
    a(f"s_lshl_b32 {t3}, s67, 9")
    a(f"s_add_u32 {t2}, {t2}, {t3}")
    a(f"s_lshr_b32 {t3}, {sW}, 2")
    a(f"s_lshl_b32 {t3}, {t3}, 8")
    a(f"s_add_u32 {t2}, {t2}, {t3}")
    tWO = Tile("wo", SA, W1, 8, vA2, 128 * 2048)
    tWO.addr(t2, 2048)
    vm_wait()
    stamp(3)
    gate(F_H1)
    stamp(2)

    def h1_loads():
        a(f"buffer_load_dwordx4 {vr(T[0], 4)}, {vMP}, {WS}, {t0} offen sc1")
        a(f"buffer_load_dwordx4 {vr(T[4], 4)}, {vMP}, {WS}, {t1} offen sc1")
    poll("h1", h1_loads, h2_checks)
    stamp(4)
    tWO.issue(cfg.q2a)
    pair_sum()
    mod_prep()
    modulate()
    if cfg.early & 1:
        signal_w(F_H2)
    gemv_bcast(D0, W0, 8)
    red_write_A(D0, L_RED1)
    barrier()
    if cfg.early & 128:
        signal_w(F_H2)
    finalize_A(L_RED1, t4, sig=None if cfg.early & 129 else F_H2)
    a("s_barrier")
    stamp(5)
    a.c("======== Q: wo tile + gb tile")
    tGA.issue(cap=cfg.capQ2)
    tWO.issue(cap=cfg.capQ2)
    tGQ.issue(cfg.q6a, cap=cfg.capQ2)
    a(f"s_and_b32 {t1}, {sW}, 3")
    a(f"s_lshl_b32 {t1}, {t1}, 8")
    a(f"s_add_u32 {t1}, {t1}, {L_XL}")
    a(f"v_add_u32 {v(T[33])}, {t1}, {vL4}")
    va, vb = v(T[31]), v(T[32])
    a(f"v_lshrrev_b32 {v(T[28])}, 3, {vL}")
    a(f"v_and_b32 {v(T[29])}, 7, {vL}")
    a(f"v_lshlrev_b32 {va}, 11, {v(T[28])}")
    a(f"v_lshl_add_u32 {va}, {v(T[29])}, 4, {va}")
    a(f"v_lshlrev_b32 {vb}, 8, {v(T[28])}")
    a(f"v_lshl_add_u32 {vb}, {v(T[29])}, 3, {vb}")
    a(f"s_lshl_b32 {t2}, s66, 14")
    a(f"s_lshl_b32 {t1}, {sW}, 7")
    a(f"s_add_u32 {t2}, {t2}, {t1}")
    a(f"s_add_u32 {t2}, {t2}, {H3O}")
    a(f"s_lshl_b32 {t3}, s66, 11")
    a(f"s_add_u32 {t3}, {t3}, {H3ML}")
    a(f"s_lshl_b32 {t0}, {sW2}, 11")
    a(f"v_add_u32 {v(T[34])}, {t0}, {vFA}")
    a(f"s_lshl_b32 s59, s66, 12")
    a(f"s_lshl_b32 {t1}, s67, 10")
    a(f"s_add_u32 s59, s59, {t1}")
    a(f"s_lshl_b32 {t1}, {sW}, 8")
    a(f"s_add_u32 s59, s59, {t1}")
    a(f"s_add_u32 s59, s59, {H4}")
    vm_wait("ga")
    gemv_regs(D0, W3, vXB)
    red_write_B(D0, L_RED0 + 4096)
    barrier()
    a(f"s_lshl_b32 {t4}, {sCS}, 8")
    a(f"s_add_u32 {t4}, {t4}, 8192")
    finalize_B(4, L_RED0 + 4096, t4)
    a(f"s_mov_b32 {t1}, {LOG2E}")
    vm_wait()
    stamp(6)
    gate(F_H3)
    stamp(11)
    a(f"s_cmp_lt_u32 {sW}, 4")
    a("s_cbranch_scc0 L_s4_wait")

    def h3_loads():
        for i in range(4):
            a(f"buffer_load_dwordx2 {vr(T[16 + 2 * i], 2)}, {vb}, {WS}, {t3} offen offset:{64 * i} sc1")
        for i in range(4):
            a(f"buffer_load_dwordx4 {vr(T[4 * i], 4)}, {va}, {WS}, {t2} offen offset:{512 * i} sc1")

    def h3_checks():
        clean(g4([T[0], T[4], T[8], T[12]]) + [(T[17 + 2 * i], sT[0]) for i in range(4)])
        a(f"v_and_b32 {v(T[24])}, 0xff, {vBAD}")
        clean([(T[16 + 2 * i], sT16) for i in range(4)])
        a(f"v_and_b32 {vBAD}, 0xffff, {vBAD}")
        a(f"v_or_b32 {vBAD}, {vBAD}, {v(T[24])}")
    poll("h3", h3_loads, h3_checks)
    stamp(12)
    a(f"v_max3_f32 {v(T[24])}, {v(T[16])}, {v(T[18])}, {v(T[20])}")
    a(f"v_max_f32 {v(T[24])}, {v(T[24])}, {v(T[22])}")
    a(f"v_max_f32_dpp {v(T[24])}, {v(T[24])}, {v(T[24])} row_ror:8{DPP}")
    rowsum(v(T[24]), v(T[25]), "max")
    for i in range(4):
        a(f"v_sub_f32 {v(T[16 + 2 * i])}, {v(T[16 + 2 * i])}, {v(T[24])}")
    for i in range(4):
        a(f"v_mul_f32 {v(T[16 + 2 * i])}, {t1}, {v(T[16 + 2 * i])}")
    for i in range(4):
        a(f"v_exp_f32 {v(T[16 + 2 * i])}, {v(T[16 + 2 * i])}")
    a(f"v_mul_f32 {v(T[24])}, {v(T[16])}, {v(T[17])}")
    for i in range(1, 4):
        a(f"v_fmac_f32 {v(T[24])}, {v(T[16 + 2 * i])}, {v(T[17 + 2 * i])}")
    for d in range(4):
        a(f"v_mul_f32 {v(T[d])}, {v(T[16])}, {v(T[d])}")
    a(f"v_add_f32_dpp {v(T[24])}, {v(T[24])}, {v(T[24])} row_ror:8{DPP}")
    for i in range(1, 4):
        for d in range(4):
            a(f"v_fmac_f32 {v(T[d])}, {v(T[16 + 2 * i])}, {v(T[4 * i + d])}")
    rowsum(v(T[24]), v(T[25]), "add")
    a(f"v_rcp_f32 {v(T[24])}, {v(T[24])}")
    col32_reduce(T[0])
    a(f"v_mul_f32 {v(T[0])}, {v(T[0])}, {v(T[24])}")
    a(f"v_cvt_pk_bf16_f32 {vX}, {v(T[0])}, {v(T[0])}")
    a(f"ds_write_b32 {v(T[33])}, {vX}")
    a.label("L_s4_wait")
    barrier()
    a(f"ds_read_b32 {vX}, {v(T[33])}")
    if cfg.q6b > cfg.q6a:
        sk = a.newlabel("nr")
        a(f"s_cmp_ge_u32 {sGI}, 96")
        a(f"s_cbranch_scc1 {sk}")
        tGQ.issue(cfg.q6b)
        a.label(sk)
    a("s_waitcnt lgkmcnt(0)")
    gemv_bcast(D0, W1, 8)
    red_write_A(D0, L_RED0)
    barrier()
    sk = a.newlabel("f4")
    a(f"s_cmp_lt_u32 {sW}, 4")
    a(f"s_cbranch_scc0 {sk}")
    finalize(v(T[34]), [0, 2, 4, 6], "s59")
    a.label(sk)
    stamp(13)
    a(f"s_cmp_ge_u32 {sGI}, 96")
    a("s_cbranch_scc1 L_R")
    a("s_barrier")
    a.c("======== Q: gate/up tile")
    tGQ.issue(cap=cfg.capQ6)
    stage6(W2, L_RED1, ok=(lambda: tGB.issue()) if cfg.gbe else None)
    a("s_branch L_gb2" if cfg.gbe else "s_branch L_gb")
    a.label("L_R")
    a.c("======== R: x1 slices")
    va = v(T[24])
    a(f"v_lshrrev_b32 {v(T[27])}, 3, {vL}")
    a(f"v_and_b32 {v(T[28])}, 7, {vL}")
    a(f"v_lshlrev_b32 {v(T[28])}, 4, {v(T[28])}")
    a(f"v_lshl_add_u32 {va}, {v(T[27])}, 12, {v(T[28])}")
    a(f"s_lshl_b32 {t5}, {qR}, 7")
    a(f"s_add_u32 {t0}, {t5}, {H4}")
    a(f"s_add_u32 {t1}, {t0}, 32768")
    a(f"s_add_u32 {t2}, {t0}, 65536")
    a(f"s_add_u32 {t3}, {t0}, 98304")
    a(f"s_add_u32 {t4}, {t5}, {MODP + 2048 * 4}")
    a(f"v_lshlrev_b32 {vXR}, 16, {vXR}")
    a(f"v_mov_b32 {v(T[21])}, {sT32}")
    a(f"v_mov_b32 {v(T[23])}, {sT32}")
    a("s_waitcnt vmcnt(0)")
    a("s_barrier")

    def h4_loads():
        for i, s_ in enumerate((t0, t1, t2, t3)):
            a(f"buffer_load_dwordx4 {vr(T[4 * i], 4)}, {va}, {WS}, {s_} offen sc1")
        a(f"buffer_load_dwordx4 {vr(T[16], 4)}, {vOB}, {WS}, {t4} offen sc1")

    def h4_checks():
        clean(g4([T[0], T[4], T[8], T[12], T[16]]))
        a(f"v_and_b32 {vBAD}, 0xff, {vBAD}")
    poll("h4", h4_loads, h4_checks)
    stamp(8)
    for d in range(4):
        a(f"v_add_f32 {v(T[d])}, {v(T[d])}, {v(T[4 + d])}")
        a(f"v_add_f32 {v(T[8 + d])}, {v(T[8 + d])}, {v(T[12 + d])}")
    for d in range(4):
        a(f"v_add_f32 {v(T[d])}, {v(T[d])}, {v(T[8 + d])}")
    swapred2(T[0], T[16])
    a(f"v_add_f32_dpp {v(T[0])}, {v(T[0])}, {v(T[0])} row_ror:8{DPP}")
    a(f"v_add_f32_dpp {v(T[16])}, {v(T[16])}, {v(T[16])} row_ror:8{DPP}")
    rnd(v(T[0]), v(T[0]))
    rnd(v(T[16]), v(T[16]))
    a(f"v_mul_f32 {v(T[0])}, {v(T[0])}, {v(T[16])}")
    rnd(v(T[0]), v(T[0]))
    a(f"v_add_f32 {v(T[0])}, {v(T[0])}, {vXR}")
    rnd(v(T[0]), v(T[0]))
    a(f"v_or_b32 {v(T[1])}, {vTE}, {v(T[0])}")
    a(f"v_mov_b32 {v(T[20])}, {v(T[0])}")
    allsum(v(T[20]), v(T[2]))
    a(f"v_mul_f32 {v(T[20])}, 0x3c800000, {v(T[20])}")
    a(f"v_sub_f32 {v(T[22])}, {v(T[0])}, {v(T[20])}")
    a(f"v_mul_f32 {v(T[22])}, {v(T[22])}, {v(T[22])}")
    allsum(v(T[22]), v(T[2]))
    a(f"v_mul_f32 {v(T[22])}, 0.5, {v(T[22])}")
    store2(xr_items)
    stamp(9)
    a.label("L_gb")
    a("s_barrier")
    tGB.next = 0
    tGB.issue()
    a.label("L_gb2")
    a(f"s_lshl_b32 {t4}, {sCS}, 8")
    a(f"s_add_u32 {t4}, {t4}, 20480")
    a("s_waitcnt vmcnt(0)")
    gemv_regs(D0, W3 + 8, vXB)
    red_write_B(D0, L_RED0 + 4096)
    barrier()
    finalize_B(0, L_RED0 + 4096, t4)
    stamp(14)
    a.label("L_fin")
    write_stamps()
    a.label("L_end")
    a("s_endpgm")

    hdr = open("cdna_kernels/" + NAME + ".s.ref").read().split("; @launch")[0]
    out = hdr
    out += f"; @launch grid=(256,1,1) block=(512,1,1) lds={LDS_BYTES}\n"
    out += '.amdgcn_target "amdgcn-amd-amdhsa--gfx950"\n.text\n'
    out += f".globl {NAME}_kernel\n.p2align 8\n.type {NAME}_kernel,@function\n"
    out += a.text()
    out += f""".section .rodata,"a"
.p2align 6
.amdhsa_kernel {NAME}_kernel
  .amdhsa_next_free_vgpr 256
  .amdhsa_next_free_sgpr 102
  .amdhsa_accum_offset 256
  .amdhsa_group_segment_fixed_size 0
  .amdhsa_kernarg_size 112
  .amdhsa_user_sgpr_count 2
  .amdhsa_user_sgpr_kernarg_segment_ptr 1
  .amdhsa_system_sgpr_workgroup_id_x 1
.end_amdhsa_kernel
"""
    if cfg.nomem:
        for n in (12582912, 8388608, 7340032, 67108864):
            out = out.replace(f", {n}\n", ", 0\n")
    return out, a.ninstr


if __name__ == "__main__":
    cfg = Cfg()
    outp = sys.argv[1]
    for kv in sys.argv[2:]:
        k, val = kv.split("=")
        setattr(cfg, k, type(getattr(cfg, k))(int(val)))
    txt, n = gen(cfg)
    open(outp, "w").write(txt)
    print("wrote", outp, n, "instructions")
```

```python
import sys
from asmlib import Asm

NAME = "adaLN_cond__sliding_block_cached__swiglu_ffn__decode"

EPOCH = 0
MODN = 0x1000
XR = 0x31000
H5 = 0x41000
GOFF = 0xB0000
MODP = MODN + GOFF
H2 = 0x161000
H3O = 0x181000
H3ML = 0x201000
H4 = 0x211000
H6 = 0x231000
FLG = 0x241000
STAMP = 0x251000
WS_USED = 0x260000
F_H2, F_H3 = 0, 1

L_K = 0
L_V = 32768
L_RED0 = 65536
L_RED1 = L_RED0 + 8192
L_QS = L_RED1 + 4096
L_PS = L_QS + 8 * 272
L_WM = L_PS + 8 * 272
L_XL = L_WM + 256
LDS_BYTES = L_XL + 1024

TAGK = 0x9D6B5A37
LOG2E = 0x3FB8AA3B
SCALE = 0x3DB504F3
EPS = 0x3727C5AC


PN = ["", "h1", "h2", "h3", "h4", "h5", "h6", "h5a", "sbcb"]


class Cfg:
    nt = True
    stamps = False
    amp = 0
    backoff = 0
    mback = 16
    mask = 1
    pre = 0
    g2 = 1
    g3 = 1
    qbar = 1
    sw = 0
    prep = 0
    cnt = 0
    lback = 2
    far = 0
    predirty = 0
    qA = 8
    capP3 = 5
    capN = 16
    capP4 = 0
    capQ2 = 0
    early = 0
    nomem = 0
    kv0 = 0
    kv1 = 2
    p3a = 4
    p3b = 3
    q2a = 0
    q7a = 0
    q7b = 0
    q7c = 0
    gbe = 1


def gen(cfg):
    a = Asm()
    NT = " nt" if cfg.nt else ""
    PRE = ["", " sc1", " nt"][cfg.prep]
    P_X, P_K, P_V, P_WQ, P_WO, P_BX, P_WG, P_WU = 8, 10, 12, 14, 16, 18, 20, 22
    P_WD, P_C, P_WM, P_OUT, P_DBG, P_WS = 24, 26, 28, 30, 32, 34
    WS = "s[36:39]"
    SA = "s[40:43]"
    SB = "s[44:47]"
    SM = "s[4:7]"
    sLG, tG = "s0", "s1"
    pMC = "s14"
    qXR, qR, pH5, pH6 = "s10", "s11", "s12", "s13"
    sW, sGI, sKS, sCS = "s48", "s49", "s50", "s51"
    sT = ["s52", "s53", "s54", "s55"]
    sT32, sT16 = "s56", "s57"
    sMROW = "s58"
    t0, t1, t2, t3, t4, t5 = "s60", "s61", "s62", "s63", "s64", "s65"
    sSPIN = "s70"
    sO6, sR6 = "s18", "s19"
    sKVL, sKVO = "s59", "s8"
    sFA, sW2, sMODK = "s3", "s32", "s33"
    vL, vN, vG = "v1", "v2", "v3"
    vM = ["v4", "v5", "v6", "v7"]
    vFF, vTL, vTE = "v8", "v9", "v10"
    vOB = "v11"
    vRW = "v12"
    vRB = "v13"
    vL4 = "v14"
    vXB = ["v15", "v16"]
    vXA = ["v17", "v18", "v19", "v20"]
    vBAD = "v21"
    vX = "v22"
    vLN = "v23"
    vT32 = "v0"
    A0, A1 = 24, 28
    D0, D1 = 32, 36
    T = list(range(40, 76))
    vXR, vONE, vFA, vMP = "v76", "v77", "v78", "v79"
    F0 = 80
    vQE4 = "v96"
    vA1, GU, vA4 = "v97", 98, "v100"
    vA2, vA3, vSH, vSC = "v252", "v253", "v254", "v255"
    vKV = [101, 102, 103, 104, 105, 106]
    vSTA = "v107"
    W0, W1, W2, W3 = 108, 140, 172, 204

    def v(i):
        return f"v{i}"

    def vr(i, n):
        return f"v[{i}:{i + n - 1}]"

    def srd(dst, ptr, nbytes):
        b = int(dst[2:dst.index(":")])
        a(f"s_mov_b32 s{b}, s{ptr}")
        a(f"s_mov_b32 s{b + 1}, s{ptr + 1}")
        a(f"s_mov_b32 s{b + 2}, {nbytes}")
        a(f"s_mov_b32 s{b + 3}, 0x00020000")

    def stamp(i):
        if cfg.stamps:
            a(f"s_memrealtime s[{72 + 2 * i}:{73 + 2 * i}]")

    def rnd(dst, src):
        a(f"v_cvt_pk_bf16_f32 {dst}, {src}, {src}")
        a(f"v_and_b32 {dst}, 0xffff0000, {dst}")

    DPP = " row_mask:0xf bank_mask:0xf"

    def allsum(x, tmp, op="add"):
        o = f"v_{op}_f32"
        a(f"{o}_dpp {x}, {x}, {x} quad_perm:[1,0,3,2]{DPP}")
        a(f"{o}_dpp {x}, {x}, {x} quad_perm:[2,3,0,1]{DPP}")
        a(f"{o}_dpp {x}, {x}, {x} row_half_mirror{DPP}")
        a(f"{o}_dpp {x}, {x}, {x} row_mirror{DPP}")
        rowsum(x, tmp, op)

    def rowsum(x, tmp, op="add"):
        o = f"v_{op}_f32"
        a(f"v_mov_b32 {tmp}, {x}")
        a(f"v_permlane16_swap_b32 {x}, {tmp}")
        a(f"{o} {x}, {x}, {tmp}")
        a(f"v_mov_b32 {tmp}, {x}")
        a(f"v_permlane32_swap_b32 {x}, {tmp}")
        a(f"{o} {x}, {x}, {tmp}")

    def swapred(x):
        a(f"v_permlane32_swap_b32 {v(x)}, {v(x + 2)}")
        a(f"v_permlane32_swap_b32 {v(x + 1)}, {v(x + 3)}")
        a(f"v_add_f32 {v(x)}, {v(x)}, {v(x + 2)}")
        a(f"v_add_f32 {v(x + 1)}, {v(x + 1)}, {v(x + 3)}")
        a(f"v_permlane16_swap_b32 {v(x)}, {v(x + 1)}")
        a(f"v_add_f32 {v(x)}, {v(x)}, {v(x + 1)}")

    def swapred2(x, y):
        for z in (x, y):
            a(f"v_permlane32_swap_b32 {v(z)}, {v(z + 2)}")
            a(f"v_permlane32_swap_b32 {v(z + 1)}, {v(z + 3)}")
        for z in (x, y):
            a(f"v_add_f32 {v(z)}, {v(z)}, {v(z + 2)}")
            a(f"v_add_f32 {v(z + 1)}, {v(z + 1)}, {v(z + 3)}")
        for z in (x, y):
            a(f"v_permlane16_swap_b32 {v(z)}, {v(z + 1)}")
        for z in (x, y):
            a(f"v_add_f32 {v(z)}, {v(z)}, {v(z + 1)}")

    def silu(dst, src, tmp):
        a(f"v_mul_f32 {tmp}, 0xbfb8aa3b, {src}")
        a(f"v_exp_f32 {tmp}, {tmp}")
        a(f"v_add_f32 {tmp}, 1.0, {tmp}")
        a(f"v_rcp_f32 {tmp}, {tmp}")
        a(f"v_mul_f32 {dst}, {src}, {tmp}")

    def clean(pairs):
        for r, t in pairs:
            a(f"v_xor_b32 {v(r)}, {t}, {v(r)}")
        regs = [r for r, _ in pairs]
        if len(regs) == 1:
            a(f"v_mov_b32 {vBAD}, {v(regs[0])}")
            return
        if len(regs) % 2 == 0:
            a(f"v_or_b32 {vBAD}, {v(regs[0])}, {v(regs[1])}")
            regs = regs[2:]
        else:
            a(f"v_or3_b32 {vBAD}, {v(regs[0])}, {v(regs[1])}, {v(regs[2])}")
            regs = regs[3:]
        for i in range(0, len(regs), 2):
            a(f"v_or3_b32 {vBAD}, {vBAD}, {v(regs[i])}, {v(regs[i + 1])}")

    def g4(regs):
        return [(r + d, sT[d]) for r in regs for d in range(4)]

    def poll(name, loads, checks, back=None, after=None):
        lw = a.newlabel(name + "_w")
        ld = a.newlabel(name + "_d")
        loads()
        a("s_waitcnt vmcnt(0)")
        VM.q = []
        if name == PN[cfg.cnt]:
            stamp(1)
        if after:
            after()
        a.label(lw)
        checks()
        a(f"v_cmp_ne_u32 vcc, 0, {vBAD}")
        a(f"s_cbranch_vccz {ld}")
        msk = cfg.mask and name not in ("h5a", "h6")
        if msk:
            a("s_mov_b64 exec, vcc")
        back = cfg.backoff if back is None else back
        if back:
            a(f"s_sleep {back}")
        loads()
        if cfg.stamps and cfg.cnt in (0, PN.index(name)):
            a("s_add_u32 s71, s71, 1")
        a(f"s_sub_u32 {sSPIN}, {sSPIN}, 1")
        a("s_waitcnt vmcnt(0)")
        a(f"s_cbranch_scc0 {lw}")
        a(f"s_mov_b32 {sSPIN}, 0")
        a.label(ld)
        if msk:
            a("s_mov_b64 exec, -1")

    def gate(h):
        lp = a.newlabel("gate")
        ld = a.newlabel("gated")
        a(f"s_cmp_eq_u32 {sW}, 0")
        a(f"s_cbranch_scc0 {ld}")
        a("s_lshl_b32 s68, s2, 7")
        a(f"s_add_u32 s68, s68, {FLG + h * 32768}")
        a.label(lp)
        a(f"s_buffer_load_dword s69, {WS}, s68 glc")
        a("s_waitcnt lgkmcnt(0)")
        a(f"s_cmp_eq_u32 s69, {sT32}")
        a(f"s_cbranch_scc1 {ld}")
        a(f"s_sub_u32 {sSPIN}, {sSPIN}, 1")
        a(f"s_cbranch_scc0 {lp}")
        a(f"s_mov_b32 {sSPIN}, 0")
        a.label(ld)
        barrier()

    def signal_partner(h):
        a("s_xor_b32 s68, s2, 8")
        a("s_lshl_b32 s68, s68, 7")
        a(f"s_add_u32 s68, s68, {FLG + h * 32768}")
        a("s_mov_b64 exec, 1")
        a(f"buffer_store_dword {vT32}, {vL4}, {WS}, s68 offen sc1")
        a("s_mov_b64 exec, -1")

    def signal_w(h, wave=7):
        sk = a.newlabel("sg")
        a(f"s_cmp_eq_u32 {sW}, {wave}")
        a(f"s_cbranch_scc0 {sk}")
        signal_partner(h)
        a.label(sk)

    def setexec(m):
        if m == -1:
            a("s_mov_b64 exec, -1")
        elif m < 64:
            a(f"s_mov_b64 exec, {m}")
        else:
            a(f"s_mov_b32 exec_lo, {m & 0xffffffff:#x}")
            a(f"s_mov_b32 exec_hi, {m >> 32:#x}")

    def store2(items, defer=False):
        l1 = a.newlabel("sn")
        l2 = a.newlabel("sf")

        def emit(far, sc):
            cur = -1
            for op, data, va, so, imm, m in items:
                if m != cur:
                    setexec(m)
                    cur = m
                if far:
                    a(f"s_add_u32 {tG}, {so}, {GOFF}")
                    so = tG
                a(f"{op} {data}, {va}, {WS}, {so} offen offset:{imm}{sc}")
            if cur != -1:
                setexec(-1)
        a(f"s_cmp_eq_u32 {sLG}, 0")
        a(f"s_cbranch_scc0 {l1}")
        emit(False, "")
        if defer:
            a(f"s_branch {l2}")
        a.label(l1)
        emit(True, " sc1")
        if not defer:
            a(f"s_cmp_eq_u32 {sLG}, 0")
            a(f"s_cbranch_scc1 {l2}")
        emit(False, " sc1")
        a.label(l2)

    def far_A(soff):
        sk = a.newlabel("df")
        a(f"s_add_u32 {tG}, {soff}, {GOFF}")
        a(f"s_cmp_eq_u32 {sW2}, 0")
        a(f"s_cbranch_scc0 {sk}")
        a(f"buffer_store_dword {v(F0)}, {vL4}, {WS}, {tG} offen sc1")
        a.label(sk)

    def predirty(items):
        if not cfg.predirty:
            return
        l1 = a.newlabel("pd")
        a(f"s_cmp_eq_u32 {sLG}, 0")
        a(f"s_cbranch_scc0 {l1}")
        for op, data, va, so, imm, m in items:
            setexec(m)
            a(f"{op} {data}, {va}, {WS}, {so} offen offset:{imm}")
        setexec(-1)
        a.label(l1)

    def gemv_bcast(D, wbase, nt_):
        def prep(t):
            A = A0 if t % 2 == 0 else A1
            for d in range(4):
                a(f"v_and_b32_dpp {v(A + d)}, {vX}, {vM[d]} row_newbcast:{t}{DPP}")
        prep(0)
        for t in range(nt_):
            if t + 1 < nt_:
                prep(t + 1)
            A = A0 if t % 2 == 0 else A1
            c = "0" if t == 0 else vr(D, 4)
            a(f"v_mfma_f32_16x16x32_bf16 {vr(D, 4)}, {vr(A, 4)}, {vr(wbase + 4 * t, 4)}, {c}")

    def gemv_regs(D, wbase, xs):
        def prep(t):
            A = A0 if t % 2 == 0 else A1
            for d in range(4):
                a(f"v_and_b32 {v(A + d)}, {xs[t]}, {vM[d]}")
        prep(0)
        for t in range(len(xs)):
            if t + 1 < len(xs):
                prep(t + 1)
            A = A0 if t % 2 == 0 else A1
            c = "0" if t == 0 else vr(D, 4)
            a(f"v_mfma_f32_16x16x32_bf16 {vr(D, 4)}, {vr(A, 4)}, {vr(wbase + 4 * t, 4)}, {c}")

    def red_write_A(D, red):
        a("s_mov_b32 exec_hi, 0")
        a(f"ds_write_b128 {vRW}, {vr(D, 4)} offset:{red - L_RED0}")
        a("s_mov_b32 exec_hi, -1")

    def red_write_B(D, red):
        a("s_mov_b32 exec_lo, 0x00ff00ff")
        a("s_mov_b32 exec_hi, 0xff00ff00")
        a(f"ds_write_b128 {vRB}, {vr(D, 4)} offset:{red - L_RED0}")
        a("s_mov_b64 exec, -1")

    def finalize(vaddr, offs, soff, near=0):
        n = len(offs)
        for i in range(0, n, 2):
            a(f"ds_read2st64_b32 {vr(F0 + i, 2)}, {vaddr} offset0:{offs[i]} offset1:{offs[i + 1]}")
        a("s_waitcnt lgkmcnt(0)")
        step = 1
        while step < n:
            for i in range(0, n, 2 * step):
                a(f"v_add_f32 {v(F0 + i)}, {v(F0 + i)}, {v(F0 + i + step)}")
            step *= 2
        a(f"v_bfi_b32 {v(F0)}, {vFF}, {vTL}, {v(F0)}")
        if near:
            store2([("buffer_store_dword", v(F0), vL4, soff, 0, -1)], defer=near == 2)
        else:
            a(f"buffer_store_dword {v(F0)}, {vL4}, {WS}, {soff} offen sc1")

    def barrier():
        a("s_waitcnt lgkmcnt(0)")
        a("s_barrier")

    def finalize_A(red, sbase, w0=0, sig=None, near=0):
        sk = a.newlabel("fa")
        if not near:
            a(f"s_add_u32 {t5}, {sFA}, {sbase}")
        a(f"s_cmp_eq_u32 {sW2}, {w0 // 2}")
        a(f"s_cbranch_scc0 {sk}")
        o = (red - L_RED0) // 256
        finalize(vFA, [o + 2 * i for i in range(8)], sbase if near else t5, near)
        if sig is not None:
            a(f"s_cmp_eq_u32 {sW}, {w0}")
            a(f"s_cbranch_scc0 {sk}")
            signal_partner(sig)
        a.label(sk)

    def finalize_B(wave, red, colbytes):
        assert wave % 2 == 0
        sk = a.newlabel("fb")
        a(f"s_add_u32 {t5}, {sMODK}, {colbytes}")
        a(f"s_cmp_eq_u32 {sW}, {wave}")
        a(f"s_cbranch_scc0 {sk}")
        o = (red - L_RED0) // 256
        finalize(vFA, [o + i for i in range(16)], t5)
        a.label(sk)

    def predirty_A(soff):
        sk = a.newlabel("pa")
        a(f"s_cmp_eq_u32 {sW2}, 0")
        a(f"s_cbranch_scc0 {sk}")
        a(f"v_not_b32 {v(F0 + 8)}, {vTL}")
        predirty([("buffer_store_dword", v(F0 + 8), vL4, soff, 0, -1)])
        a.label(sk)

    def mod_prep():
        rnd(vSH, v(T[0]))
        a(f"v_add_f32_dpp {vSC}, {vSH}, {vONE} row_ror:8{DPP}")
        rnd(vSC, vSC)

    def modulate(sc=vSC):
        a(f"v_mul_f32 {v(T[1])}, {vLN}, {sc}")
        rnd(v(T[1]), v(T[1]))
        a(f"v_add_f32 {v(T[1])}, {v(T[1])}, {vSH}")
        a(f"v_cvt_pk_bf16_f32 {vX}, {v(T[1])}, {v(T[1])}")

    def ln_stats(mean, var):
        rnd(var, var)
        rnd(mean, mean)
        a(f"v_add_f32 {var}, {EPS}, {var}")
        rnd(var, var)
        a(f"v_sqrt_f32 {var}, {var}")
        rnd(var, var)
        a(f"v_rcp_f32 {var}, {var}")

    def ln_apply(xval, mean, rstd, tmp):
        a(f"v_sub_f32 {tmp}, {xval}, {mean}")
        rnd(tmp, tmp)
        a(f"v_mul_f32 {tmp}, {tmp}, {rstd}")
        rnd(vLN, tmp)

    def ln_finish(xval, mean, var, tmp):
        ln_stats(mean, var)
        ln_apply(xval, mean, var, tmp)

    class VM:
        q = []

    def vm_add(tag):
        VM.q.append(tag)

    def vm_wait(tag=None):
        if tag is None:
            n = 0
        else:
            if tag not in VM.q:
                return
            idx = max(i for i, t in enumerate(VM.q) if t == tag)
            n = len(VM.q) - 1 - idx
        a(f"s_waitcnt vmcnt({n})")
        VM.q = VM.q[len(VM.q) - n:] if n else []

    class Tile:
        def __init__(self, name, srdname, wreg, n, va, tstep):
            self.name, self.srd, self.wreg, self.n, self.va, self.tstep = name, srdname, wreg, n, va, tstep
            self.next = 0

        def addr(self, sbase, gstep):
            a(f"v_mul_u32_u24 {self.va}, {gstep}, {vG}")
            a(f"v_lshl_add_u32 {self.va}, {vN}, 4, {self.va}")
            a(f"v_add_u32 {self.va}, {sbase}, {self.va}")

        def issue(self, upto=None, cap=0):
            upto = self.n if upto is None else min(upto, self.n)
            while self.next < upto:
                t = self.next
                if cap and len(VM.q) >= cap:
                    a(f"s_waitcnt vmcnt({cap - 1})")
                    VM.q = VM.q[len(VM.q) - (cap - 1):] if cap > 1 else []
                self.load(t)
                vm_add(self.name)
                self.next += 1

        def load(self, t):
            so = "0"
            if t:
                so = "s69" if t % 2 else "s68"
                a(f"s_mov_b32 {so}, {t * self.tstep}")
            a(f"buffer_load_dwordx4 {vr(self.wreg + 4 * t, 4)}, {self.va}, {self.srd}, {so} offen{NT}")

    class TileG(Tile):
        def load(self, t):
            if cfg.nomem:
                a(f"buffer_load_dwordx4 {vr(self.wreg + 4 * t, 4)}, {vL4}, {SM}, 0 offen{NT}")
                return
            if t:
                a(f"v_add_co_u32 {v(GU)}, vcc, {4 * 7168}, {v(GU)}")
                a(f"v_addc_co_u32 {v(GU + 1)}, vcc, 0, {v(GU + 1)}, vcc")
            a(f"global_load_dwordx4 {vr(self.wreg + 4 * t, 4)}, {vr(GU, 2)}, off{NT}")

    def tileB(name, wreg, va, colbase, cs):
        tl = Tile(name, SM, wreg, 2, va, 12288)
        a(f"s_lshl_b32 {t0}, {cs}, 7")
        a(f"s_add_u32 {t0}, {t0}, {sMROW}")
        a(f"s_add_u32 {t0}, {t0}, {colbase}")
        a(f"v_add_u32 {va}, {t0}, {vOB}")
        return tl

    def tile6(wreg):
        a(f"s_max_u32 {t1}, {sW}, 1")
        a(f"s_sub_u32 {t1}, {t1}, 1")
        a(f"s_lshl_b32 {sR6}, {sCS}, 6")
        a(f"s_mul_i32 {sO6}, {sCS}, 3584")
        a(f"s_mul_i32 {t2}, {sKS}, 57344")
        a(f"s_add_u32 {sO6}, {sO6}, {t2}")
        a(f"s_add_u32 {sO6}, {sO6}, {H5}")
        a(f"s_cmp_ge_u32 {t1}, 3")
        a(f"s_cselect_b32 s69, 1, 0")
        a(f"s_cselect_b32 {t2}, 3, 0")
        a(f"s_sub_u32 {t2}, {t1}, {t2}")
        a(f"s_lshl_b32 {t2}, {t2}, 7")
        a(f"s_and_b32 {t0}, {sKS}, 1")
        a(f"s_lshl_b32 {t0}, {t0}, 6")
        a(f"s_add_u32 {t2}, {t2}, {t0}")
        a(f"s_cmp_eq_u32 {t2}, 448")
        a(f"s_cselect_b32 {t2}, 0, {t2}")
        a(f"s_add_u32 {t3}, {t2}, 64")
        a(f"s_cmp_eq_u32 {t1}, 6")
        a(f"s_cselect_b32 {t3}, {t2}, {t3}")
        a(f"s_cselect_b32 s68, 0, s69")
        a(f"s_mul_i32 {t0}, s68, 448")
        a(f"s_add_u32 {t0}, {t0}, {t2}")
        a(f"s_mul_i32 {t1}, s69, 448")
        a(f"s_add_u32 {t1}, {t1}, {t3}")
        a(f"v_mov_b32 {v(T[4])}, {t0}")
        a(f"v_mov_b32 {v(T[5])}, {t1}")
        a(f"s_mul_i32 {t0}, {sR6}, 7168")
        a(f"s_mul_i32 {t1}, {sKS}, 896")
        a(f"s_add_u32 {t0}, {t0}, {t1}")
        a(f"s_lshl_b32 {t2}, {t2}, 1")
        a(f"s_lshl_b32 {t3}, {t3}, 1")
        a(f"s_add_u32 {t2}, {t2}, {t0}")
        a(f"s_add_u32 {t3}, {t3}, {t0}")
        for sel, off, lo, hi in (("s68", t2, T[0], T[1]), ("s69", t3, T[2], T[3])):
            a(f"s_cmp_eq_u32 {sel}, 1")
            a(f"s_cselect_b32 {t0}, s{P_WU}, s{P_WG}")
            a(f"s_cselect_b32 {t1}, s{P_WU + 1}, s{P_WG + 1}")
            a(f"s_add_u32 {t0}, {t0}, {off}")
            a(f"s_addc_u32 {t1}, {t1}, 0")
            a(f"v_mov_b32 {v(lo)}, {t0}")
            a(f"v_mov_b32 {v(hi)}, {t1}")
        a(f"v_cmp_lt_u32 vcc, 7, {vN}")
        a(f"v_cndmask_b32 {v(GU)}, {v(T[0])}, {v(T[2])}, vcc")
        a(f"v_cndmask_b32 {v(GU + 1)}, {v(T[1])}, {v(T[3])}, vcc")
        a(f"v_cndmask_b32 {vA4}, {v(T[4])}, {v(T[5])}, vcc")
        a(f"v_mul_u32_u24 {v(T[0])}, {0 if cfg.nomem else 7168}, {vG}")
        a(f"v_and_b32 {v(T[1])}, 7, {vL}")
        a(f"v_lshl_add_u32 {v(T[0])}, {v(T[1])}, 4, {v(T[0])}")
        a(f"v_lshl_add_u32 {vA4}, {v(T[1])}, 3, {vA4}")
        a(f"v_lshl_add_u32 {vA4}, {vG}, 2, {vA4}")
        a(f"v_lshlrev_b32 {vA4}, 2, {vA4}")
        a(f"v_add_co_u32 {v(GU)}, vcc, {v(GU)}, {v(T[0])}")
        a(f"v_addc_co_u32 {v(GU + 1)}, vcc, 0, {v(GU + 1)}, vcc")

        return TileG("gu", None, wreg, 16, None, 0)

    def pair_sum():
        for d in range(4):
            a(f"v_add_f32 {v(T[d])}, {v(T[d])}, {v(T[4 + d])}")
        swapred(T[0])

    def pair_checks():
        clean(g4([T[0], T[4]]))
        a(f"v_and_b32 {vBAD}, 0xff, {vBAD}")

    def pair_loads():
        a(f"buffer_load_dwordx4 {vr(T[0], 4)}, {vMP}, {WS}, {t0} offen sc1")
        a(f"buffer_load_dwordx4 {vr(T[4], 4)}, {vMP}, {WS}, {t1} offen sc1")

    def not_w0(f, w0=None):
        sk = a.newlabel("nw")
        lj = a.newlabel("nj")
        a(f"s_cmp_eq_u32 {sW}, 0")
        a(f"s_cbranch_scc1 {sk}")
        f()
        if w0:
            a(f"s_branch {lj}")
        a.label(sk)
        if w0:
            w0()
            a.label(lj)

    def stage6_input():
        vs, vx, vm = v(T[27]), v(T[26]), v(T[25])
        a(f"v_and_b32 {vs}, 31, {vL}")
        a(f"v_lshlrev_b32 {vs}, 8, {vs}")
        a(f"v_bfe_u32 {vx}, {vL}, 3, 1")
        a(f"v_lshl_add_u32 {vx}, {vx}, 8, {vQE4}")
        a(f"v_mul_u32_u24 {vm}, 24576, {vG}")
        a(f"v_lshl_add_u32 {vm}, {vN}, 4, {vm}")
        a(f"s_lshl_b32 {t0}, {sR6}, 2")
        a(f"s_add_u32 {t0}, {t0}, {MODP + 3072 * 4}")
        a(f"s_add_u32 {t1}, {t0}, {4 * 24576}")
        a(f"s_add_u32 {t4}, {t0}, 4096")
        a(f"s_add_u32 {t5}, {t1}, 4096")
        a(f"s_lshl_b32 {t3}, {sKS}, 13")
        a(f"s_add_u32 {t3}, {t3}, {XR}")
        a(f"s_add_u32 {t3}, {t3}, {sLG}")
        a(f"s_lshl_b32 {t2}, {sR6}, 3")
        a(f"s_add_u32 {t2}, {t2}, {t3}")

        def mloads():
            for i, so in enumerate((t0, t4, t1, t5)):
                a(f"buffer_load_dwordx4 {vr(T[4 * i], 4)}, {vm}, {WS}, {so} offen sc1")

        def mchecks():
            clean(g4([T[0], T[4], T[8], T[12]]))
            a(f"v_and_b32 {vBAD}, 0xff, {vBAD}")
        poll("sbcb", mloads, mchecks, back=cfg.mback)
        stamp(7)
        for d in range(8):
            a(f"v_add_f32 {v(T[d])}, {v(T[d])}, {v(T[8 + d])}")
        swapred2(T[0], T[4])
        rnd(vSH, v(T[0]))
        rnd(vSC, v(T[4]))
        a(f"v_add_f32 {vSC}, 1.0, {vSC}")
        rnd(vSC, vSC)

        def loads0():
            a(f"buffer_load_dwordx4 {vr(T[12], 4)}, {vs}, {WS}, {t3} offen offset:128 sc1")
            a(f"buffer_load_dword {v(T[8])}, {vx}, {WS}, {t2} offen sc1")

        def checks0():
            a(f"v_xor_b32 {v(T[8])}, {vTE}, {v(T[8])}")
            a(f"v_and_b32 {vBAD}, 0xff, {v(T[8])}")
            a(f"v_bitop3_b32 {vBAD}, {vBAD}, {v(T[13])}, {sT32} bitop3:0xf6")
            a(f"v_bitop3_b32 {vBAD}, {vBAD}, {v(T[15])}, {sT32} bitop3:0xf6")
        poll("h5a", loads0, checks0, back=cfg.lback)
        stamp(9)
        a(f"v_mov_b32 {v(T[16])}, {v(T[12])}")
        allsum(v(T[16]), v(T[10]))
        a(f"v_mul_f32 {v(T[16])}, 0x3c800000, {v(T[16])}")
        a(f"v_sub_f32 {v(T[10])}, {v(T[12])}, {v(T[16])}")
        a(f"v_mul_f32 {v(T[10])}, {v(T[10])}, {v(T[10])}")
        a(f"v_fmac_f32 {v(T[14])}, 0x42000000, {v(T[10])}")
        allsum(v(T[14]), v(T[10]))
        a(f"v_mul_f32 {v(T[17])}, 0x3a000000, {v(T[14])}")
        ln_stats(v(T[16]), v(T[17]))
        ln_apply(v(T[8]), v(T[16]), v(T[17]), v(T[10]))
        modulate()
        a(f"ds_write_b32 {vSTA}, {vX}")

    def col32_reduce(x):
        swapred(x)
        a(f"v_add_f32_dpp {v(x)}, {v(x)}, {v(x)} row_ror:8{DPP}")

    def write_stamps():
        if not cfg.stamps:
            return
        sk = a.newlabel("st")
        a(f"s_cmp_eq_u32 {sW}, {cfg.sw}")
        a(f"s_cbranch_scc0 {sk}")
        a("s_waitcnt lgkmcnt(0)")
        a("s_mov_b64 exec, 1")
        a(f"s_lshl_b32 {t0}, s2, 6")
        a(f"s_add_u32 {t0}, {t0}, {STAMP}")
        a(f"v_mov_b32 {v(T[1])}, 0")
        for i in range(15):
            a(f"v_mov_b32 {v(T[2 + i])}, s{72 + 2 * i}")
            a(f"buffer_store_dword {v(T[2 + i])}, {v(T[1])}, {WS}, {t0} offen offset:{4 * i}")
        a(f"v_mov_b32 {v(T[20])}, s71")
        a(f"buffer_store_dword {v(T[20])}, {v(T[1])}, {WS}, {t0} offen offset:60")
        a("s_mov_b64 exec, -1")
        a.label(sk)

    M_N8 = 0x00ff00ff00ff00ff

    def mask_n8():
        a("s_mov_b32 exec_lo, 0x00ff00ff")
        a("s_mov_b32 exec_hi, 0x00ff00ff")

    def common():
        a(f"s_load_dword {sT32}, s[{P_WS}:{P_WS + 1}], {EPOCH}")
        srd(WS, P_WS, WS_USED)
        a(f"s_getreg_b32 {t0}, hwreg(HW_REG_XCC_ID, 0, 4)")
        if cfg.far == 1:
            a(f"s_mov_b32 {t0}, 99")
        if cfg.far == 2:
            a(f"s_bitcmp1_b32 s2, 5")
            a(f"s_cselect_b32 {t0}, 99, {t0}")
        a(f"s_cmp_eq_u32 {t0}, {sKS}")
        a(f"s_cselect_b32 {sLG}, 0, {GOFF}")
        a(f"v_and_b32 {v(T[0])}, 1, {vL}")
        a(f"v_mov_b32 {v(T[1])}, 0xffff")
        a(f"v_lshlrev_b32 {v(T[0])}, 4, {v(T[0])}")
        a(f"v_lshlrev_b32 {v(T[1])}, {v(T[0])}, {v(T[1])}")
        a(f"v_bfe_u32 {v(T[0])}, {vL}, 1, 2")
        for d in range(4):
            a(f"v_cmp_eq_u32 vcc, {d}, {v(T[0])}")
            a(f"v_cndmask_b32 {vM[d]}, 0, {v(T[1])}, vcc")
        a(f"v_mov_b32 {vFF}, 0xff")
        a(f"v_mov_b32 {vONE}, 1.0")
        a(f"v_add_u32 {vSTA}, {L_XL}, {vL4}")
        a(f"s_lshl_b32 {t0}, {sW}, 9")
        a(f"s_add_u32 {t0}, {t0}, {L_RED0}")
        a(f"v_lshlrev_b32 {vRW}, 5, {vN}")
        a(f"v_lshl_add_u32 {vRW}, {vG}, 4, {vRW}")
        a(f"v_add_u32 {vRW}, {t0}, {vRW}")
        a(f"v_and_b32 {v(T[0])}, 7, {vL}")
        a(f"v_lshlrev_b32 {vRB}, 5, {v(T[0])}")
        a(f"v_and_b32 {v(T[1])}, 1, {vG}")
        a(f"v_lshl_add_u32 {vRB}, {v(T[1])}, 4, {vRB}")
        a(f"v_lshrrev_b32 {v(T[1])}, 1, {vG}")
        a(f"v_lshl_add_u32 {vRB}, {v(T[1])}, 8, {vRB}")
        a(f"v_add_u32 {vRB}, {t0}, {vRB}")
        a(f"s_and_b32 {sFA}, {sW}, 1")
        a(f"s_lshl_b32 {sFA}, {sFA}, 8")
        a(f"s_lshr_b32 {sW2}, {sW}, 1")
        a(f"s_add_u32 {t0}, {sFA}, {L_RED0}")
        a(f"v_add_u32 {vFA}, {t0}, {vL4}")
        a(f"s_mul_i32 {sMODK}, {t4}, 24576")
        a(f"s_add_u32 {sMODK}, {sMODK}, {MODP}")
        a(f"v_mul_u32_u24 {vMP}, 24576, {vG}")
        a(f"v_bfe_u32 {v(T[1])}, {vL}, 3, 1")
        a(f"v_lshl_add_u32 {vMP}, {v(T[1])}, 12, {vMP}")
        a(f"v_lshl_add_u32 {vMP}, {v(T[0])}, 4, {vMP}")
        a("s_waitcnt lgkmcnt(0)")
        a(f"s_xor_b32 {sT32}, {sT32}, {TAGK}")
        for d in range(4):
            a(f"s_bfe_u32 {sT[d]}, {sT32}, {(8 << 16) | (8 * d)}")
        a(f"s_lshr_b32 {sT16}, {sT32}, 16")
        a(f"v_mov_b32 {vT32}, {sT32}")
        a(f"v_and_b32 {v(T[0])}, 3, {vL}")
        a(f"v_lshlrev_b32 {v(T[0])}, 3, {v(T[0])}")
        a(f"v_bfe_u32 {vTL}, {vT32}, {v(T[0])}, 8")
        a(f"v_lshlrev_b32 {v(T[0])}, 3, {vG}")
        a(f"v_bfe_u32 {vTE}, {vT32}, {v(T[0])}, 8")

    a.raw(f"{NAME}_kernel:")
    a("s_cmp_ge_u32 s2, 256")
    a("s_cbranch_scc1 L_end")
    a("s_load_dwordx8 s[24:31], s[0:1], 64")
    a("s_load_dwordx16 s[8:23], s[0:1], 0")
    a("s_load_dwordx4 s[32:35], s[0:1], 96")
    if cfg.stamps:
        for i in range(15):
            a(f"s_mov_b64 s[{72 + 2 * i}:{73 + 2 * i}], 0")
        a("s_mov_b32 s71, 0")
    stamp(0)
    if cfg.amp:
        a("s_memrealtime s[100:101]")
    a(f"v_and_b32 {vL}, 63, v0")
    a(f"v_lshrrev_b32 {v(T[0])}, 6, v0")
    a(f"v_and_b32 {vN}, 15, v0")
    a(f"v_readfirstlane_b32 {sW}, {v(T[0])}")
    a(f"v_lshrrev_b32 {vG}, 4, {vL}")
    a(f"s_and_b32 {sKS}, s2, 7")
    a(f"s_lshr_b32 {sCS}, s2, 4")
    a(f"s_lshl_b32 {sGI}, {sCS}, 3")
    a(f"s_or_b32 {sGI}, {sGI}, {sKS}")
    a(f"s_mov_b32 {sSPIN}, 200000")
    a(f"v_lshrrev_b32 {v(T[0])}, 3, {vL}")
    a(f"v_mul_u32_u24 {vOB}, 24576, {v(T[0])}")
    a(f"v_and_b32 {v(T[1])}, 7, {vL}")
    a(f"v_lshl_add_u32 {vOB}, {v(T[1])}, 4, {vOB}")
    a(f"v_lshlrev_b32 {v(T[2])}, 2, {v(T[0])}")
    a(f"v_lshlrev_b32 {v(T[3])}, 3, {vG}")
    a(f"v_lshlrev_b32 {vL4}, 2, {vL}")
    a(f"v_lshl_add_u32 {vQE4}, {v(T[1])}, 2, {vG}")
    a(f"v_lshlrev_b32 {v(T[9])}, 1, {vQE4}")
    a(f"v_lshlrev_b32 {vQE4}, 2, {vQE4}")
    a(f"v_lshlrev_b32 {v(T[8])}, 5, {vL}")
    a(f"s_and_b32 {t4}, {sCS}, 7")
    a("s_bitcmp1_b32 s2, 3")
    a(f"s_cselect_b32 {t4}, {sKS}, {t4}")
    a(f"s_lshl_b32 {t2}, {t4}, 7")
    a(f"s_lshl_b32 {t3}, {sW}, 4")
    a(f"s_add_u32 {t2}, {t2}, {t3}")
    a(f"s_mul_i32 {sMROW}, {t2}, 12288")
    a(f"s_lshl_b32 {t2}, {t2}, 1")
    a("s_mov_b32 s6, 12582912")
    a("s_mov_b32 s7, 0x00020000")
    a("s_mov_b32 s46, 2048")
    a("s_mov_b32 s47, 0x00020000")
    a("s_bitcmp1_b32 s2, 3")
    a("s_cbranch_scc1 L_Q_pre")
    a(f"s_and_b32 {t5}, {sCS}, 8")
    a(f"s_or_b32 {t5}, {t5}, {sKS}")
    a(f"s_lshl_b32 {t0}, {t5}, 8")
    a(f"s_add_u32 {t0}, {t0}, {sMROW}")
    tS1 = Tile("s1", SM, W0, 4, vA1, 12288)
    tS1.addr(t0, 4 * 12288)
    a("s_waitcnt lgkmcnt(0)")
    a(f"s_mov_b32 s4, s{P_WM}")
    a(f"s_mov_b32 s5, s{P_WM + 1}")
    a(f"s_mov_b32 s44, s{P_C}")
    a(f"s_mov_b32 s45, s{P_C + 1}")
    VM.q = []
    a(f"buffer_load_dwordx2 {vr(T[6], 2)}, {v(T[3])}, {SB}, {t2} offen")
    a(f"buffer_load_dword {v(T[4])}, {v(T[2])}, {SB}, {t2} offen")
    vm_add("c")
    tS1.issue()
    a(f"s_mov_b32 {pMC}, {t5}")
    a(f"s_and_b32 s66, {sGI}, 3")
    a(f"s_lshr_b32 s67, {sGI}, 2")
    a(f"s_lshl_b32 {t2}, s66, 24")
    a(f"s_lshl_b32 {t1}, s67, 15")
    a(f"s_add_u32 {t2}, {t2}, {t1}")
    a(f"s_lshl_b32 {sKVL}, {sW}, 12")
    a(f"s_add_u32 {t2}, {t2}, {sKVL}")
    a(f"s_add_u32 {sKVO}, {t2}, {61440 * 256}")
    srd(SA, P_K, 67108864)
    srd(SB, P_V, 67108864)
    a(f"v_xor_b32 {v(vKV[0])}, {vN}, {vG}")
    a(f"v_lshlrev_b32 {v(vKV[0])}, 4, {v(vKV[0])}")
    a(f"v_lshl_add_u32 {v(vKV[0])}, {vG}, 8, {v(vKV[0])}")
    for u in range(1, 4):
        a(f"v_xor_b32 {v(vKV[u])}, {64 * u}, {v(vKV[0])}")
    a(f"v_lshlrev_b32 {v(vKV[4])}, 1, {vG}")
    a(f"v_xor_b32 {v(vKV[4])}, {vN}, {v(vKV[4])}")
    a(f"v_lshlrev_b32 {v(vKV[4])}, 4, {v(vKV[4])}")
    a(f"v_lshl_add_u32 {v(vKV[4])}, {vG}, 8, {v(vKV[4])}")
    a(f"v_xor_b32 {v(vKV[5])}, 128, {v(vKV[4])}")
    kvn = [0]

    def kv_issue(upto):
        while kvn[0] < upto:
            u = kvn[0]
            if u == 0:
                a(f"s_mov_b32 m0, {sKVL}")
            if u == 4:
                a(f"s_add_u32 m0, {sKVL}, {L_V}")
            if u < 4:
                a(f"buffer_load_dwordx4 {v(vKV[u])}, {SA}, {sKVO} offen offset:{1024 * u}{NT} lds")
            else:
                a(f"buffer_load_dwordx4 {v(vKV[4 + ((u - 4) >> 1)])}, {SB}, {sKVO} offen offset:{1024 * (u - 4)}{NT} lds")
            vm_add("kv")
            kvn[0] += 1
    if cfg.kv0:
        a("s_barrier")
    kv_issue(cfg.kv0)
    VMP = list(VM.q)
    common()

    def silu_c(typeA):
        if typeA:
            srcs = [(T[6], vXA[0], vXA[1]), (T[7], vXA[2], vXA[3])]
        else:
            srcs = [(T[4], vXB[0], vXB[1])]
        for s_, lo, hi in srcs:
            a(f"v_lshlrev_b32 {v(T[0])}, 16, {v(s_)}")
            a(f"v_and_b32 {v(T[1])}, 0xffff0000, {v(s_)}")
            silu(v(T[0]), v(T[0]), v(T[2]))
            silu(v(T[1]), v(T[1]), v(T[3]))
            a(f"v_cvt_pk_bf16_f32 {lo}, {v(T[0])}, {v(T[0])}")
            a(f"v_cvt_pk_bf16_f32 {hi}, {v(T[1])}, {v(T[1])}")

    a.c("======== P: S1")
    VM.q = VMP
    vm_wait("c")
    silu_c(True)
    a(f"s_lshl_b32 {t4}, {t5}, 9")
    a(f"s_add_u32 {sMODK}, {t4}, {sMODK}")
    a(f"s_add_u32 {t4}, {sMODK}, {sFA}")
    a(f"s_sub_u32 {t4}, {t4}, {GOFF}")
    tSC = Tile("sc", SM, W0 + 16, 4, vA2, 12288)
    a(f"v_add_u32 {vA2}, 6144, {vA1}")
    vm_wait("s1")
    stamp(1)
    kv_issue(cfg.kv1)
    gemv_regs(D0, W0, vXA)
    red_write_A(D0, L_RED0)
    barrier()
    finalize_A(L_RED0, t4, near=1)
    a("s_barrier")
    stamp(2)
    kv_issue(8)
    silu_c(False)
    tGU = tile6(W1)
    tGB = tileB("gb", W3, vA3, 10240, pMC)
    KF, VF, QF = W3, W3 + 16, W3 + 32
    vKA, vVA, vQA, vH2, vQW, vPW = v(T[30]), v(T[31]), v(T[32]), v(T[33]), v(T[34]), v(T[35])
    vWMr, vWMw, vOA, vMLA = v(T[26]), v(T[27]), v(T[28]), v(T[29])
    a(f"v_xor_b32 {vKA}, {vN}, {vG}")
    a(f"v_lshlrev_b32 {vKA}, 4, {vKA}")
    a(f"v_lshl_add_u32 {vKA}, {vN}, 8, {vKA}")
    a(f"s_lshl_b32 {t1}, {sW}, 12")
    a(f"v_add_u32 {vKA}, {t1}, {vKA}")
    a(f"v_bfe_u32 {v(T[0])}, {vL}, 2, 2")
    a(f"v_and_b32 {v(T[1])}, 1, {vG}")
    a(f"v_lshl_or_b32 {v(T[1])}, {v(T[1])}, 2, {v(T[0])}")
    a(f"v_lshlrev_b32 {v(T[1])}, 1, {v(T[1])}")
    a(f"v_bfe_u32 {v(T[2])}, {vL}, 1, 1")
    a(f"s_lshl_b32 {t1}, {sW}, 1")
    a(f"v_or_b32 {v(T[2])}, {t1}, {v(T[2])}")
    a(f"v_xor_b32 {v(T[2])}, {v(T[2])}, {v(T[1])}")
    a(f"v_lshl_add_u32 {v(T[0])}, {vG}, 3, {v(T[0])}")
    a(f"v_lshlrev_b32 {vVA}, 8, {v(T[0])}")
    a(f"v_lshl_add_u32 {vVA}, {v(T[2])}, 4, {vVA}")
    a(f"v_and_b32 {v(T[0])}, 1, {vL}")
    a(f"v_lshl_add_u32 {vVA}, {v(T[0])}, 3, {vVA}")
    a(f"v_add_u32 {vVA}, {L_V}, {vVA}")
    a(f"v_and_b32 {v(T[0])}, 7, {vL}")
    a(f"v_mul_u32_u24 {vQA}, 272, {v(T[0])}")
    a(f"v_lshl_add_u32 {vPW}, {vG}, 3, {vQA}")
    a(f"v_lshl_add_u32 {vQA}, {vG}, 4, {vQA}")
    a(f"v_add_u32 {vQA}, {L_QS}, {vQA}")
    a(f"s_lshl_b32 {t1}, {sW}, 5")
    a(f"s_add_u32 {t1}, {t1}, {L_PS}")
    a(f"v_add_u32 {vPW}, {t1}, {vPW}")
    a(f"v_lshlrev_b32 {vWMr}, 5, {v(T[0])}")
    a(f"v_add_u32 {vWMr}, {L_WM}, {vWMr}")
    a(f"s_lshl_b32 {t1}, {sW}, 2")
    a(f"v_add_u32 {vWMw}, {t1}, {vWMr}")
    a(f"v_lshlrev_b32 {vH2}, 14, {vG}")
    a(f"v_lshl_add_u32 {vH2}, {vN}, 4, {vH2}")
    a(f"v_lshl_add_u32 {vQW}, {vN}, 2, {vG}")
    a(f"v_lshlrev_b32 {vQW}, 1, {vQW}")
    a(f"s_mul_i32 {t1}, {sW}, 272")
    a(f"s_add_u32 {t1}, {t1}, {L_QS}")
    a(f"v_add_u32 {vQW}, {t1}, {vQW}")
    a(f"v_lshlrev_b32 {vOA}, 7, {vG}")
    a(f"v_lshl_add_u32 {vOA}, {vN}, 4, {vOA}")
    a(f"v_lshlrev_b32 {vMLA}, 3, {vL}")
    a(f"s_lshl_b32 {t2}, s66, 3")
    a(f"s_add_u32 {t2}, {t2}, {sW}")
    a(f"s_lshl_b32 {t3}, {t2}, 5")
    a(f"s_add_u32 {t3}, {t3}, s67")
    a(f"s_lshl_b32 {t2}, {t2}, 9")
    a(f"s_add_u32 {t2}, {t2}, {H2}")
    a(f"s_lshl_b32 s66, {t3}, 9")
    a(f"s_add_u32 s66, s66, {H3O}")
    a(f"s_lshl_b32 s67, {t3}, 6")
    a(f"s_add_u32 s67, s67, {H3ML}")
    a(f"s_add_u32 {t3}, {t2}, 65536")
    if cfg.pre & 1:
        mask_n8()
        a(f"buffer_load_dwordx4 {vr(F0, 4)}, {vOA}, {WS}, s66 offen{PRE}")
        a("s_mov_b64 exec, 0xff")
        a(f"buffer_load_dwordx2 {vr(F0 + 4, 2)}, {vMLA}, {WS}, s67 offen{PRE}")
        a("s_mov_b64 exec, -1")

    def k_reads():
        for s_ in range(4):
            a(f"ds_read_b128 {vr(KF + 4 * s_, 4)}, {v(T[19 + s_]) if s_ else vKA}")

    def v_reads():
        for s_ in range(4):
            for u in range(2):
                a(f"ds_read_b64_tr_b16 {vr(VF + 4 * s_ + 2 * u, 2)}, {vVA} offset:{8192 * s_ + 1024 * u}")
    for s_ in range(1, 4):
        a(f"v_xor_b32 {v(T[19 + s_])}, {64 * s_}, {vKA}")
    if not cfg.g2:
        vm_wait()
        stamp(3)
        a("s_barrier")
        k_reads()
        v_reads()
    for d in range(4):
        a(f"v_mov_b32 {v(A0 + d)}, 0x3f803f80")
    a(f"s_mov_b32 {t1}, {LOG2E}")
    gate(F_H2)
    stamp(4)

    def h2_loads():
        a(f"buffer_load_dwordx4 {vr(T[0], 4)}, {vH2}, {WS}, {t2} offen sc1")
        a(f"buffer_load_dwordx4 {vr(T[4], 4)}, {vH2}, {WS}, {t2} offen offset:256 sc1")
        a(f"buffer_load_dwordx4 {vr(T[8], 4)}, {vH2}, {WS}, {t3} offen sc1")
        a(f"buffer_load_dwordx4 {vr(T[12], 4)}, {vH2}, {WS}, {t3} offen offset:256 sc1")

    def h2_checks():
        clean(g4([T[0], T[4], T[8], T[12]]))
        a(f"v_and_b32 {vBAD}, 0xff, {vBAD}")
    poll("h2", h2_loads, h2_checks, after=k_reads if cfg.g2 else None)
    stamp(5)
    for d in range(8):
        a(f"v_add_f32 {v(T[d])}, {v(T[d])}, {v(T[8 + d])}")
    swapred2(T[0], T[4])
    a(f"v_cvt_pk_bf16_f32 {v(T[0])}, {v(T[0])}, {v(T[4])}")
    a(f"ds_write_b16 {vQW}, {v(T[0])}")
    a(f"ds_write_b16_d16_hi {vQW}, {v(T[0])} offset:128")
    barrier()
    for s_ in range(4):
        a(f"ds_read_b128 {vr(QF + 4 * s_, 4)}, {vQA} offset:{64 * s_}")
    if cfg.g2:
        v_reads()
    tSC.issue(cfg.p3a)
    if cfg.p3a > 4:
        not_w0(lambda: tGU.issue(cfg.p3a - 4))
    for s_ in range(4):
        a(f"s_waitcnt lgkmcnt({(11 if cfg.g2 else 3) - s_})")
        c = "0" if s_ == 0 else vr(D0, 4)
        a(f"v_mfma_f32_16x16x32_bf16 {vr(D0, 4)}, {vr(KF + 4 * s_, 4)}, {vr(QF + 4 * s_, 4)}, {c}")
    a(f"v_cvt_pk_bf16_f32 {v(T[0])}, {v(D0)}, {v(D0 + 1)}")
    a(f"v_cvt_pk_bf16_f32 {v(T[2])}, {v(D0 + 2)}, {v(D0 + 3)}")
    for p in (0, 2):
        a(f"v_and_b32 {v(T[p + 1])}, 0xffff0000, {v(T[p])}")
        a(f"v_lshlrev_b32 {v(T[p])}, 16, {v(T[p])}")
    for r in range(4):
        a(f"v_mul_f32 {v(T[r])}, {SCALE}, {v(T[r])}")
    a(f"v_cvt_pk_bf16_f32 {v(T[0])}, {v(T[0])}, {v(T[1])}")
    a(f"v_cvt_pk_bf16_f32 {v(T[2])}, {v(T[2])}, {v(T[3])}")
    for p in (0, 2):
        a(f"v_and_b32 {v(T[p + 1])}, 0xffff0000, {v(T[p])}")
        a(f"v_lshlrev_b32 {v(T[p])}, 16, {v(T[p])}")
    a(f"v_max3_f32 {v(T[4])}, {v(T[0])}, {v(T[1])}, {v(T[2])}")
    a(f"v_max_f32 {v(T[4])}, {v(T[4])}, {v(T[3])}")
    rowsum(v(T[4]), v(T[5]), "max")
    a("s_mov_b64 exec, 0xff")
    a(f"ds_write_b32 {vWMw}, {v(T[4])}")
    a("s_mov_b64 exec, -1")
    barrier()
    a(f"ds_read_b128 {vr(T[12], 4)}, {vWMr}")
    a(f"ds_read_b128 {vr(T[16], 4)}, {vWMr} offset:16")
    if cfg.early & 4:
        signal_w(F_H3)
    a("s_waitcnt lgkmcnt(0)")
    a(f"v_max3_f32 {v(T[4])}, {v(T[12])}, {v(T[13])}, {v(T[14])}")
    a(f"v_max3_f32 {v(T[5])}, {v(T[15])}, {v(T[16])}, {v(T[17])}")
    a(f"v_max3_f32 {v(T[4])}, {v(T[4])}, {v(T[18])}, {v(T[19])}")
    a(f"v_max_f32 {v(T[4])}, {v(T[4])}, {v(T[5])}")
    for r in range(4):
        a(f"v_sub_f32 {v(T[r])}, {v(T[r])}, {v(T[4])}")
    for r in range(4):
        a(f"v_mul_f32 {v(T[r])}, {t1}, {v(T[r])}")
    for r in range(4):
        a(f"v_exp_f32 {v(T[r])}, {v(T[r])}")
    a(f"v_cvt_pk_bf16_f32 {v(T[6])}, {v(T[0])}, {v(T[1])}")
    a(f"v_cvt_pk_bf16_f32 {v(T[7])}, {v(T[2])}, {v(T[3])}")
    mask_n8()
    a(f"ds_write_b64 {vPW}, {vr(T[6], 2)}")
    a("s_mov_b64 exec, -1")
    a(f"v_or_b32 {v(T[4])}, {sT16}, {v(T[4])}")
    barrier()
    for s_ in range(4):
        a(f"ds_read_b128 {vr(QF + 4 * s_, 4)}, {vQA} offset:{L_PS - L_QS + 64 * s_}")
    if cfg.early & 2:
        signal_w(F_H3)
    for s_ in range(4):
        a(f"s_waitcnt lgkmcnt({3 - s_})")
        c = "0" if s_ == 0 else vr(D0, 4)
        a(f"v_mfma_f32_16x16x32_bf16 {vr(D0, 4)}, {vr(VF + 4 * s_, 4)}, {vr(QF + 4 * s_, 4)}, {c}")
        c = "0" if s_ == 0 else vr(D1, 4)
        a(f"v_mfma_f32_16x16x32_bf16 {vr(D1, 4)}, {vr(A0, 4)}, {vr(QF + 4 * s_, 4)}, {c}")
    for d in range(4):
        a(f"v_bfi_b32 {v(D0 + d)}, {vFF}, {sT[d]}, {v(D0 + d)}")
    a(f"v_bfi_b32 {v(T[5])}, {vFF}, {sT[0]}, {v(D1)}")
    mask_n8()
    a(f"buffer_store_dwordx4 {vr(D0, 4)}, {vOA}, {WS}, s66 offen sc1")
    a("s_mov_b64 exec, 0xff")
    a(f"buffer_store_dwordx2 {vr(T[4], 2)}, {vMLA}, {WS}, s67 offen sc1")
    a("s_mov_b64 exec, -1")
    if not cfg.early & 6:
        signal_w(F_H3, 0)
    a("s_barrier")
    stamp(6)
    a.c("======== P: sb/cb tile, gate/up tile, w_down tile")
    tSC.issue(cap=cfg.capP3)

    def gu1():
        tGU.issue(cfg.p3b, cap=cfg.capP3)
        vm_wait("sc")
    not_w0(gu1, lambda: a("s_waitcnt vmcnt(0)"))
    gemv_regs(D0, W0 + 16, vXA)
    red_write_A(D0, L_RED1)
    barrier()
    a(f"s_add_u32 {t4}, {sMODK}, {3072 * 4}")
    finalize_A(L_RED1, t4, w0=2)
    stamp(13)

    def gu2():
        tGU.issue(cfg.capN, cap=cfg.capP3)
        tGU.issue(cap=cfg.capP4)
        stamp(12)
        vm_wait()
        stamp(11)
    not_w0(gu2, stage6_input)
    barrier()
    stamp(8)
    a(f"ds_read_b32 {vX}, {vSTA}")
    if cfg.gbe:
        tGB.issue()
    a("s_waitcnt lgkmcnt(0)")

    def s6():
        gemv_bcast(D0, W1, 16)
        for d in range(4):
            a(f"v_bfi_b32 {v(D0 + d)}, {vFF}, {sT[d]}, {v(D0 + d)}")
        store2([("buffer_store_dwordx4", vr(D0, 4), vA4, sO6, 0, 0xffffffff)])
    not_w0(s6)
    if cfg.stamps:
        a("s_barrier")
    stamp(10)
    tGB.issue()
    a(f"s_lshl_b32 {t4}, {pMC}, 8")
    a(f"s_sub_u32 {t4}, 20480, {t4}")
    vm_wait("gb")
    gemv_regs(D1, W3, vXB)
    red_write_B(D1, L_RED0 + 4096)
    barrier()
    finalize_B(0, L_RED0 + 4096, t4)
    stamp(14)
    a("s_branch L_fin")

    a.label("L_Q_pre")
    a(f"s_lshl_b32 s66, {sKS}, 7")
    a(f"s_and_b32 {t1}, {sW}, 3")
    a(f"s_lshl_b32 {t1}, {t1}, 5")
    a(f"s_add_u32 s66, s66, {t1}")
    a(f"s_lshl_b32 {t1}, {sCS}, 9")
    a(f"s_lshr_b32 {t0}, {sW}, 2")
    a(f"s_lshl_b32 {t0}, {t0}, 8")
    a(f"s_add_u32 {t1}, {t1}, {t0}")
    a(f"s_lshl_b32 {t0}, s66, 13")
    a(f"s_add_u32 {t0}, {t0}, {t1}")
    tWQ = Tile("wq", SA, W0, 8, vA1, 4 * 8192)
    tWQ.addr(t0, 8192)
    a("s_mov_b32 s42, 8388608")
    a("s_mov_b32 s43, 0x00020000")
    a("s_waitcnt lgkmcnt(0)")
    a(f"s_mov_b32 s40, s{P_WQ}")
    a(f"s_mov_b32 s41, s{P_WQ + 1}")
    a(f"s_mov_b32 s44, s{P_X}")
    a(f"s_mov_b32 s45, s{P_X + 1}")
    VM.q = []
    a(f"buffer_load_dwordx4 {vr(T[12], 4)}, {v(T[8])}, {SB}, 0 offen")
    a(f"buffer_load_dwordx4 {vr(T[16], 4)}, {v(T[8])}, {SB}, 0 offen offset:16")
    a(f"s_lshl_b32 {t1}, s66, 1")
    a(f"buffer_load_ushort {v(T[20])}, {v(T[9])}, {SB}, {t1} offen")
    a(f"s_and_b32 {t1}, {sW}, 1")
    a(f"s_lshl_b32 {qR}, {sCS}, 1")
    a(f"s_add_u32 {qR}, {qR}, {t1}")
    a(f"s_lshl_b32 {t1}, {qR}, 6")
    a(f"buffer_load_ushort {vXR}, {v(T[9])}, {SB}, {t1} offen")
    a(f"s_mov_b32 s44, s{P_C}")
    a(f"s_mov_b32 s45, s{P_C + 1}")
    a(f"buffer_load_dword {v(T[4])}, {v(T[2])}, {SB}, {t2} offen")
    vm_add("c")
    if cfg.qbar:
        a("s_barrier")
    tWQ.issue(cfg.qA)
    a(f"s_mov_b32 s4, s{P_WM}")
    a(f"s_mov_b32 s5, s{P_WM + 1}")
    VMQ = list(VM.q)
    common()
    a.c("======== Q: layernorm of x, silu(c)")
    VM.q = VMQ
    vm_wait("c")
    stamp(1)
    tWQ.issue()
    silu_c(False)
    XU = W3
    for i in range(8):
        a(f"v_lshlrev_b32 {v(XU + 2 * i)}, 16, {v(T[12 + i])}")
        a(f"v_and_b32 {v(XU + 2 * i + 1)}, 0xffff0000, {v(T[12 + i])}")
    a(f"v_lshlrev_b32 {v(T[20])}, 16, {v(T[20])}")
    a(f"v_add_f32 {v(T[0])}, {v(XU)}, {v(XU + 1)}")
    for i in range(2, 16):
        a(f"v_add_f32 {v(T[0])}, {v(T[0])}, {v(XU + i)}")
    allsum(v(T[0]), v(T[1]))
    a(f"v_mul_f32 {v(T[0])}, 0x3a800000, {v(T[0])}")
    a(f"v_mov_b32 {v(T[2])}, 0")
    for i in range(16):
        a(f"v_sub_f32 {v(XU + i)}, {v(XU + i)}, {v(T[0])}")
        a(f"v_fmac_f32 {v(T[2])}, {v(XU + i)}, {v(XU + i)}")
    allsum(v(T[2]), v(T[1]))
    a(f"v_mul_f32 {v(T[2])}, 0x3a800000, {v(T[2])}")
    ln_finish(v(T[20]), v(T[0]), v(T[2]), v(T[1]))
    a.c("======== Q: S2")
    tGA = tileB("ga", W3, vA3, 4096, sCS)
    srd(SB, P_WD, 7340032)
    a(f"s_and_b32 {t0}, {sCS}, 1")
    a(f"s_mul_i32 {t2}, {t0}, 224")
    a(f"s_mul_i32 {t1}, {sW}, 28")
    a(f"s_add_u32 {t2}, {t2}, {t1}")
    a(f"s_mul_i32 {t1}, {sKS}, 448")
    a(f"s_add_u32 {t4}, {t2}, {t1}")
    a(f"s_lshl_b32 {t4}, {t4}, 11")
    a(f"s_lshr_b32 {t3}, {sCS}, 1")
    a(f"s_lshl_b32 {t1}, {t3}, 8")
    a(f"s_add_u32 {t4}, {t4}, {t1}")
    tWD = Tile("wd", SB, W2, 7, vA4, 4 * 2048)
    tWD.addr(t4, 2048)
    a(f"s_lshl_b32 {pH5}, {t2}, 2")
    a(f"s_mul_i32 {t1}, {sKS}, 57344")
    a(f"s_add_u32 {pH5}, {pH5}, {t1}")
    a(f"s_add_u32 {pH5}, {pH5}, {H5}")
    a(f"s_add_u32 {pH5}, {pH5}, {sLG}")
    a(f"s_lshl_b32 {pH6}, {sKS}, 1")
    a(f"s_add_u32 {pH6}, {pH6}, {t0}")
    a(f"s_lshl_b32 {pH6}, {pH6}, 12")
    a(f"s_lshl_b32 {t1}, {t3}, 9")
    a(f"s_add_u32 {pH6}, {pH6}, {t1}")
    a(f"s_add_u32 {pH6}, {pH6}, {H6}")
    a(f"s_lshl_b32 {qXR}, {sKS}, 13")
    a(f"s_lshl_b32 {t3}, {qR}, 8")
    a(f"s_add_u32 {qXR}, {qXR}, {t3}")
    a(f"s_add_u32 {qXR}, {qXR}, {XR}")
    xr_items = [("buffer_store_dword", v(T[1]), vQE4, qXR, 0, M_N8),
                ("buffer_store_dwordx4", vr(T[20], 4), vL4, qXR, 128, 1)]
    a(f"s_lshl_b32 {t0}, s66, 2")
    a(f"s_add_u32 {t0}, {t0}, {MODN}")
    a(f"s_add_u32 {t0}, {t0}, {sLG}")
    a(f"s_add_u32 {t1}, {t0}, {4 * 24576}")
    a(f"s_lshl_b32 {t4}, {sKS}, 14")
    a(f"s_lshl_b32 {t3}, {sCS}, 10")
    a(f"s_add_u32 {t4}, {t4}, {t3}")
    a(f"s_lshl_b32 {t3}, {sW}, 8")
    a(f"s_add_u32 {t4}, {t4}, {t3}")
    a(f"s_add_u32 {t4}, {t4}, {H2}")
    a(f"s_lshl_b32 {t3}, {sW2}, 11")
    a(f"v_add_u32 {v(T[34])}, {t3}, {vFA}")
    if cfg.pre & 2:
        a(f"buffer_load_dword {v(F0)}, {vL4}, {WS}, {t4} offen{PRE}")
    if cfg.pre & 8:
        a(f"s_add_u32 {t3}, {pH6}, {sFA}")
        a(f"buffer_load_dword {v(F0 + 1)}, {vL4}, {WS}, {t3} offen{PRE}")
    srd(SA, P_WO, 8388608)
    a(f"s_and_b32 s66, {sGI}, 31")
    a(f"s_lshr_b32 s67, {sGI}, 5")
    a(f"s_lshr_b32 {t3}, s66, 3")
    a(f"s_lshl_b32 {t2}, {t3}, 10")
    a(f"s_and_b32 {t3}, s66, 7")
    a(f"s_lshl_b32 {t3}, {t3}, 4")
    a(f"s_add_u32 {t2}, {t2}, {t3}")
    a(f"s_and_b32 {t3}, {sW}, 3")
    a(f"s_lshl_b32 {t3}, {t3}, 2")
    a(f"s_add_u32 {t2}, {t2}, {t3}")
    a(f"s_lshl_b32 {t2}, {t2}, 11")
    a(f"s_lshl_b32 {t3}, s67, 9")
    a(f"s_add_u32 {t2}, {t2}, {t3}")
    a(f"s_lshr_b32 {t3}, {sW}, 2")
    a(f"s_lshl_b32 {t3}, {t3}, 8")
    a(f"s_add_u32 {t2}, {t2}, {t3}")
    tWO = Tile("wo", SA, W1, 8, vA2, 128 * 2048)
    tWO.addr(t2, 2048)
    vm_wait()
    stamp(3)
    poll("h1", pair_loads, pair_checks, back=cfg.lback)
    stamp(4)
    tWO.issue(cfg.q2a)
    pair_sum()
    mod_prep()
    modulate()
    if cfg.early & 1:
        signal_w(F_H2)
    gemv_bcast(D0, W0, 8)
    red_write_A(D0, L_RED1)
    barrier()
    sk = a.newlabel("f2")
    a(f"s_cmp_lt_u32 {sW}, 4")
    a(f"s_cbranch_scc0 {sk}")
    finalize(v(T[34]), [32, 34, 36, 38], t4)
    if not cfg.early & 1:
        a(f"s_cmp_eq_u32 {sW}, 0")
        a(f"s_cbranch_scc0 {sk}")
        signal_partner(F_H2)
    a.label(sk)
    a("s_barrier")
    stamp(5)
    a.c("======== Q: wo tile + gb tile")
    tGA.issue(cap=cfg.capQ2)
    tWO.issue(cap=cfg.capQ2)
    tWD.issue(cfg.q7a, cap=cfg.capQ2)
    a(f"s_and_b32 {t1}, {sW}, 3")
    a(f"s_lshl_b32 {t1}, {t1}, 8")
    a(f"s_add_u32 {t1}, {t1}, {L_XL}")
    a(f"v_add_u32 {v(T[33])}, {t1}, {vL4}")
    va, vb = v(T[31]), v(T[32])
    a(f"v_lshrrev_b32 {v(T[28])}, 3, {vL}")
    a(f"v_and_b32 {v(T[29])}, 7, {vL}")
    a(f"v_lshlrev_b32 {va}, 11, {v(T[28])}")
    a(f"v_lshl_add_u32 {va}, {v(T[29])}, 4, {va}")
    a(f"v_lshlrev_b32 {vb}, 8, {v(T[28])}")
    a(f"v_lshl_add_u32 {vb}, {v(T[29])}, 3, {vb}")
    a(f"s_lshl_b32 {t2}, s66, 14")
    a(f"s_lshl_b32 {t1}, {sW}, 7")
    a(f"s_add_u32 {t2}, {t2}, {t1}")
    a(f"s_add_u32 {t2}, {t2}, {H3O}")
    a(f"s_lshl_b32 {t3}, s66, 11")
    a(f"s_add_u32 {t3}, {t3}, {H3ML}")
    a(f"s_lshl_b32 s59, s66, 12")
    a(f"s_lshl_b32 {t1}, s67, 10")
    a(f"s_add_u32 s59, s59, {t1}")
    a(f"s_lshl_b32 {t1}, {sW}, 8")
    a(f"s_add_u32 s59, s59, {t1}")
    a(f"s_add_u32 s59, s59, {H4}")
    if cfg.pre & 4:
        a(f"buffer_load_dword {v(T[35])}, {vL4}, {WS}, s59 offen{PRE}")
    vm_wait("ga")
    gemv_regs(D0, W3, vXB)
    red_write_B(D0, L_RED0 + 4096)
    barrier()
    a(f"s_lshl_b32 {t4}, {sCS}, 8")
    a(f"s_add_u32 {t4}, {t4}, 8192")
    finalize_B(4, L_RED0 + 4096, t4)
    a(f"s_mov_b32 {t1}, {LOG2E}")
    if not cfg.g3:
        vm_wait()
    stamp(6)
    gate(F_H3)
    stamp(11)
    a(f"s_cmp_lt_u32 {sW}, 4")
    a("s_cbranch_scc0 L_s4_wait")

    def h3_loads():
        for i in range(4):
            a(f"buffer_load_dwordx2 {vr(T[16 + 2 * i], 2)}, {vb}, {WS}, {t3} offen offset:{64 * i} sc1")
        for i in range(4):
            a(f"buffer_load_dwordx4 {vr(T[4 * i], 4)}, {va}, {WS}, {t2} offen offset:{512 * i} sc1")

    def h3_checks():
        clean(g4([T[0], T[4], T[8], T[12]]) + [(T[17 + 2 * i], sT[0]) for i in range(4)])
        a(f"v_and_b32 {v(T[24])}, 0xff, {vBAD}")
        clean([(T[16 + 2 * i], sT16) for i in range(4)])
        a(f"v_and_b32 {vBAD}, 0xffff, {vBAD}")
        a(f"v_or_b32 {vBAD}, {vBAD}, {v(T[24])}")
    poll("h3", h3_loads, h3_checks)
    stamp(12)
    a(f"v_max3_f32 {v(T[24])}, {v(T[16])}, {v(T[18])}, {v(T[20])}")
    a(f"v_max_f32 {v(T[24])}, {v(T[24])}, {v(T[22])}")
    a(f"v_max_f32_dpp {v(T[24])}, {v(T[24])}, {v(T[24])} row_ror:8{DPP}")
    rowsum(v(T[24]), v(T[25]), "max")
    for i in range(4):
        a(f"v_sub_f32 {v(T[16 + 2 * i])}, {v(T[16 + 2 * i])}, {v(T[24])}")
    for i in range(4):
        a(f"v_mul_f32 {v(T[16 + 2 * i])}, {t1}, {v(T[16 + 2 * i])}")
    for i in range(4):
        a(f"v_exp_f32 {v(T[16 + 2 * i])}, {v(T[16 + 2 * i])}")
    a(f"v_mul_f32 {v(T[24])}, {v(T[16])}, {v(T[17])}")
    for i in range(1, 4):
        a(f"v_fmac_f32 {v(T[24])}, {v(T[16 + 2 * i])}, {v(T[17 + 2 * i])}")
    for d in range(4):
        a(f"v_mul_f32 {v(T[d])}, {v(T[16])}, {v(T[d])}")
    a(f"v_add_f32_dpp {v(T[24])}, {v(T[24])}, {v(T[24])} row_ror:8{DPP}")
    for i in range(1, 4):
        for d in range(4):
            a(f"v_fmac_f32 {v(T[d])}, {v(T[16 + 2 * i])}, {v(T[4 * i + d])}")
    rowsum(v(T[24]), v(T[25]), "add")
    a(f"v_rcp_f32 {v(T[24])}, {v(T[24])}")
    col32_reduce(T[0])
    a(f"v_mul_f32 {v(T[0])}, {v(T[0])}, {v(T[24])}")
    a(f"v_cvt_pk_bf16_f32 {vX}, {v(T[0])}, {v(T[0])}")
    a(f"ds_write_b32 {v(T[33])}, {vX}")
    a.label("L_s4_wait")
    a("s_waitcnt vmcnt(0)")
    barrier()
    a(f"ds_read_b32 {vX}, {v(T[33])}")
    tWD.issue(cfg.q7b)
    a("s_waitcnt lgkmcnt(0)")
    gemv_bcast(D0, W1, 8)
    red_write_A(D0, L_RED0)
    barrier()
    sk = a.newlabel("f4")
    a(f"s_cmp_lt_u32 {sW}, 4")
    a(f"s_cbranch_scc0 {sk}")
    finalize(v(T[34]), [0, 2, 4, 6], "s59")
    a.label(sk)
    stamp(13)
    if cfg.q7c > tWD.next:
        a("s_barrier")
        tWD.issue(cfg.q7c)
    a.c("======== Q: x1 slices (waves 0, 1)")
    a(f"s_cmp_lt_u32 {sW}, 2")
    a("s_cbranch_scc0 L_s5_done")
    va = v(T[24])
    a(f"v_lshrrev_b32 {v(T[27])}, 3, {vL}")
    a(f"v_and_b32 {v(T[28])}, 7, {vL}")
    a(f"v_lshlrev_b32 {v(T[28])}, 4, {v(T[28])}")
    a(f"v_lshl_add_u32 {va}, {v(T[27])}, 12, {v(T[28])}")
    a(f"s_lshl_b32 {t5}, {qR}, 7")
    a(f"s_add_u32 {t0}, {t5}, {H4}")
    a(f"s_add_u32 {t1}, {t0}, 32768")
    a(f"s_add_u32 {t2}, {t0}, 65536")
    a(f"s_add_u32 {t3}, {t0}, 98304")
    a(f"s_add_u32 {t4}, {t5}, {MODP + 2048 * 4}")
    a(f"v_lshlrev_b32 {vXR}, 16, {vXR}")
    a(f"v_mov_b32 {v(T[21])}, {sT32}")
    a(f"v_mov_b32 {v(T[23])}, {sT32}")
    a("s_waitcnt vmcnt(0)")

    def h4_loads():
        for i, s_ in enumerate((t0, t1, t2, t3)):
            a(f"buffer_load_dwordx4 {vr(T[4 * i], 4)}, {va}, {WS}, {s_} offen sc1")
        a(f"buffer_load_dwordx4 {vr(T[16], 4)}, {vOB}, {WS}, {t4} offen sc1")

    def h4_checks():
        clean(g4([T[0], T[4], T[8], T[12], T[16]]))
        a(f"v_and_b32 {vBAD}, 0xff, {vBAD}")
    poll("h4", h4_loads, h4_checks)
    stamp(8)
    for d in range(4):
        a(f"v_add_f32 {v(T[d])}, {v(T[d])}, {v(T[4 + d])}")
        a(f"v_add_f32 {v(T[8 + d])}, {v(T[8 + d])}, {v(T[12 + d])}")
    for d in range(4):
        a(f"v_add_f32 {v(T[d])}, {v(T[d])}, {v(T[8 + d])}")
    swapred2(T[0], T[16])
    a(f"v_add_f32_dpp {v(T[0])}, {v(T[0])}, {v(T[0])} row_ror:8{DPP}")
    a(f"v_add_f32_dpp {v(T[16])}, {v(T[16])}, {v(T[16])} row_ror:8{DPP}")
    rnd(v(T[0]), v(T[0]))
    rnd(v(T[16]), v(T[16]))
    a(f"v_mul_f32 {v(T[0])}, {v(T[0])}, {v(T[16])}")
    rnd(v(T[0]), v(T[0]))
    a(f"v_add_f32 {v(T[0])}, {v(T[0])}, {vXR}")
    rnd(v(T[0]), v(T[0]))
    a(f"v_or_b32 {v(T[1])}, {vTE}, {v(T[0])}")
    a(f"v_mov_b32 {v(T[20])}, {v(T[0])}")
    allsum(v(T[20]), v(T[2]))
    a(f"v_mul_f32 {v(T[20])}, 0x3c800000, {v(T[20])}")
    a(f"v_sub_f32 {v(T[22])}, {v(T[0])}, {v(T[20])}")
    a(f"v_mul_f32 {v(T[22])}, {v(T[22])}, {v(T[22])}")
    allsum(v(T[22]), v(T[2]))
    a(f"v_mul_f32 {v(T[22])}, 0.5, {v(T[22])}")
    store2(xr_items)
    stamp(9)
    a.label("L_s5_done")
    a("s_barrier")
    a.c("======== Q: w_down tile")
    VM.q = []
    tWD.issue()
    va = v(T[24])
    a(f"v_mul_u32_u24 {va}, 3584, {vG}")
    a(f"v_bfe_u32 {v(T[25])}, {vL}, 3, 1")
    a(f"v_mul_u32_u24 {v(T[25])}, 1792, {v(T[25])}")
    a(f"v_add_u32 {va}, {va}, {v(T[25])}")
    a(f"v_and_b32 {v(T[25])}, 7, {vL}")
    a(f"v_min_u32 {v(T[25])}, 6, {v(T[25])}")
    a(f"v_lshl_add_u32 {va}, {v(T[25])}, 4, {va}")
    for u in range(1, 4):
        a(f"s_add_u32 {[t0, t1, t2][u - 1]}, {pH5}, {14336 * u}")
    vm_wait()
    stamp(7)

    def h5_loads():
        for u, so in enumerate((pH5, t0, t1, t2)):
            a(f"buffer_load_dwordx4 {vr(T[4 * u], 4)}, {va}, {WS}, {so} offen sc1")
    poll("h5", h5_loads, h2_checks, back=cfg.lback)
    stamp(10)
    for d in range(8):
        a(f"v_add_f32 {v(T[d])}, {v(T[d])}, {v(T[8 + d])}")
    for d in range(4):
        a(f"v_add_f32 {v(T[d])}, {v(T[d])}, {v(T[4 + d])}")
    swapred(T[0])
    rnd(v(T[0]), v(T[0]))
    silu(v(T[2]), v(T[0]), v(T[3]))
    rnd(v(T[2]), v(T[2]))
    a(f"v_mul_f32_dpp {v(T[2])}, {v(T[0])}, {v(T[2])} row_ror:8{DPP}")
    a(f"v_cvt_pk_bf16_f32 {vX}, {v(T[2])}, {v(T[2])}")
    gemv_bcast(D0, W2, 7)
    red_write_A(D0, L_RED1)
    barrier()
    finalize_A(L_RED1, pH6)
    stamp(2)
    a.c("======== Q: final reduction on gi < 32, wave 0")
    a(f"s_cmp_lt_u32 {sGI}, 32")
    a("s_cbranch_scc0 L_fin")
    a(f"s_cmp_eq_u32 {sW}, 0")
    a("s_cbranch_scc0 L_fin")
    va = v(T[24])
    a(f"v_lshrrev_b32 {v(T[27])}, 3, {vL}")
    a(f"v_and_b32 {v(T[28])}, 7, {vL}")
    a(f"v_lshlrev_b32 {v(T[28])}, 4, {v(T[28])}")
    a(f"v_lshl_add_u32 {va}, {v(T[27])}, 12, {v(T[28])}")
    a(f"s_lshl_b32 {t3}, {sGI}, 7")
    a(f"s_add_u32 {t0}, {t3}, {H6}")
    a(f"s_add_u32 {t1}, {t0}, 32768")
    a(f"s_add_u32 {t2}, {t3}, {MODP + 5120 * 4}")
    a(f"s_lshl_b32 {t3}, {sGI}, 8")
    a(f"s_lshl_b32 {t4}, {sKS}, 13")
    a(f"s_add_u32 {t3}, {t3}, {t4}")
    a(f"s_add_u32 {t3}, {t3}, {XR}")
    a(f"s_add_u32 {t3}, {t3}, {sLG}")
    srd(SA, P_OUT, 2048)
    a(f"v_lshrrev_b32 {v(T[26])}, 1, {vQE4}")
    a(f"s_lshl_b32 {t4}, {sGI}, 6")
    if not cfg.early & 64:
        a("s_waitcnt vmcnt(0)")

    def h6_loads():
        a(f"buffer_load_dwordx4 {vr(T[0], 4)}, {va}, {WS}, {t0} offen sc1")
        a(f"buffer_load_dwordx4 {vr(T[4], 4)}, {va}, {WS}, {t1} offen sc1")
        a(f"buffer_load_dwordx4 {vr(T[8], 4)}, {vOB}, {WS}, {t2} offen sc1")
        a(f"buffer_load_dword {v(T[12])}, {vQE4}, {WS}, {t3} offen sc1")

    def h6_checks():
        clean(g4([T[0], T[4], T[8]]) + [(T[12], vTE)])
        a(f"v_and_b32 {vBAD}, 0xff, {vBAD}")
    poll("h6", h6_loads, h6_checks)
    for d in range(4):
        a(f"v_add_f32 {v(T[d])}, {v(T[d])}, {v(T[4 + d])}")
    swapred2(T[0], T[8])
    a(f"v_add_f32_dpp {v(T[0])}, {v(T[0])}, {v(T[0])} row_ror:8{DPP}")
    a(f"v_add_f32_dpp {v(T[8])}, {v(T[8])}, {v(T[8])} row_ror:8{DPP}")
    rnd(v(T[0]), v(T[0]))
    rnd(v(T[8]), v(T[8]))
    a(f"v_mul_f32 {v(T[0])}, {v(T[0])}, {v(T[8])}")
    rnd(v(T[0]), v(T[0]))
    a(f"v_add_f32 {v(T[0])}, {v(T[0])}, {v(T[12])}")
    a(f"v_cvt_pk_bf16_f32 {v(T[0])}, {v(T[0])}, {v(T[0])}")
    mask_n8()
    a(f"buffer_store_short {v(T[0])}, {v(T[26])}, {SA}, {t4} offen")
    a("s_mov_b64 exec, -1")
    stamp(14)
    a(f"s_cmp_eq_u32 {sGI}, 0")
    a("s_cbranch_scc0 L_fin")
    a("s_mov_b64 exec, 1")
    a(f"buffer_store_dword {vT32}, {vL4}, {WS}, 0 offen offset:{EPOCH}")
    a("s_mov_b64 exec, -1")
    if cfg.amp:
        a("s_memrealtime s[60:61]")
        a("s_waitcnt lgkmcnt(0)")
        a("s_sub_u32 s62, s60, s100")
        a(f"s_mul_i32 s62, s62, {cfg.amp}")
        a.label("L_amp")
        a("s_memrealtime s[64:65]")
        a("s_waitcnt lgkmcnt(0)")
        a("s_sub_u32 s63, s64, s60")
        a("s_cmp_lt_u32 s63, s62")
        a("s_cbranch_scc1 L_amp")
    a.label("L_fin")
    write_stamps()
    a.label("L_end")
    a("s_endpgm")

    hdr = open("cdna_kernels/" + NAME + ".s.ref").read().split("; @launch")[0]
    out = hdr
    out += f"; @launch grid=(256,1,1) block=(512,1,1) lds={LDS_BYTES}\n"
    out += '.amdgcn_target "amdgcn-amd-amdhsa--gfx950"\n.text\n'
    out += f".globl {NAME}_kernel\n.p2align 8\n.type {NAME}_kernel,@function\n"
    out += a.text()
    out += f""".section .rodata,"a"
.p2align 6
.amdhsa_kernel {NAME}_kernel
  .amdhsa_next_free_vgpr 256
  .amdhsa_next_free_sgpr 102
  .amdhsa_accum_offset 256
  .amdhsa_group_segment_fixed_size 0
  .amdhsa_kernarg_size 112
  .amdhsa_user_sgpr_count 2
  .amdhsa_user_sgpr_kernarg_segment_ptr 1
  .amdhsa_system_sgpr_workgroup_id_x 1
.end_amdhsa_kernel
"""
    if cfg.nomem:
        for n in (12582912, 8388608, 7340032, 67108864):
            out = out.replace(f", {n}\n", ", 0\n")
    return out, a.ninstr


if __name__ == "__main__":
    cfg = Cfg()
    outp = sys.argv[1]
    for kv in sys.argv[2:]:
        k, val = kv.split("=")
        setattr(cfg, k, type(getattr(cfg, k))(int(val)))
    txt, n = gen(cfg)
    open(outp, "w").write(txt)
    print("wrote", outp, n, "instructions")
```

```python
import sys
from asmlib import Asm

NAME = "adaLN_cond__sliding_block_cached__swiglu_ffn__decode"

EPOCH = 0
MODN = 0x1000
XR = 0x31000
H5 = 0x41000
GOFF = 0xB0000
MODP = MODN + GOFF
H2 = 0x161000
H3O = 0x181000
H3ML = 0x201000
H4 = 0x211000
H6 = 0x231000
FLG = 0x241000
STAMP = 0x251000
WS_USED = 0x260000
F_H2, F_H3 = 0, 1

L_K = 0
L_V = 32768
L_RED0 = 65536
L_RED1 = L_RED0 + 8192
L_QS = L_RED1 + 4096
L_PS = L_QS + 8 * 272
L_WM = L_PS + 8 * 272
L_XL = L_WM + 256
LDS_BYTES = L_XL + 1024

TAGK = 0x9D6B5A37
LOG2E = 0x3FB8AA3B
SCALE = 0x3DB504F3
EPS = 0x3727C5AC


PN = ["", "h1", "h2", "h3", "h4", "h5", "h6", "h5a", "sbcb"]


class Cfg:
    nt = True
    stamps = False
    amp = 0
    ampA = 0
    ampB = 14
    backoff = 0
    mback = 16
    mask = 1
    pre = 0
    cpf = 0
    g2 = 1
    g3 = 1
    qbar = 1
    sw = 0
    prep = 0
    cnt = 0
    lback = 2
    far = 0
    predirty = 0
    qA = 8
    capP3 = 5
    capN = 16
    capP4 = 0
    capQ2 = 0
    early = 0
    nomem = 0
    kv0 = 0
    kv1 = 2
    p3a = 4
    p3b = 3
    q2a = 0
    q7a = 2
    q7b = 0
    q7c = 0
    gbe = 1


def gen(cfg):
    a = Asm()
    NT = " nt" if cfg.nt else ""
    PRE = ["", " sc1", " nt"][cfg.prep]
    P_X, P_K, P_V, P_WQ, P_WO, P_BX, P_WG, P_WU = 8, 10, 12, 14, 16, 18, 20, 22
    P_WD, P_C, P_WM, P_OUT, P_DBG, P_WS = 24, 26, 28, 30, 32, 34
    WS = "s[36:39]"
    SA = "s[40:43]"
    SB = "s[44:47]"
    SM = "s[4:7]"
    sLG, tG = "s0", "s1"
    pMC = "s14"
    qXR, qR, pH5, pH6 = "s10", "s11", "s12", "s13"
    sW, sGI, sKS, sCS = "s48", "s49", "s50", "s51"
    sT = ["s52", "s53", "s54", "s55"]
    sT32, sT16 = "s56", "s57"
    sMROW = "s58"
    t0, t1, t2, t3, t4, t5 = "s60", "s61", "s62", "s63", "s64", "s65"
    sSPIN = "s70"
    sO6, sR6 = "s18", "s19"
    sKVL, sKVO = "s59", "s8"
    sFA, sW2, sMODK = "s3", "s32", "s33"
    vL, vN, vG = "v1", "v2", "v3"
    vM = ["v4", "v5", "v6", "v7"]
    vFF, vTL, vTE = "v8", "v9", "v10"
    vOB = "v11"
    vRW = "v12"
    vRB = "v13"
    vL4 = "v14"
    vXB = ["v15", "v16"]
    vXA = ["v17", "v18", "v19", "v20"]
    vBAD = "v21"
    vX = "v22"
    vLN = "v23"
    vT32 = "v0"
    A0, A1 = 24, 28
    D0, D1 = 32, 36
    T = list(range(40, 76))
    vXR, vONE, vFA, vMP = "v76", "v77", "v78", "v79"
    F0 = 80
    vQE4 = "v96"
    vA1, GU, vA4 = "v97", 98, "v100"
    vA2, vA3, vSH, vSC = "v252", "v253", "v254", "v255"
    vKV = [101, 102, 103, 104, 105, 106]
    vSTA = "v107"
    W0, W1, W2, W3 = 108, 140, 172, 204

    def v(i):
        return f"v{i}"

    def vr(i, n):
        return f"v[{i}:{i + n - 1}]"

    def srd(dst, ptr, nbytes):
        b = int(dst[2:dst.index(":")])
        a(f"s_mov_b32 s{b}, s{ptr}")
        a(f"s_mov_b32 s{b + 1}, s{ptr + 1}")
        a(f"s_mov_b32 s{b + 2}, {nbytes}")
        a(f"s_mov_b32 s{b + 3}, 0x00020000")

    def stamp(i):
        if cfg.amp and cfg.ampA == i:
            a("s_memrealtime s[100:101]")
        if cfg.amp and cfg.ampB == i:
            a("s_memrealtime s[98:99]")
        if cfg.stamps:
            a(f"s_memrealtime s[{72 + 2 * i}:{73 + 2 * i}]")

    def rnd(dst, src):
        a(f"v_cvt_pk_bf16_f32 {dst}, {src}, {src}")
        a(f"v_and_b32 {dst}, 0xffff0000, {dst}")

    DPP = " row_mask:0xf bank_mask:0xf"

    def allsum(x, tmp, op="add"):
        o = f"v_{op}_f32"
        a(f"{o}_dpp {x}, {x}, {x} quad_perm:[1,0,3,2]{DPP}")
        a(f"{o}_dpp {x}, {x}, {x} quad_perm:[2,3,0,1]{DPP}")
        a(f"{o}_dpp {x}, {x}, {x} row_half_mirror{DPP}")
        a(f"{o}_dpp {x}, {x}, {x} row_mirror{DPP}")
        rowsum(x, tmp, op)

    def rowsum(x, tmp, op="add"):
        o = f"v_{op}_f32"
        a(f"v_mov_b32 {tmp}, {x}")
        a(f"v_permlane16_swap_b32 {x}, {tmp}")
        a(f"{o} {x}, {x}, {tmp}")
        a(f"v_mov_b32 {tmp}, {x}")
        a(f"v_permlane32_swap_b32 {x}, {tmp}")
        a(f"{o} {x}, {x}, {tmp}")

    def swapred(x):
        a(f"v_permlane32_swap_b32 {v(x)}, {v(x + 2)}")
        a(f"v_permlane32_swap_b32 {v(x + 1)}, {v(x + 3)}")
        a(f"v_add_f32 {v(x)}, {v(x)}, {v(x + 2)}")
        a(f"v_add_f32 {v(x + 1)}, {v(x + 1)}, {v(x + 3)}")
        a(f"v_permlane16_swap_b32 {v(x)}, {v(x + 1)}")
        a(f"v_add_f32 {v(x)}, {v(x)}, {v(x + 1)}")

    def swapred2(x, y):
        for z in (x, y):
            a(f"v_permlane32_swap_b32 {v(z)}, {v(z + 2)}")
            a(f"v_permlane32_swap_b32 {v(z + 1)}, {v(z + 3)}")
        for z in (x, y):
            a(f"v_add_f32 {v(z)}, {v(z)}, {v(z + 2)}")
            a(f"v_add_f32 {v(z + 1)}, {v(z + 1)}, {v(z + 3)}")
        for z in (x, y):
            a(f"v_permlane16_swap_b32 {v(z)}, {v(z + 1)}")
        for z in (x, y):
            a(f"v_add_f32 {v(z)}, {v(z)}, {v(z + 1)}")

    def silu(dst, src, tmp):
        a(f"v_mul_f32 {tmp}, 0xbfb8aa3b, {src}")
        a(f"v_exp_f32 {tmp}, {tmp}")
        a(f"v_add_f32 {tmp}, 1.0, {tmp}")
        a(f"v_rcp_f32 {tmp}, {tmp}")
        a(f"v_mul_f32 {dst}, {src}, {tmp}")

    def clean(pairs):
        for r, t in pairs:
            a(f"v_xor_b32 {v(r)}, {t}, {v(r)}")
        regs = [r for r, _ in pairs]
        if len(regs) == 1:
            a(f"v_mov_b32 {vBAD}, {v(regs[0])}")
            return
        if len(regs) % 2 == 0:
            a(f"v_or_b32 {vBAD}, {v(regs[0])}, {v(regs[1])}")
            regs = regs[2:]
        else:
            a(f"v_or3_b32 {vBAD}, {v(regs[0])}, {v(regs[1])}, {v(regs[2])}")
            regs = regs[3:]
        for i in range(0, len(regs), 2):
            a(f"v_or3_b32 {vBAD}, {vBAD}, {v(regs[i])}, {v(regs[i + 1])}")

    def g4(regs):
        return [(r + d, sT[d]) for r in regs for d in range(4)]

    def poll(name, loads, checks, back=None, after=None):
        lw = a.newlabel(name + "_w")
        ld = a.newlabel(name + "_d")
        loads()
        a("s_waitcnt vmcnt(0)")
        VM.q = []
        if name == PN[cfg.cnt]:
            stamp(1)
        if after:
            after()
        a.label(lw)
        checks()
        a(f"v_cmp_ne_u32 vcc, 0, {vBAD}")
        a(f"s_cbranch_vccz {ld}")
        msk = cfg.mask and name not in ("h5a", "h6")
        if msk:
            a("s_mov_b64 exec, vcc")
        back = cfg.backoff if back is None else back
        if back:
            a(f"s_sleep {back}")
        loads()
        if cfg.stamps and cfg.cnt in (0, PN.index(name)):
            a("s_add_u32 s71, s71, 1")
        a(f"s_sub_u32 {sSPIN}, {sSPIN}, 1")
        a("s_waitcnt vmcnt(0)")
        a(f"s_cbranch_scc0 {lw}")
        a(f"s_mov_b32 {sSPIN}, 0")
        a.label(ld)
        if msk:
            a("s_mov_b64 exec, -1")

    def gate(h):
        lp = a.newlabel("gate")
        ld = a.newlabel("gated")
        a(f"s_cmp_eq_u32 {sW}, 0")
        a(f"s_cbranch_scc0 {ld}")
        a("s_lshl_b32 s68, s2, 7")
        a(f"s_add_u32 s68, s68, {FLG + h * 32768}")
        a.label(lp)
        a(f"s_buffer_load_dword s69, {WS}, s68 glc")
        a("s_waitcnt lgkmcnt(0)")
        a(f"s_cmp_eq_u32 s69, {sT32}")
        a(f"s_cbranch_scc1 {ld}")
        a(f"s_sub_u32 {sSPIN}, {sSPIN}, 1")
        a(f"s_cbranch_scc0 {lp}")
        a(f"s_mov_b32 {sSPIN}, 0")
        a.label(ld)
        barrier()

    def signal_partner(h):
        a("s_xor_b32 s68, s2, 8")
        a("s_lshl_b32 s68, s68, 7")
        a(f"s_add_u32 s68, s68, {FLG + h * 32768}")
        a("s_mov_b64 exec, 1")
        a(f"buffer_store_dword {vT32}, {vL4}, {WS}, s68 offen sc1")
        a("s_mov_b64 exec, -1")

    def signal_w(h, wave=7):
        sk = a.newlabel("sg")
        a(f"s_cmp_eq_u32 {sW}, {wave}")
        a(f"s_cbranch_scc0 {sk}")
        signal_partner(h)
        a.label(sk)

    def setexec(m):
        if m == -1:
            a("s_mov_b64 exec, -1")
        elif m < 64:
            a(f"s_mov_b64 exec, {m}")
        else:
            a(f"s_mov_b32 exec_lo, {m & 0xffffffff:#x}")
            a(f"s_mov_b32 exec_hi, {m >> 32:#x}")

    def store2(items, defer=False):
        l1 = a.newlabel("sn")
        l2 = a.newlabel("sf")

        def emit(far, sc):
            cur = -1
            for op, data, va, so, imm, m in items:
                if m != cur:
                    setexec(m)
                    cur = m
                if far:
                    a(f"s_add_u32 {tG}, {so}, {GOFF}")
                    so = tG
                a(f"{op} {data}, {va}, {WS}, {so} offen offset:{imm}{sc}")
            if cur != -1:
                setexec(-1)
        a(f"s_cmp_eq_u32 {sLG}, 0")
        a(f"s_cbranch_scc0 {l1}")
        emit(False, "")
        if defer:
            a(f"s_branch {l2}")
        a.label(l1)
        emit(True, " sc1")
        if not defer:
            a(f"s_cmp_eq_u32 {sLG}, 0")
            a(f"s_cbranch_scc1 {l2}")
        emit(False, " sc1")
        a.label(l2)

    def far_A(soff):
        sk = a.newlabel("df")
        a(f"s_add_u32 {tG}, {soff}, {GOFF}")
        a(f"s_cmp_eq_u32 {sW2}, 0")
        a(f"s_cbranch_scc0 {sk}")
        a(f"buffer_store_dword {v(F0)}, {vL4}, {WS}, {tG} offen sc1")
        a.label(sk)

    def predirty(items):
        if not cfg.predirty:
            return
        l1 = a.newlabel("pd")
        a(f"s_cmp_eq_u32 {sLG}, 0")
        a(f"s_cbranch_scc0 {l1}")
        for op, data, va, so, imm, m in items:
            setexec(m)
            a(f"{op} {data}, {va}, {WS}, {so} offen offset:{imm}")
        setexec(-1)
        a.label(l1)

    def gemv_bcast(D, wbase, nt_):
        def prep(t):
            A = A0 if t % 2 == 0 else A1
            for d in range(4):
                a(f"v_and_b32_dpp {v(A + d)}, {vX}, {vM[d]} row_newbcast:{t}{DPP}")
        prep(0)
        for t in range(nt_):
            if t + 1 < nt_:
                prep(t + 1)
            A = A0 if t % 2 == 0 else A1
            c = "0" if t == 0 else vr(D, 4)
            a(f"v_mfma_f32_16x16x32_bf16 {vr(D, 4)}, {vr(A, 4)}, {vr(wbase + 4 * t, 4)}, {c}")

    def gemv_regs(D, wbase, xs):
        def prep(t):
            A = A0 if t % 2 == 0 else A1
            for d in range(4):
                a(f"v_and_b32 {v(A + d)}, {xs[t]}, {vM[d]}")
        prep(0)
        for t in range(len(xs)):
            if t + 1 < len(xs):
                prep(t + 1)
            A = A0 if t % 2 == 0 else A1
            c = "0" if t == 0 else vr(D, 4)
            a(f"v_mfma_f32_16x16x32_bf16 {vr(D, 4)}, {vr(A, 4)}, {vr(wbase + 4 * t, 4)}, {c}")

    def red_write_A(D, red):
        a("s_mov_b32 exec_hi, 0")
        a(f"ds_write_b128 {vRW}, {vr(D, 4)} offset:{red - L_RED0}")
        a("s_mov_b32 exec_hi, -1")

    def red_write_B(D, red):
        a("s_mov_b32 exec_lo, 0x00ff00ff")
        a("s_mov_b32 exec_hi, 0xff00ff00")
        a(f"ds_write_b128 {vRB}, {vr(D, 4)} offset:{red - L_RED0}")
        a("s_mov_b64 exec, -1")

    def finalize(vaddr, offs, soff, near=0):
        n = len(offs)
        for i in range(0, n, 2):
            a(f"ds_read2st64_b32 {vr(F0 + i, 2)}, {vaddr} offset0:{offs[i]} offset1:{offs[i + 1]}")
        a("s_waitcnt lgkmcnt(0)")
        step = 1
        while step < n:
            for i in range(0, n, 2 * step):
                a(f"v_add_f32 {v(F0 + i)}, {v(F0 + i)}, {v(F0 + i + step)}")
            step *= 2
        a(f"v_bfi_b32 {v(F0)}, {vFF}, {vTL}, {v(F0)}")
        if near:
            store2([("buffer_store_dword", v(F0), vL4, soff, 0, -1)], defer=near == 2)
        else:
            a(f"buffer_store_dword {v(F0)}, {vL4}, {WS}, {soff} offen sc1")

    def barrier():
        a("s_waitcnt lgkmcnt(0)")
        a("s_barrier")

    def finalize_A(red, sbase, w0=0, sig=None, near=0):
        sk = a.newlabel("fa")
        if not near:
            a(f"s_add_u32 {t5}, {sFA}, {sbase}")
        a(f"s_cmp_eq_u32 {sW2}, {w0 // 2}")
        a(f"s_cbranch_scc0 {sk}")
        o = (red - L_RED0) // 256
        finalize(vFA, [o + 2 * i for i in range(8)], sbase if near else t5, near)
        if sig is not None:
            a(f"s_cmp_eq_u32 {sW}, {w0}")
            a(f"s_cbranch_scc0 {sk}")
            signal_partner(sig)
        a.label(sk)

    def finalize_B(wave, red, colbytes):
        assert wave % 2 == 0
        sk = a.newlabel("fb")
        a(f"s_add_u32 {t5}, {sMODK}, {colbytes}")
        a(f"s_cmp_eq_u32 {sW}, {wave}")
        a(f"s_cbranch_scc0 {sk}")
        o = (red - L_RED0) // 256
        finalize(vFA, [o + i for i in range(16)], t5)
        a.label(sk)

    def predirty_A(soff):
        sk = a.newlabel("pa")
        a(f"s_cmp_eq_u32 {sW2}, 0")
        a(f"s_cbranch_scc0 {sk}")
        a(f"v_not_b32 {v(F0 + 8)}, {vTL}")
        predirty([("buffer_store_dword", v(F0 + 8), vL4, soff, 0, -1)])
        a.label(sk)

    def mod_prep():
        rnd(vSH, v(T[0]))
        a(f"v_add_f32_dpp {vSC}, {vSH}, {vONE} row_ror:8{DPP}")
        rnd(vSC, vSC)

    def modulate(sc=vSC):
        a(f"v_mul_f32 {v(T[1])}, {vLN}, {sc}")
        rnd(v(T[1]), v(T[1]))
        a(f"v_add_f32 {v(T[1])}, {v(T[1])}, {vSH}")
        a(f"v_cvt_pk_bf16_f32 {vX}, {v(T[1])}, {v(T[1])}")

    def ln_stats(mean, var):
        rnd(var, var)
        rnd(mean, mean)
        a(f"v_add_f32 {var}, {EPS}, {var}")
        rnd(var, var)
        a(f"v_sqrt_f32 {var}, {var}")
        rnd(var, var)
        a(f"v_rcp_f32 {var}, {var}")

    def ln_apply(xval, mean, rstd, tmp):
        a(f"v_sub_f32 {tmp}, {xval}, {mean}")
        rnd(tmp, tmp)
        a(f"v_mul_f32 {tmp}, {tmp}, {rstd}")
        rnd(vLN, tmp)

    def ln_finish(xval, mean, var, tmp):
        ln_stats(mean, var)
        ln_apply(xval, mean, var, tmp)

    class VM:
        q = []

    def vm_add(tag):
        VM.q.append(tag)

    def vm_wait(tag=None):
        if tag is None:
            n = 0
        else:
            if tag not in VM.q:
                return
            idx = max(i for i, t in enumerate(VM.q) if t == tag)
            n = len(VM.q) - 1 - idx
        a(f"s_waitcnt vmcnt({n})")
        VM.q = VM.q[len(VM.q) - n:] if n else []

    class Tile:
        def __init__(self, name, srdname, wreg, n, va, tstep):
            self.name, self.srd, self.wreg, self.n, self.va, self.tstep = name, srdname, wreg, n, va, tstep
            self.next = 0

        def addr(self, sbase, gstep):
            a(f"v_mul_u32_u24 {self.va}, {gstep}, {vG}")
            a(f"v_lshl_add_u32 {self.va}, {vN}, 4, {self.va}")
            a(f"v_add_u32 {self.va}, {sbase}, {self.va}")

        def issue(self, upto=None, cap=0):
            upto = self.n if upto is None else min(upto, self.n)
            while self.next < upto:
                t = self.next
                if cap and len(VM.q) >= cap:
                    a(f"s_waitcnt vmcnt({cap - 1})")
                    VM.q = VM.q[len(VM.q) - (cap - 1):] if cap > 1 else []
                self.load(t)
                vm_add(self.name)
                self.next += 1

        def load(self, t):
            so = "0"
            if t:
                so = "s69" if t % 2 else "s68"
                a(f"s_mov_b32 {so}, {t * self.tstep}")
            a(f"buffer_load_dwordx4 {vr(self.wreg + 4 * t, 4)}, {self.va}, {self.srd}, {so} offen{NT}")

    class TileG(Tile):
        def load(self, t):
            if cfg.nomem:
                a(f"buffer_load_dwordx4 {vr(self.wreg + 4 * t, 4)}, {vL4}, {SM}, 0 offen{NT}")
                return
            if t:
                a(f"v_add_co_u32 {v(GU)}, vcc, {4 * 7168}, {v(GU)}")
                a(f"v_addc_co_u32 {v(GU + 1)}, vcc, 0, {v(GU + 1)}, vcc")
            a(f"global_load_dwordx4 {vr(self.wreg + 4 * t, 4)}, {vr(GU, 2)}, off{NT}")

    def tileB(name, wreg, va, colbase, cs):
        tl = Tile(name, SM, wreg, 2, va, 12288)
        a(f"s_lshl_b32 {t0}, {cs}, 7")
        a(f"s_add_u32 {t0}, {t0}, {sMROW}")
        a(f"s_add_u32 {t0}, {t0}, {colbase}")
        a(f"v_add_u32 {va}, {t0}, {vOB}")
        return tl

    def tile6(wreg):
        a(f"s_max_u32 {t1}, {sW}, 1")
        a(f"s_sub_u32 {t1}, {t1}, 1")
        a(f"s_lshl_b32 {sR6}, {sCS}, 6")
        a(f"s_mul_i32 {sO6}, {sCS}, 3584")
        a(f"s_mul_i32 {t2}, {sKS}, 57344")
        a(f"s_add_u32 {sO6}, {sO6}, {t2}")
        a(f"s_add_u32 {sO6}, {sO6}, {H5}")
        a(f"s_cmp_ge_u32 {t1}, 3")
        a(f"s_cselect_b32 s69, 1, 0")
        a(f"s_cselect_b32 {t2}, 3, 0")
        a(f"s_sub_u32 {t2}, {t1}, {t2}")
        a(f"s_lshl_b32 {t2}, {t2}, 7")
        a(f"s_and_b32 {t0}, {sKS}, 1")
        a(f"s_lshl_b32 {t0}, {t0}, 6")
        a(f"s_add_u32 {t2}, {t2}, {t0}")
        a(f"s_cmp_eq_u32 {t2}, 448")
        a(f"s_cselect_b32 {t2}, 0, {t2}")
        a(f"s_add_u32 {t3}, {t2}, 64")
        a(f"s_cmp_eq_u32 {t1}, 6")
        a(f"s_cselect_b32 {t3}, {t2}, {t3}")
        a(f"s_cselect_b32 s68, 0, s69")
        a(f"s_mul_i32 {t0}, s68, 448")
        a(f"s_add_u32 {t0}, {t0}, {t2}")
        a(f"s_mul_i32 {t1}, s69, 448")
        a(f"s_add_u32 {t1}, {t1}, {t3}")
        a(f"v_mov_b32 {v(T[4])}, {t0}")
        a(f"v_mov_b32 {v(T[5])}, {t1}")
        a(f"s_mul_i32 {t0}, {sR6}, 7168")
        a(f"s_mul_i32 {t1}, {sKS}, 896")
        a(f"s_add_u32 {t0}, {t0}, {t1}")
        a(f"s_lshl_b32 {t2}, {t2}, 1")
        a(f"s_lshl_b32 {t3}, {t3}, 1")
        a(f"s_add_u32 {t2}, {t2}, {t0}")
        a(f"s_add_u32 {t3}, {t3}, {t0}")
        for sel, off, lo, hi in (("s68", t2, T[0], T[1]), ("s69", t3, T[2], T[3])):
            a(f"s_cmp_eq_u32 {sel}, 1")
            a(f"s_cselect_b32 {t0}, s{P_WU}, s{P_WG}")
            a(f"s_cselect_b32 {t1}, s{P_WU + 1}, s{P_WG + 1}")
            a(f"s_add_u32 {t0}, {t0}, {off}")
            a(f"s_addc_u32 {t1}, {t1}, 0")
            a(f"v_mov_b32 {v(lo)}, {t0}")
            a(f"v_mov_b32 {v(hi)}, {t1}")
        a(f"v_cmp_lt_u32 vcc, 7, {vN}")
        a(f"v_cndmask_b32 {v(GU)}, {v(T[0])}, {v(T[2])}, vcc")
        a(f"v_cndmask_b32 {v(GU + 1)}, {v(T[1])}, {v(T[3])}, vcc")
        a(f"v_cndmask_b32 {vA4}, {v(T[4])}, {v(T[5])}, vcc")
        a(f"v_mul_u32_u24 {v(T[0])}, {0 if cfg.nomem else 7168}, {vG}")
        a(f"v_and_b32 {v(T[1])}, 7, {vL}")
        a(f"v_lshl_add_u32 {v(T[0])}, {v(T[1])}, 4, {v(T[0])}")
        a(f"v_lshl_add_u32 {vA4}, {v(T[1])}, 3, {vA4}")
        a(f"v_lshl_add_u32 {vA4}, {vG}, 2, {vA4}")
        a(f"v_lshlrev_b32 {vA4}, 2, {vA4}")
        a(f"v_add_co_u32 {v(GU)}, vcc, {v(GU)}, {v(T[0])}")
        a(f"v_addc_co_u32 {v(GU + 1)}, vcc, 0, {v(GU + 1)}, vcc")

        return TileG("gu", None, wreg, 16, None, 0)

    def pair_sum():
        for d in range(4):
            a(f"v_add_f32 {v(T[d])}, {v(T[d])}, {v(T[4 + d])}")
        swapred(T[0])

    def pair_checks():
        clean(g4([T[0], T[4]]))
        a(f"v_and_b32 {vBAD}, 0xff, {vBAD}")

    def pair_loads():
        a(f"buffer_load_dwordx4 {vr(T[0], 4)}, {vMP}, {WS}, {t0} offen sc1")
        a(f"buffer_load_dwordx4 {vr(T[4], 4)}, {vMP}, {WS}, {t1} offen sc1")

    def not_w0(f, w0=None):
        sk = a.newlabel("nw")
        lj = a.newlabel("nj")
        a(f"s_cmp_eq_u32 {sW}, 0")
        a(f"s_cbranch_scc1 {sk}")
        f()
        if w0:
            a(f"s_branch {lj}")
        a.label(sk)
        if w0:
            w0()
            a.label(lj)

    def stage6_input():
        vs, vx, vm = v(T[27]), v(T[26]), v(T[25])
        a(f"v_and_b32 {vs}, 31, {vL}")
        a(f"v_lshlrev_b32 {vs}, 8, {vs}")
        a(f"v_bfe_u32 {vx}, {vL}, 3, 1")
        a(f"v_lshl_add_u32 {vx}, {vx}, 8, {vQE4}")
        a(f"v_mul_u32_u24 {vm}, 24576, {vG}")
        a(f"v_lshl_add_u32 {vm}, {vN}, 4, {vm}")
        a(f"s_lshl_b32 {t0}, {sR6}, 2")
        a(f"s_add_u32 {t0}, {t0}, {MODP + 3072 * 4}")
        a(f"s_add_u32 {t1}, {t0}, {4 * 24576}")
        a(f"s_add_u32 {t4}, {t0}, 4096")
        a(f"s_add_u32 {t5}, {t1}, 4096")
        a(f"s_lshl_b32 {t3}, {sKS}, 13")
        a(f"s_add_u32 {t3}, {t3}, {XR}")
        a(f"s_add_u32 {t3}, {t3}, {sLG}")
        a(f"s_lshl_b32 {t2}, {sR6}, 3")
        a(f"s_add_u32 {t2}, {t2}, {t3}")

        def mloads():
            for i, so in enumerate((t0, t4, t1, t5)):
                a(f"buffer_load_dwordx4 {vr(T[4 * i], 4)}, {vm}, {WS}, {so} offen sc1")

        def mchecks():
            clean(g4([T[0], T[4], T[8], T[12]]))
            a(f"v_and_b32 {vBAD}, 0xff, {vBAD}")
        poll("sbcb", mloads, mchecks, back=cfg.mback)
        stamp(7)
        for d in range(8):
            a(f"v_add_f32 {v(T[d])}, {v(T[d])}, {v(T[8 + d])}")
        swapred2(T[0], T[4])
        rnd(vSH, v(T[0]))
        rnd(vSC, v(T[4]))
        a(f"v_add_f32 {vSC}, 1.0, {vSC}")
        rnd(vSC, vSC)

        def loads0():
            a(f"buffer_load_dwordx4 {vr(T[12], 4)}, {vs}, {WS}, {t3} offen offset:128 sc1")
            a(f"buffer_load_dword {v(T[8])}, {vx}, {WS}, {t2} offen sc1")

        def checks0():
            a(f"v_xor_b32 {v(T[8])}, {vTE}, {v(T[8])}")
            a(f"v_and_b32 {vBAD}, 0xff, {v(T[8])}")
            a(f"v_bitop3_b32 {vBAD}, {vBAD}, {v(T[13])}, {sT32} bitop3:0xf6")
            a(f"v_bitop3_b32 {vBAD}, {vBAD}, {v(T[15])}, {sT32} bitop3:0xf6")
        poll("h5a", loads0, checks0, back=cfg.lback)
        stamp(9)
        a(f"v_mov_b32 {v(T[16])}, {v(T[12])}")
        allsum(v(T[16]), v(T[10]))
        a(f"v_mul_f32 {v(T[16])}, 0x3c800000, {v(T[16])}")
        a(f"v_sub_f32 {v(T[10])}, {v(T[12])}, {v(T[16])}")
        a(f"v_mul_f32 {v(T[10])}, {v(T[10])}, {v(T[10])}")
        a(f"v_fmac_f32 {v(T[14])}, 0x42000000, {v(T[10])}")
        allsum(v(T[14]), v(T[10]))
        a(f"v_mul_f32 {v(T[17])}, 0x3a000000, {v(T[14])}")
        ln_stats(v(T[16]), v(T[17]))
        ln_apply(v(T[8]), v(T[16]), v(T[17]), v(T[10]))
        modulate()
        a(f"ds_write_b32 {vSTA}, {vX}")

    def col32_reduce(x):
        swapred(x)
        a(f"v_add_f32_dpp {v(x)}, {v(x)}, {v(x)} row_ror:8{DPP}")

    def write_stamps():
        if not cfg.stamps:
            return
        sk = a.newlabel("st")
        a(f"s_cmp_eq_u32 {sW}, {cfg.sw}")
        a(f"s_cbranch_scc0 {sk}")
        a("s_waitcnt lgkmcnt(0)")
        a("s_mov_b64 exec, 1")
        a(f"s_lshl_b32 {t0}, s2, 6")
        a(f"s_add_u32 {t0}, {t0}, {STAMP}")
        a(f"v_mov_b32 {v(T[1])}, 0")
        for i in range(15):
            a(f"v_mov_b32 {v(T[2 + i])}, s{72 + 2 * i}")
            a(f"buffer_store_dword {v(T[2 + i])}, {v(T[1])}, {WS}, {t0} offen offset:{4 * i}")
        a(f"v_mov_b32 {v(T[20])}, s71")
        a(f"buffer_store_dword {v(T[20])}, {v(T[1])}, {WS}, {t0} offen offset:60")
        a("s_mov_b64 exec, -1")
        a.label(sk)

    M_N8 = 0x00ff00ff00ff00ff

    def mask_n8():
        a("s_mov_b32 exec_lo, 0x00ff00ff")
        a("s_mov_b32 exec_hi, 0x00ff00ff")

    def common():
        a(f"s_load_dword {sT32}, s[{P_WS}:{P_WS + 1}], {EPOCH}")
        srd(WS, P_WS, WS_USED)
        a(f"s_getreg_b32 {t0}, hwreg(HW_REG_XCC_ID, 0, 4)")
        if cfg.far == 1:
            a(f"s_mov_b32 {t0}, 99")
        if cfg.far == 2:
            a(f"s_bitcmp1_b32 s2, 5")
            a(f"s_cselect_b32 {t0}, 99, {t0}")
        a(f"s_cmp_eq_u32 {t0}, {sKS}")
        a(f"s_cselect_b32 {sLG}, 0, {GOFF}")
        a(f"v_and_b32 {v(T[0])}, 1, {vL}")
        a(f"v_mov_b32 {v(T[1])}, 0xffff")
        a(f"v_lshlrev_b32 {v(T[0])}, 4, {v(T[0])}")
        a(f"v_lshlrev_b32 {v(T[1])}, {v(T[0])}, {v(T[1])}")
        a(f"v_bfe_u32 {v(T[0])}, {vL}, 1, 2")
        for d in range(4):
            a(f"v_cmp_eq_u32 vcc, {d}, {v(T[0])}")
            a(f"v_cndmask_b32 {vM[d]}, 0, {v(T[1])}, vcc")
        a(f"v_mov_b32 {vFF}, 0xff")
        a(f"v_mov_b32 {vONE}, 1.0")
        a(f"v_add_u32 {vSTA}, {L_XL}, {vL4}")
        a(f"s_lshl_b32 {t0}, {sW}, 9")
        a(f"s_add_u32 {t0}, {t0}, {L_RED0}")
        a(f"v_lshlrev_b32 {vRW}, 5, {vN}")
        a(f"v_lshl_add_u32 {vRW}, {vG}, 4, {vRW}")
        a(f"v_add_u32 {vRW}, {t0}, {vRW}")
        a(f"v_and_b32 {v(T[0])}, 7, {vL}")
        a(f"v_lshlrev_b32 {vRB}, 5, {v(T[0])}")
        a(f"v_and_b32 {v(T[1])}, 1, {vG}")
        a(f"v_lshl_add_u32 {vRB}, {v(T[1])}, 4, {vRB}")
        a(f"v_lshrrev_b32 {v(T[1])}, 1, {vG}")
        a(f"v_lshl_add_u32 {vRB}, {v(T[1])}, 8, {vRB}")
        a(f"v_add_u32 {vRB}, {t0}, {vRB}")
        a(f"s_and_b32 {sFA}, {sW}, 1")
        a(f"s_lshl_b32 {sFA}, {sFA}, 8")
        a(f"s_lshr_b32 {sW2}, {sW}, 1")
        a(f"s_add_u32 {t0}, {sFA}, {L_RED0}")
        a(f"v_add_u32 {vFA}, {t0}, {vL4}")
        a(f"s_mul_i32 {sMODK}, {t4}, 24576")
        a(f"s_add_u32 {sMODK}, {sMODK}, {MODP}")
        a(f"v_mul_u32_u24 {vMP}, 24576, {vG}")
        a(f"v_bfe_u32 {v(T[1])}, {vL}, 3, 1")
        a(f"v_lshl_add_u32 {vMP}, {v(T[1])}, 12, {vMP}")
        a(f"v_lshl_add_u32 {vMP}, {v(T[0])}, 4, {vMP}")
        a("s_waitcnt lgkmcnt(0)")
        a(f"s_xor_b32 {sT32}, {sT32}, {TAGK}")
        for d in range(4):
            a(f"s_bfe_u32 {sT[d]}, {sT32}, {(8 << 16) | (8 * d)}")
        a(f"s_lshr_b32 {sT16}, {sT32}, 16")
        a(f"v_mov_b32 {vT32}, {sT32}")
        a(f"v_and_b32 {v(T[0])}, 3, {vL}")
        a(f"v_lshlrev_b32 {v(T[0])}, 3, {v(T[0])}")
        a(f"v_bfe_u32 {vTL}, {vT32}, {v(T[0])}, 8")
        a(f"v_lshlrev_b32 {v(T[0])}, 3, {vG}")
        a(f"v_bfe_u32 {vTE}, {vT32}, {v(T[0])}, 8")

    a.raw(f"{NAME}_kernel:")
    a("s_cmp_ge_u32 s2, 256")
    a("s_cbranch_scc1 L_end")
    a("s_load_dwordx8 s[24:31], s[0:1], 64")
    a("s_load_dwordx16 s[8:23], s[0:1], 0")
    a("s_load_dwordx4 s[32:35], s[0:1], 96")
    if cfg.stamps:
        for i in range(15):
            a(f"s_mov_b64 s[{72 + 2 * i}:{73 + 2 * i}], 0")
        a("s_mov_b32 s71, 0")
    stamp(0)
    a(f"v_and_b32 {vL}, 63, v0")
    a(f"v_lshrrev_b32 {v(T[0])}, 6, v0")
    a(f"v_and_b32 {vN}, 15, v0")
    a(f"v_readfirstlane_b32 {sW}, {v(T[0])}")
    a(f"v_lshrrev_b32 {vG}, 4, {vL}")
    a(f"s_and_b32 {sKS}, s2, 7")
    a(f"s_lshr_b32 {sCS}, s2, 4")
    a(f"s_lshl_b32 {sGI}, {sCS}, 3")
    a(f"s_or_b32 {sGI}, {sGI}, {sKS}")
    a(f"s_mov_b32 {sSPIN}, 200000")
    if cfg.cpf:
        a.raw("L_pc:")
        a("s_getpc_b64 s[66:67]")
        a("s_lshr_b32 s68, s2, 3")
        a("s_lshl_b32 s68, s68, 10")
        a(f"v_lshl_add_u32 {v(F0 + 4)}, {vL}, 4, s68")
        a(f"v_min_u32 {v(F0 + 4)}, L_end-L_pc-16, {v(F0 + 4)}")
        a(f"v_and_b32 {v(F0 + 4)}, -4, {v(F0 + 4)}")
        sk = a.newlabel("cpf")
        a(f"s_cmp_eq_u32 {sW}, {cfg.cpf - 1}")
        a(f"s_cbranch_scc0 {sk}")
        a(f"global_load_dwordx4 {vr(F0, 4)}, {v(F0 + 4)}, s[66:67]")
        a.label(sk)
    a(f"v_lshrrev_b32 {v(T[0])}, 3, {vL}")
    a(f"v_mul_u32_u24 {vOB}, 24576, {v(T[0])}")
    a(f"v_and_b32 {v(T[1])}, 7, {vL}")
    a(f"v_lshl_add_u32 {vOB}, {v(T[1])}, 4, {vOB}")
    a(f"v_lshlrev_b32 {v(T[2])}, 2, {v(T[0])}")
    a(f"v_lshlrev_b32 {v(T[3])}, 3, {vG}")
    a(f"v_lshlrev_b32 {vL4}, 2, {vL}")
    a(f"v_lshl_add_u32 {vQE4}, {v(T[1])}, 2, {vG}")
    a(f"v_lshlrev_b32 {v(T[9])}, 1, {vQE4}")
    a(f"v_lshlrev_b32 {vQE4}, 2, {vQE4}")
    a(f"v_lshlrev_b32 {v(T[8])}, 5, {vL}")
    a(f"s_and_b32 {t4}, {sCS}, 7")
    a("s_bitcmp1_b32 s2, 3")
    a(f"s_cselect_b32 {t4}, {sKS}, {t4}")
    a(f"s_lshl_b32 {t2}, {t4}, 7")
    a(f"s_lshl_b32 {t3}, {sW}, 4")
    a(f"s_add_u32 {t2}, {t2}, {t3}")
    a(f"s_mul_i32 {sMROW}, {t2}, 12288")
    a(f"s_lshl_b32 {t2}, {t2}, 1")
    a("s_mov_b32 s6, 12582912")
    a("s_mov_b32 s7, 0x00020000")
    a("s_mov_b32 s46, 2048")
    a("s_mov_b32 s47, 0x00020000")
    a("s_bitcmp1_b32 s2, 3")
    a("s_cbranch_scc1 L_Q_pre")
    a(f"s_and_b32 {t5}, {sCS}, 8")
    a(f"s_or_b32 {t5}, {t5}, {sKS}")
    a(f"s_lshl_b32 {t0}, {t5}, 8")
    a(f"s_add_u32 {t0}, {t0}, {sMROW}")
    tS1 = Tile("s1", SM, W0, 4, vA1, 12288)
    tS1.addr(t0, 4 * 12288)
    a("s_waitcnt lgkmcnt(0)")
    a(f"s_mov_b32 s4, s{P_WM}")
    a(f"s_mov_b32 s5, s{P_WM + 1}")
    a(f"s_mov_b32 s44, s{P_C}")
    a(f"s_mov_b32 s45, s{P_C + 1}")
    VM.q = []
    a(f"buffer_load_dwordx2 {vr(T[6], 2)}, {v(T[3])}, {SB}, {t2} offen")
    a(f"buffer_load_dword {v(T[4])}, {v(T[2])}, {SB}, {t2} offen")
    vm_add("c")
    tS1.issue()
    a(f"s_mov_b32 {pMC}, {t5}")
    a(f"s_and_b32 s66, {sGI}, 3")
    a(f"s_lshr_b32 s67, {sGI}, 2")
    a(f"s_lshl_b32 {t2}, s66, 24")
    a(f"s_lshl_b32 {t1}, s67, 15")
    a(f"s_add_u32 {t2}, {t2}, {t1}")
    a(f"s_lshl_b32 {sKVL}, {sW}, 12")
    a(f"s_add_u32 {t2}, {t2}, {sKVL}")
    a(f"s_add_u32 {sKVO}, {t2}, {61440 * 256}")
    srd(SA, P_K, 67108864)
    srd(SB, P_V, 67108864)
    a(f"v_xor_b32 {v(vKV[0])}, {vN}, {vG}")
    a(f"v_lshlrev_b32 {v(vKV[0])}, 4, {v(vKV[0])}")
    a(f"v_lshl_add_u32 {v(vKV[0])}, {vG}, 8, {v(vKV[0])}")
    for u in range(1, 4):
        a(f"v_xor_b32 {v(vKV[u])}, {64 * u}, {v(vKV[0])}")
    a(f"v_lshlrev_b32 {v(vKV[4])}, 1, {vG}")
    a(f"v_xor_b32 {v(vKV[4])}, {vN}, {v(vKV[4])}")
    a(f"v_lshlrev_b32 {v(vKV[4])}, 4, {v(vKV[4])}")
    a(f"v_lshl_add_u32 {v(vKV[4])}, {vG}, 8, {v(vKV[4])}")
    a(f"v_xor_b32 {v(vKV[5])}, 128, {v(vKV[4])}")
    kvn = [0]

    def kv_issue(upto):
        while kvn[0] < upto:
            u = kvn[0]
            if u == 0:
                a(f"s_mov_b32 m0, {sKVL}")
            if u == 4:
                a(f"s_add_u32 m0, {sKVL}, {L_V}")
            if u < 4:
                a(f"buffer_load_dwordx4 {v(vKV[u])}, {SA}, {sKVO} offen offset:{1024 * u}{NT} lds")
            else:
                a(f"buffer_load_dwordx4 {v(vKV[4 + ((u - 4) >> 1)])}, {SB}, {sKVO} offen offset:{1024 * (u - 4)}{NT} lds")
            vm_add("kv")
            kvn[0] += 1
    if cfg.kv0:
        a("s_barrier")
    kv_issue(cfg.kv0)
    VMP = list(VM.q)
    common()

    def silu_c(typeA):
        if typeA:
            srcs = [(T[6], vXA[0], vXA[1]), (T[7], vXA[2], vXA[3])]
        else:
            srcs = [(T[4], vXB[0], vXB[1])]
        for s_, lo, hi in srcs:
            a(f"v_lshlrev_b32 {v(T[0])}, 16, {v(s_)}")
            a(f"v_and_b32 {v(T[1])}, 0xffff0000, {v(s_)}")
            silu(v(T[0]), v(T[0]), v(T[2]))
            silu(v(T[1]), v(T[1]), v(T[3]))
            a(f"v_cvt_pk_bf16_f32 {lo}, {v(T[0])}, {v(T[0])}")
            a(f"v_cvt_pk_bf16_f32 {hi}, {v(T[1])}, {v(T[1])}")

    a.c("======== P: S1")
    VM.q = VMP
    vm_wait("c")
    silu_c(True)
    a(f"s_lshl_b32 {t4}, {t5}, 9")
    a(f"s_add_u32 {sMODK}, {t4}, {sMODK}")
    a(f"s_add_u32 {t4}, {sMODK}, {sFA}")
    a(f"s_sub_u32 {t4}, {t4}, {GOFF}")
    tSC = Tile("sc", SM, W0 + 16, 4, vA2, 12288)
    a(f"v_add_u32 {vA2}, 6144, {vA1}")
    vm_wait("s1")
    stamp(1)
    kv_issue(cfg.kv1)
    gemv_regs(D0, W0, vXA)
    red_write_A(D0, L_RED0)
    barrier()
    finalize_A(L_RED0, t4, near=1)
    a("s_barrier")
    stamp(2)
    kv_issue(8)
    silu_c(False)
    tGU = tile6(W1)
    tGB = tileB("gb", W3, vA3, 10240, pMC)
    KF, VF, QF = W3, W3 + 16, W3 + 32
    vKA, vVA, vQA, vH2, vQW, vPW = v(T[30]), v(T[31]), v(T[32]), v(T[33]), v(T[34]), v(T[35])
    vWMr, vWMw, vOA, vMLA = v(T[26]), v(T[27]), v(T[28]), v(T[29])
    a(f"v_xor_b32 {vKA}, {vN}, {vG}")
    a(f"v_lshlrev_b32 {vKA}, 4, {vKA}")
    a(f"v_lshl_add_u32 {vKA}, {vN}, 8, {vKA}")
    a(f"s_lshl_b32 {t1}, {sW}, 12")
    a(f"v_add_u32 {vKA}, {t1}, {vKA}")
    a(f"v_bfe_u32 {v(T[0])}, {vL}, 2, 2")
    a(f"v_and_b32 {v(T[1])}, 1, {vG}")
    a(f"v_lshl_or_b32 {v(T[1])}, {v(T[1])}, 2, {v(T[0])}")
    a(f"v_lshlrev_b32 {v(T[1])}, 1, {v(T[1])}")
    a(f"v_bfe_u32 {v(T[2])}, {vL}, 1, 1")
    a(f"s_lshl_b32 {t1}, {sW}, 1")
    a(f"v_or_b32 {v(T[2])}, {t1}, {v(T[2])}")
    a(f"v_xor_b32 {v(T[2])}, {v(T[2])}, {v(T[1])}")
    a(f"v_lshl_add_u32 {v(T[0])}, {vG}, 3, {v(T[0])}")
    a(f"v_lshlrev_b32 {vVA}, 8, {v(T[0])}")
    a(f"v_lshl_add_u32 {vVA}, {v(T[2])}, 4, {vVA}")
    a(f"v_and_b32 {v(T[0])}, 1, {vL}")
    a(f"v_lshl_add_u32 {vVA}, {v(T[0])}, 3, {vVA}")
    a(f"v_add_u32 {vVA}, {L_V}, {vVA}")
    a(f"v_and_b32 {v(T[0])}, 7, {vL}")
    a(f"v_mul_u32_u24 {vQA}, 272, {v(T[0])}")
    a(f"v_lshl_add_u32 {vPW}, {vG}, 3, {vQA}")
    a(f"v_lshl_add_u32 {vQA}, {vG}, 4, {vQA}")
    a(f"v_add_u32 {vQA}, {L_QS}, {vQA}")
    a(f"s_lshl_b32 {t1}, {sW}, 5")
    a(f"s_add_u32 {t1}, {t1}, {L_PS}")
    a(f"v_add_u32 {vPW}, {t1}, {vPW}")
    a(f"v_lshlrev_b32 {vWMr}, 5, {v(T[0])}")
    a(f"v_add_u32 {vWMr}, {L_WM}, {vWMr}")
    a(f"s_lshl_b32 {t1}, {sW}, 2")
    a(f"v_add_u32 {vWMw}, {t1}, {vWMr}")
    a(f"v_lshlrev_b32 {vH2}, 14, {vG}")
    a(f"v_lshl_add_u32 {vH2}, {vN}, 4, {vH2}")
    a(f"v_lshl_add_u32 {vQW}, {vN}, 2, {vG}")
    a(f"v_lshlrev_b32 {vQW}, 1, {vQW}")
    a(f"s_mul_i32 {t1}, {sW}, 272")
    a(f"s_add_u32 {t1}, {t1}, {L_QS}")
    a(f"v_add_u32 {vQW}, {t1}, {vQW}")
    a(f"v_lshlrev_b32 {vOA}, 7, {vG}")
    a(f"v_lshl_add_u32 {vOA}, {vN}, 4, {vOA}")
    a(f"v_lshlrev_b32 {vMLA}, 3, {vL}")
    a(f"s_lshl_b32 {t2}, s66, 3")
    a(f"s_add_u32 {t2}, {t2}, {sW}")
    a(f"s_lshl_b32 {t3}, {t2}, 5")
    a(f"s_add_u32 {t3}, {t3}, s67")
    a(f"s_lshl_b32 {t2}, {t2}, 9")
    a(f"s_add_u32 {t2}, {t2}, {H2}")
    a(f"s_lshl_b32 s66, {t3}, 9")
    a(f"s_add_u32 s66, s66, {H3O}")
    a(f"s_lshl_b32 s67, {t3}, 6")
    a(f"s_add_u32 s67, s67, {H3ML}")
    a(f"s_add_u32 {t3}, {t2}, 65536")
    if cfg.pre & 1:
        mask_n8()
        a(f"buffer_load_dwordx4 {vr(F0, 4)}, {vOA}, {WS}, s66 offen{PRE}")
        a("s_mov_b64 exec, 0xff")
        a(f"buffer_load_dwordx2 {vr(F0 + 4, 2)}, {vMLA}, {WS}, s67 offen{PRE}")
        a("s_mov_b64 exec, -1")

    def k_reads():
        for s_ in range(4):
            a(f"ds_read_b128 {vr(KF + 4 * s_, 4)}, {v(T[19 + s_]) if s_ else vKA}")

    def v_reads():
        for s_ in range(4):
            for u in range(2):
                a(f"ds_read_b64_tr_b16 {vr(VF + 4 * s_ + 2 * u, 2)}, {vVA} offset:{8192 * s_ + 1024 * u}")
    for s_ in range(1, 4):
        a(f"v_xor_b32 {v(T[19 + s_])}, {64 * s_}, {vKA}")
    if not cfg.g2:
        vm_wait()
        stamp(3)
        a("s_barrier")
        k_reads()
        v_reads()
    for d in range(4):
        a(f"v_mov_b32 {v(A0 + d)}, 0x3f803f80")
    a(f"s_mov_b32 {t1}, {LOG2E}")
    gate(F_H2)
    stamp(4)

    def h2_loads():
        a(f"buffer_load_dwordx4 {vr(T[0], 4)}, {vH2}, {WS}, {t2} offen sc1")
        a(f"buffer_load_dwordx4 {vr(T[4], 4)}, {vH2}, {WS}, {t2} offen offset:256 sc1")
        a(f"buffer_load_dwordx4 {vr(T[8], 4)}, {vH2}, {WS}, {t3} offen sc1")
        a(f"buffer_load_dwordx4 {vr(T[12], 4)}, {vH2}, {WS}, {t3} offen offset:256 sc1")

    def h2_checks():
        clean(g4([T[0], T[4], T[8], T[12]]))
        a(f"v_and_b32 {vBAD}, 0xff, {vBAD}")
    poll("h2", h2_loads, h2_checks, after=k_reads if cfg.g2 else None)
    stamp(5)
    for d in range(8):
        a(f"v_add_f32 {v(T[d])}, {v(T[d])}, {v(T[8 + d])}")
    swapred2(T[0], T[4])
    a(f"v_cvt_pk_bf16_f32 {v(T[0])}, {v(T[0])}, {v(T[4])}")
    a(f"ds_write_b16 {vQW}, {v(T[0])}")
    a(f"ds_write_b16_d16_hi {vQW}, {v(T[0])} offset:128")
    barrier()
    for s_ in range(4):
        a(f"ds_read_b128 {vr(QF + 4 * s_, 4)}, {vQA} offset:{64 * s_}")
    if cfg.g2:
        v_reads()
    tSC.issue(cfg.p3a)
    if cfg.p3a > 4:
        not_w0(lambda: tGU.issue(cfg.p3a - 4))
    for s_ in range(4):
        a(f"s_waitcnt lgkmcnt({(11 if cfg.g2 else 3) - s_})")
        c = "0" if s_ == 0 else vr(D0, 4)
        a(f"v_mfma_f32_16x16x32_bf16 {vr(D0, 4)}, {vr(KF + 4 * s_, 4)}, {vr(QF + 4 * s_, 4)}, {c}")
    a(f"v_cvt_pk_bf16_f32 {v(T[0])}, {v(D0)}, {v(D0 + 1)}")
    a(f"v_cvt_pk_bf16_f32 {v(T[2])}, {v(D0 + 2)}, {v(D0 + 3)}")
    for p in (0, 2):
        a(f"v_and_b32 {v(T[p + 1])}, 0xffff0000, {v(T[p])}")
        a(f"v_lshlrev_b32 {v(T[p])}, 16, {v(T[p])}")
    for r in range(4):
        a(f"v_mul_f32 {v(T[r])}, {SCALE}, {v(T[r])}")
    a(f"v_cvt_pk_bf16_f32 {v(T[0])}, {v(T[0])}, {v(T[1])}")
    a(f"v_cvt_pk_bf16_f32 {v(T[2])}, {v(T[2])}, {v(T[3])}")
    for p in (0, 2):
        a(f"v_and_b32 {v(T[p + 1])}, 0xffff0000, {v(T[p])}")
        a(f"v_lshlrev_b32 {v(T[p])}, 16, {v(T[p])}")
    a(f"v_max3_f32 {v(T[4])}, {v(T[0])}, {v(T[1])}, {v(T[2])}")
    a(f"v_max_f32 {v(T[4])}, {v(T[4])}, {v(T[3])}")
    rowsum(v(T[4]), v(T[5]), "max")
    a("s_mov_b64 exec, 0xff")
    a(f"ds_write_b32 {vWMw}, {v(T[4])}")
    a("s_mov_b64 exec, -1")
    barrier()
    a(f"ds_read_b128 {vr(T[12], 4)}, {vWMr}")
    a(f"ds_read_b128 {vr(T[16], 4)}, {vWMr} offset:16")
    if cfg.early & 4:
        signal_w(F_H3)
    a("s_waitcnt lgkmcnt(0)")
    a(f"v_max3_f32 {v(T[4])}, {v(T[12])}, {v(T[13])}, {v(T[14])}")
    a(f"v_max3_f32 {v(T[5])}, {v(T[15])}, {v(T[16])}, {v(T[17])}")
    a(f"v_max3_f32 {v(T[4])}, {v(T[4])}, {v(T[18])}, {v(T[19])}")
    a(f"v_max_f32 {v(T[4])}, {v(T[4])}, {v(T[5])}")
    for r in range(4):
        a(f"v_sub_f32 {v(T[r])}, {v(T[r])}, {v(T[4])}")
    for r in range(4):
        a(f"v_mul_f32 {v(T[r])}, {t1}, {v(T[r])}")
    for r in range(4):
        a(f"v_exp_f32 {v(T[r])}, {v(T[r])}")
    a(f"v_cvt_pk_bf16_f32 {v(T[6])}, {v(T[0])}, {v(T[1])}")
    a(f"v_cvt_pk_bf16_f32 {v(T[7])}, {v(T[2])}, {v(T[3])}")
    mask_n8()
    a(f"ds_write_b64 {vPW}, {vr(T[6], 2)}")
    a("s_mov_b64 exec, -1")
    a(f"v_or_b32 {v(T[4])}, {sT16}, {v(T[4])}")
    barrier()
    for s_ in range(4):
        a(f"ds_read_b128 {vr(QF + 4 * s_, 4)}, {vQA} offset:{L_PS - L_QS + 64 * s_}")
    if cfg.early & 2:
        signal_w(F_H3)
    for s_ in range(4):
        a(f"s_waitcnt lgkmcnt({3 - s_})")
        c = "0" if s_ == 0 else vr(D0, 4)
        a(f"v_mfma_f32_16x16x32_bf16 {vr(D0, 4)}, {vr(VF + 4 * s_, 4)}, {vr(QF + 4 * s_, 4)}, {c}")
        c = "0" if s_ == 0 else vr(D1, 4)
        a(f"v_mfma_f32_16x16x32_bf16 {vr(D1, 4)}, {vr(A0, 4)}, {vr(QF + 4 * s_, 4)}, {c}")
    for d in range(4):
        a(f"v_bfi_b32 {v(D0 + d)}, {vFF}, {sT[d]}, {v(D0 + d)}")
    a(f"v_bfi_b32 {v(T[5])}, {vFF}, {sT[0]}, {v(D1)}")
    mask_n8()
    a(f"buffer_store_dwordx4 {vr(D0, 4)}, {vOA}, {WS}, s66 offen sc1")
    a("s_mov_b64 exec, 0xff")
    a(f"buffer_store_dwordx2 {vr(T[4], 2)}, {vMLA}, {WS}, s67 offen sc1")
    a("s_mov_b64 exec, -1")
    if not cfg.early & 6:
        signal_w(F_H3, 0)
    a("s_barrier")
    stamp(6)
    a.c("======== P: sb/cb tile, gate/up tile, w_down tile")
    tSC.issue(cap=cfg.capP3)

    def gu1():
        tGU.issue(cfg.p3b, cap=cfg.capP3)
        vm_wait("sc")
    not_w0(gu1, lambda: a("s_waitcnt vmcnt(0)"))
    gemv_regs(D0, W0 + 16, vXA)
    red_write_A(D0, L_RED1)
    barrier()
    a(f"s_add_u32 {t4}, {sMODK}, {3072 * 4}")
    finalize_A(L_RED1, t4, w0=2)
    stamp(13)

    def gu2():
        tGU.issue(cfg.capN, cap=cfg.capP3)
        tGU.issue(cap=cfg.capP4)
        stamp(12)
        vm_wait()
        stamp(11)
    not_w0(gu2, stage6_input)
    barrier()
    stamp(8)
    a(f"ds_read_b32 {vX}, {vSTA}")
    if cfg.gbe:
        tGB.issue()
    a("s_waitcnt lgkmcnt(0)")

    def s6():
        gemv_bcast(D0, W1, 16)
        for d in range(4):
            a(f"v_bfi_b32 {v(D0 + d)}, {vFF}, {sT[d]}, {v(D0 + d)}")
        store2([("buffer_store_dwordx4", vr(D0, 4), vA4, sO6, 0, 0xffffffff)])
    not_w0(s6)
    if cfg.stamps:
        a("s_barrier")
    stamp(10)
    tGB.issue()
    a(f"s_lshl_b32 {t4}, {pMC}, 8")
    a(f"s_sub_u32 {t4}, 20480, {t4}")
    vm_wait("gb")
    gemv_regs(D1, W3, vXB)
    red_write_B(D1, L_RED0 + 4096)
    barrier()
    finalize_B(0, L_RED0 + 4096, t4)
    stamp(14)
    a("s_branch L_fin")

    a.label("L_Q_pre")
    a(f"s_lshl_b32 s66, {sKS}, 7")
    a(f"s_and_b32 {t1}, {sW}, 3")
    a(f"s_lshl_b32 {t1}, {t1}, 5")
    a(f"s_add_u32 s66, s66, {t1}")
    a(f"s_lshl_b32 {t1}, {sCS}, 9")
    a(f"s_lshr_b32 {t0}, {sW}, 2")
    a(f"s_lshl_b32 {t0}, {t0}, 8")
    a(f"s_add_u32 {t1}, {t1}, {t0}")
    a(f"s_lshl_b32 {t0}, s66, 13")
    a(f"s_add_u32 {t0}, {t0}, {t1}")
    tWQ = Tile("wq", SA, W0, 8, vA1, 4 * 8192)
    tWQ.addr(t0, 8192)
    a("s_mov_b32 s42, 8388608")
    a("s_mov_b32 s43, 0x00020000")
    a("s_waitcnt lgkmcnt(0)")
    a(f"s_mov_b32 s40, s{P_WQ}")
    a(f"s_mov_b32 s41, s{P_WQ + 1}")
    a(f"s_mov_b32 s44, s{P_X}")
    a(f"s_mov_b32 s45, s{P_X + 1}")
    VM.q = []
    a(f"buffer_load_dwordx4 {vr(T[12], 4)}, {v(T[8])}, {SB}, 0 offen")
    a(f"buffer_load_dwordx4 {vr(T[16], 4)}, {v(T[8])}, {SB}, 0 offen offset:16")
    a(f"s_lshl_b32 {t1}, s66, 1")
    a(f"buffer_load_ushort {v(T[20])}, {v(T[9])}, {SB}, {t1} offen")
    a(f"s_and_b32 {t1}, {sW}, 1")
    a(f"s_lshl_b32 {qR}, {sCS}, 1")
    a(f"s_add_u32 {qR}, {qR}, {t1}")
    a(f"s_lshl_b32 {t1}, {qR}, 6")
    a(f"buffer_load_ushort {vXR}, {v(T[9])}, {SB}, {t1} offen")
    a(f"s_mov_b32 s44, s{P_C}")
    a(f"s_mov_b32 s45, s{P_C + 1}")
    a(f"buffer_load_dword {v(T[4])}, {v(T[2])}, {SB}, {t2} offen")
    vm_add("c")
    if cfg.qbar:
        a("s_barrier")
    tWQ.issue(cfg.qA)
    a(f"s_mov_b32 s4, s{P_WM}")
    a(f"s_mov_b32 s5, s{P_WM + 1}")
    VMQ = list(VM.q)
    common()
    a.c("======== Q: layernorm of x, silu(c)")
    VM.q = VMQ
    vm_wait("c")
    stamp(1)
    tWQ.issue()
    silu_c(False)
    XU = W3
    for i in range(8):
        a(f"v_lshlrev_b32 {v(XU + 2 * i)}, 16, {v(T[12 + i])}")
        a(f"v_and_b32 {v(XU + 2 * i + 1)}, 0xffff0000, {v(T[12 + i])}")
    a(f"v_lshlrev_b32 {v(T[20])}, 16, {v(T[20])}")
    a(f"v_add_f32 {v(T[0])}, {v(XU)}, {v(XU + 1)}")
    for i in range(2, 16):
        a(f"v_add_f32 {v(T[0])}, {v(T[0])}, {v(XU + i)}")
    allsum(v(T[0]), v(T[1]))
    a(f"v_mul_f32 {v(T[0])}, 0x3a800000, {v(T[0])}")
    a(f"v_mov_b32 {v(T[2])}, 0")
    for i in range(16):
        a(f"v_sub_f32 {v(XU + i)}, {v(XU + i)}, {v(T[0])}")
        a(f"v_fmac_f32 {v(T[2])}, {v(XU + i)}, {v(XU + i)}")
    allsum(v(T[2]), v(T[1]))
    a(f"v_mul_f32 {v(T[2])}, 0x3a800000, {v(T[2])}")
    ln_finish(v(T[20]), v(T[0]), v(T[2]), v(T[1]))
    a.c("======== Q: S2")
    tGA = tileB("ga", W3, vA3, 4096, sCS)
    srd(SB, P_WD, 7340032)
    a(f"s_and_b32 {t0}, {sCS}, 1")
    a(f"s_mul_i32 {t2}, {t0}, 224")
    a(f"s_mul_i32 {t1}, {sW}, 28")
    a(f"s_add_u32 {t2}, {t2}, {t1}")
    a(f"s_mul_i32 {t1}, {sKS}, 448")
    a(f"s_add_u32 {t4}, {t2}, {t1}")
    a(f"s_lshl_b32 {t4}, {t4}, 11")
    a(f"s_lshr_b32 {t3}, {sCS}, 1")
    a(f"s_lshl_b32 {t1}, {t3}, 8")
    a(f"s_add_u32 {t4}, {t4}, {t1}")
    tWD = Tile("wd", SB, W2, 7, vA4, 4 * 2048)
    tWD.addr(t4, 2048)
    a(f"s_lshl_b32 {pH5}, {t2}, 2")
    a(f"s_mul_i32 {t1}, {sKS}, 57344")
    a(f"s_add_u32 {pH5}, {pH5}, {t1}")
    a(f"s_add_u32 {pH5}, {pH5}, {H5}")
    a(f"s_add_u32 {pH5}, {pH5}, {sLG}")
    a(f"s_lshl_b32 {pH6}, {sKS}, 1")
    a(f"s_add_u32 {pH6}, {pH6}, {t0}")
    a(f"s_lshl_b32 {pH6}, {pH6}, 12")
    a(f"s_lshl_b32 {t1}, {t3}, 9")
    a(f"s_add_u32 {pH6}, {pH6}, {t1}")
    a(f"s_add_u32 {pH6}, {pH6}, {H6}")
    a(f"s_lshl_b32 {qXR}, {sKS}, 13")
    a(f"s_lshl_b32 {t3}, {qR}, 8")
    a(f"s_add_u32 {qXR}, {qXR}, {t3}")
    a(f"s_add_u32 {qXR}, {qXR}, {XR}")
    xr_items = [("buffer_store_dword", v(T[1]), vQE4, qXR, 0, M_N8),
                ("buffer_store_dwordx4", vr(T[20], 4), vL4, qXR, 128, 1)]
    a(f"s_lshl_b32 {t0}, s66, 2")
    a(f"s_add_u32 {t0}, {t0}, {MODN}")
    a(f"s_add_u32 {t0}, {t0}, {sLG}")
    a(f"s_add_u32 {t1}, {t0}, {4 * 24576}")
    a(f"s_lshl_b32 {t4}, {sKS}, 14")
    a(f"s_lshl_b32 {t3}, {sCS}, 10")
    a(f"s_add_u32 {t4}, {t4}, {t3}")
    a(f"s_lshl_b32 {t3}, {sW}, 8")
    a(f"s_add_u32 {t4}, {t4}, {t3}")
    a(f"s_add_u32 {t4}, {t4}, {H2}")
    a(f"s_lshl_b32 {t3}, {sW2}, 11")
    a(f"v_add_u32 {v(T[34])}, {t3}, {vFA}")
    if cfg.pre & 2:
        a(f"buffer_load_dword {v(F0)}, {vL4}, {WS}, {t4} offen{PRE}")
    if cfg.pre & 8:
        a(f"s_add_u32 {t3}, {pH6}, {sFA}")
        a(f"buffer_load_dword {v(F0 + 1)}, {vL4}, {WS}, {t3} offen{PRE}")
    srd(SA, P_WO, 8388608)
    a(f"s_and_b32 s66, {sGI}, 31")
    a(f"s_lshr_b32 s67, {sGI}, 5")
    a(f"s_lshr_b32 {t3}, s66, 3")
    a(f"s_lshl_b32 {t2}, {t3}, 10")
    a(f"s_and_b32 {t3}, s66, 7")
    a(f"s_lshl_b32 {t3}, {t3}, 4")
    a(f"s_add_u32 {t2}, {t2}, {t3}")
    a(f"s_and_b32 {t3}, {sW}, 3")
    a(f"s_lshl_b32 {t3}, {t3}, 2")
    a(f"s_add_u32 {t2}, {t2}, {t3}")
    a(f"s_lshl_b32 {t2}, {t2}, 11")
    a(f"s_lshl_b32 {t3}, s67, 9")
    a(f"s_add_u32 {t2}, {t2}, {t3}")
    a(f"s_lshr_b32 {t3}, {sW}, 2")
    a(f"s_lshl_b32 {t3}, {t3}, 8")
    a(f"s_add_u32 {t2}, {t2}, {t3}")
    tWO = Tile("wo", SA, W1, 8, vA2, 128 * 2048)
    tWO.addr(t2, 2048)
    vm_wait()
    stamp(3)
    poll("h1", pair_loads, pair_checks, back=cfg.lback)
    stamp(4)
    tWO.issue(cfg.q2a)
    pair_sum()
    mod_prep()
    modulate()
    if cfg.early & 1:
        signal_w(F_H2)
    gemv_bcast(D0, W0, 8)
    red_write_A(D0, L_RED1)
    barrier()
    sk = a.newlabel("f2")
    a(f"s_cmp_lt_u32 {sW}, 4")
    a(f"s_cbranch_scc0 {sk}")
    finalize(v(T[34]), [32, 34, 36, 38], t4)
    if not cfg.early & 1:
        a(f"s_cmp_eq_u32 {sW}, 0")
        a(f"s_cbranch_scc0 {sk}")
        signal_partner(F_H2)
    a.label(sk)
    a("s_barrier")
    stamp(5)
    a.c("======== Q: wo tile + gb tile")
    tGA.issue(cap=cfg.capQ2)
    tWO.issue(cap=cfg.capQ2)
    tWD.issue(cfg.q7a, cap=cfg.capQ2)
    a(f"s_and_b32 {t1}, {sW}, 3")
    a(f"s_lshl_b32 {t1}, {t1}, 8")
    a(f"s_add_u32 {t1}, {t1}, {L_XL}")
    a(f"v_add_u32 {v(T[33])}, {t1}, {vL4}")
    va, vb = v(T[31]), v(T[32])
    a(f"v_lshrrev_b32 {v(T[28])}, 3, {vL}")
    a(f"v_and_b32 {v(T[29])}, 7, {vL}")
    a(f"v_lshlrev_b32 {va}, 11, {v(T[28])}")
    a(f"v_lshl_add_u32 {va}, {v(T[29])}, 4, {va}")
    a(f"v_lshlrev_b32 {vb}, 8, {v(T[28])}")
    a(f"v_lshl_add_u32 {vb}, {v(T[29])}, 3, {vb}")
    a(f"s_lshl_b32 {t2}, s66, 14")
    a(f"s_lshl_b32 {t1}, {sW}, 7")
    a(f"s_add_u32 {t2}, {t2}, {t1}")
    a(f"s_add_u32 {t2}, {t2}, {H3O}")
    a(f"s_lshl_b32 {t3}, s66, 11")
    a(f"s_add_u32 {t3}, {t3}, {H3ML}")
    a(f"s_lshl_b32 s59, s66, 12")
    a(f"s_lshl_b32 {t1}, s67, 10")
    a(f"s_add_u32 s59, s59, {t1}")
    a(f"s_lshl_b32 {t1}, {sW}, 8")
    a(f"s_add_u32 s59, s59, {t1}")
    a(f"s_add_u32 s59, s59, {H4}")
    if cfg.pre & 4:
        a(f"buffer_load_dword {v(T[35])}, {vL4}, {WS}, s59 offen{PRE}")
    vm_wait("ga")
    gemv_regs(D0, W3, vXB)
    red_write_B(D0, L_RED0 + 4096)
    barrier()
    a(f"s_lshl_b32 {t4}, {sCS}, 8")
    a(f"s_add_u32 {t4}, {t4}, 8192")
    finalize_B(4, L_RED0 + 4096, t4)
    a(f"s_mov_b32 {t1}, {LOG2E}")
    if not cfg.g3:
        vm_wait()
    stamp(6)
    gate(F_H3)
    stamp(11)
    a(f"s_cmp_lt_u32 {sW}, 4")
    a("s_cbranch_scc0 L_s4_wait")

    def h3_loads():
        for i in range(4):
            a(f"buffer_load_dwordx2 {vr(T[16 + 2 * i], 2)}, {vb}, {WS}, {t3} offen offset:{64 * i} sc1")
        for i in range(4):
            a(f"buffer_load_dwordx4 {vr(T[4 * i], 4)}, {va}, {WS}, {t2} offen offset:{512 * i} sc1")

    def h3_checks():
        clean(g4([T[0], T[4], T[8], T[12]]) + [(T[17 + 2 * i], sT[0]) for i in range(4)])
        a(f"v_and_b32 {v(T[24])}, 0xff, {vBAD}")
        clean([(T[16 + 2 * i], sT16) for i in range(4)])
        a(f"v_and_b32 {vBAD}, 0xffff, {vBAD}")
        a(f"v_or_b32 {vBAD}, {vBAD}, {v(T[24])}")
    poll("h3", h3_loads, h3_checks)
    stamp(12)
    a(f"v_max3_f32 {v(T[24])}, {v(T[16])}, {v(T[18])}, {v(T[20])}")
    a(f"v_max_f32 {v(T[24])}, {v(T[24])}, {v(T[22])}")
    a(f"v_max_f32_dpp {v(T[24])}, {v(T[24])}, {v(T[24])} row_ror:8{DPP}")
    rowsum(v(T[24]), v(T[25]), "max")
    for i in range(4):
        a(f"v_sub_f32 {v(T[16 + 2 * i])}, {v(T[16 + 2 * i])}, {v(T[24])}")
    for i in range(4):
        a(f"v_mul_f32 {v(T[16 + 2 * i])}, {t1}, {v(T[16 + 2 * i])}")
    for i in range(4):
        a(f"v_exp_f32 {v(T[16 + 2 * i])}, {v(T[16 + 2 * i])}")
    a(f"v_mul_f32 {v(T[24])}, {v(T[16])}, {v(T[17])}")
    for i in range(1, 4):
        a(f"v_fmac_f32 {v(T[24])}, {v(T[16 + 2 * i])}, {v(T[17 + 2 * i])}")
    for d in range(4):
        a(f"v_mul_f32 {v(T[d])}, {v(T[16])}, {v(T[d])}")
    a(f"v_add_f32_dpp {v(T[24])}, {v(T[24])}, {v(T[24])} row_ror:8{DPP}")
    for i in range(1, 4):
        for d in range(4):
            a(f"v_fmac_f32 {v(T[d])}, {v(T[16 + 2 * i])}, {v(T[4 * i + d])}")
    rowsum(v(T[24]), v(T[25]), "add")
    a(f"v_rcp_f32 {v(T[24])}, {v(T[24])}")
    col32_reduce(T[0])
    a(f"v_mul_f32 {v(T[0])}, {v(T[0])}, {v(T[24])}")
    a(f"v_cvt_pk_bf16_f32 {vX}, {v(T[0])}, {v(T[0])}")
    a(f"ds_write_b32 {v(T[33])}, {vX}")
    a.label("L_s4_wait")
    a("s_waitcnt vmcnt(0)")
    barrier()
    a(f"ds_read_b32 {vX}, {v(T[33])}")
    tWD.issue(cfg.q7b)
    a("s_waitcnt lgkmcnt(0)")
    gemv_bcast(D0, W1, 8)
    red_write_A(D0, L_RED0)
    barrier()
    sk = a.newlabel("f4")
    a(f"s_cmp_lt_u32 {sW}, 4")
    a(f"s_cbranch_scc0 {sk}")
    finalize(v(T[34]), [0, 2, 4, 6], "s59")
    a.label(sk)
    stamp(13)
    if cfg.q7c > tWD.next:
        a("s_barrier")
        tWD.issue(cfg.q7c)
    a.c("======== Q: x1 slices (waves 0, 1)")
    a(f"s_cmp_lt_u32 {sW}, 2")
    a("s_cbranch_scc0 L_s5_done")
    va = v(T[24])
    a(f"v_lshrrev_b32 {v(T[27])}, 3, {vL}")
    a(f"v_and_b32 {v(T[28])}, 7, {vL}")
    a(f"v_lshlrev_b32 {v(T[28])}, 4, {v(T[28])}")
    a(f"v_lshl_add_u32 {va}, {v(T[27])}, 12, {v(T[28])}")
    a(f"s_lshl_b32 {t5}, {qR}, 7")
    a(f"s_add_u32 {t0}, {t5}, {H4}")
    a(f"s_add_u32 {t1}, {t0}, 32768")
    a(f"s_add_u32 {t2}, {t0}, 65536")
    a(f"s_add_u32 {t3}, {t0}, 98304")
    a(f"s_add_u32 {t4}, {t5}, {MODP + 2048 * 4}")
    a(f"v_lshlrev_b32 {vXR}, 16, {vXR}")
    a(f"v_mov_b32 {v(T[21])}, {sT32}")
    a(f"v_mov_b32 {v(T[23])}, {sT32}")
    a("s_waitcnt vmcnt(0)")

    def h4_loads():
        for i, s_ in enumerate((t0, t1, t2, t3)):
            a(f"buffer_load_dwordx4 {vr(T[4 * i], 4)}, {va}, {WS}, {s_} offen sc1")
        a(f"buffer_load_dwordx4 {vr(T[16], 4)}, {vOB}, {WS}, {t4} offen sc1")

    def h4_checks():
        clean(g4([T[0], T[4], T[8], T[12], T[16]]))
        a(f"v_and_b32 {vBAD}, 0xff, {vBAD}")
    poll("h4", h4_loads, h4_checks)
    stamp(8)
    for d in range(4):
        a(f"v_add_f32 {v(T[d])}, {v(T[d])}, {v(T[4 + d])}")
        a(f"v_add_f32 {v(T[8 + d])}, {v(T[8 + d])}, {v(T[12 + d])}")
    for d in range(4):
        a(f"v_add_f32 {v(T[d])}, {v(T[d])}, {v(T[8 + d])}")
    swapred2(T[0], T[16])
    a(f"v_add_f32_dpp {v(T[0])}, {v(T[0])}, {v(T[0])} row_ror:8{DPP}")
    a(f"v_add_f32_dpp {v(T[16])}, {v(T[16])}, {v(T[16])} row_ror:8{DPP}")
    rnd(v(T[0]), v(T[0]))
    rnd(v(T[16]), v(T[16]))
    a(f"v_mul_f32 {v(T[0])}, {v(T[0])}, {v(T[16])}")
    rnd(v(T[0]), v(T[0]))
    a(f"v_add_f32 {v(T[0])}, {v(T[0])}, {vXR}")
    rnd(v(T[0]), v(T[0]))
    a(f"v_or_b32 {v(T[1])}, {vTE}, {v(T[0])}")
    a(f"v_mov_b32 {v(T[20])}, {v(T[0])}")
    allsum(v(T[20]), v(T[2]))
    a(f"v_mul_f32 {v(T[20])}, 0x3c800000, {v(T[20])}")
    a(f"v_sub_f32 {v(T[22])}, {v(T[0])}, {v(T[20])}")
    a(f"v_mul_f32 {v(T[22])}, {v(T[22])}, {v(T[22])}")
    allsum(v(T[22]), v(T[2]))
    a(f"v_mul_f32 {v(T[22])}, 0.5, {v(T[22])}")
    store2(xr_items)
    stamp(9)
    a.label("L_s5_done")
    a("s_barrier")
    a.c("======== Q: w_down tile")
    VM.q = []
    tWD.issue()
    va = v(T[24])
    a(f"v_mul_u32_u24 {va}, 3584, {vG}")
    a(f"v_bfe_u32 {v(T[25])}, {vL}, 3, 1")
    a(f"v_mul_u32_u24 {v(T[25])}, 1792, {v(T[25])}")
    a(f"v_add_u32 {va}, {va}, {v(T[25])}")
    a(f"v_and_b32 {v(T[25])}, 7, {vL}")
    a(f"v_min_u32 {v(T[25])}, 6, {v(T[25])}")
    a(f"v_lshl_add_u32 {va}, {v(T[25])}, 4, {va}")
    for u in range(1, 4):
        a(f"s_add_u32 {[t0, t1, t2][u - 1]}, {pH5}, {14336 * u}")
    vm_wait()
    stamp(7)

    def h5_loads():
        for u, so in enumerate((pH5, t0, t1, t2)):
            a(f"buffer_load_dwordx4 {vr(T[4 * u], 4)}, {va}, {WS}, {so} offen sc1")
    poll("h5", h5_loads, h2_checks, back=cfg.lback)
    stamp(10)
    for d in range(8):
        a(f"v_add_f32 {v(T[d])}, {v(T[d])}, {v(T[8 + d])}")
    for d in range(4):
        a(f"v_add_f32 {v(T[d])}, {v(T[d])}, {v(T[4 + d])}")
    swapred(T[0])
    rnd(v(T[0]), v(T[0]))
    silu(v(T[2]), v(T[0]), v(T[3]))
    rnd(v(T[2]), v(T[2]))
    a(f"v_mul_f32_dpp {v(T[2])}, {v(T[0])}, {v(T[2])} row_ror:8{DPP}")
    a(f"v_cvt_pk_bf16_f32 {vX}, {v(T[2])}, {v(T[2])}")
    gemv_bcast(D0, W2, 7)
    red_write_A(D0, L_RED1)
    barrier()
    finalize_A(L_RED1, pH6)
    stamp(2)
    a.c("======== Q: final reduction on gi < 32, wave 0")
    a(f"s_cmp_lt_u32 {sGI}, 32")
    a("s_cbranch_scc0 L_fin")
    a(f"s_cmp_eq_u32 {sW}, 0")
    a("s_cbranch_scc0 L_fin")
    va = v(T[24])
    a(f"v_lshrrev_b32 {v(T[27])}, 3, {vL}")
    a(f"v_and_b32 {v(T[28])}, 7, {vL}")
    a(f"v_lshlrev_b32 {v(T[28])}, 4, {v(T[28])}")
    a(f"v_lshl_add_u32 {va}, {v(T[27])}, 12, {v(T[28])}")
    a(f"s_lshl_b32 {t3}, {sGI}, 7")
    a(f"s_add_u32 {t0}, {t3}, {H6}")
    a(f"s_add_u32 {t1}, {t0}, 32768")
    a(f"s_add_u32 {t2}, {t3}, {MODP + 5120 * 4}")
    a(f"s_lshl_b32 {t3}, {sGI}, 8")
    a(f"s_lshl_b32 {t4}, {sKS}, 13")
    a(f"s_add_u32 {t3}, {t3}, {t4}")
    a(f"s_add_u32 {t3}, {t3}, {XR}")
    a(f"s_add_u32 {t3}, {t3}, {sLG}")
    srd(SA, P_OUT, 2048)
    a(f"v_lshrrev_b32 {v(T[26])}, 1, {vQE4}")
    a(f"s_lshl_b32 {t4}, {sGI}, 6")
    if not cfg.early & 64:
        a("s_waitcnt vmcnt(0)")

    def h6_loads():
        a(f"buffer_load_dwordx4 {vr(T[0], 4)}, {va}, {WS}, {t0} offen sc1")
        a(f"buffer_load_dwordx4 {vr(T[4], 4)}, {va}, {WS}, {t1} offen sc1")
        a(f"buffer_load_dwordx4 {vr(T[8], 4)}, {vOB}, {WS}, {t2} offen sc1")
        a(f"buffer_load_dword {v(T[12])}, {vQE4}, {WS}, {t3} offen sc1")

    def h6_checks():
        clean(g4([T[0], T[4], T[8]]) + [(T[12], vTE)])
        a(f"v_and_b32 {vBAD}, 0xff, {vBAD}")
    poll("h6", h6_loads, h6_checks)
    for d in range(4):
        a(f"v_add_f32 {v(T[d])}, {v(T[d])}, {v(T[4 + d])}")
    swapred2(T[0], T[8])
    a(f"v_add_f32_dpp {v(T[0])}, {v(T[0])}, {v(T[0])} row_ror:8{DPP}")
    a(f"v_add_f32_dpp {v(T[8])}, {v(T[8])}, {v(T[8])} row_ror:8{DPP}")
    rnd(v(T[0]), v(T[0]))
    rnd(v(T[8]), v(T[8]))
    a(f"v_mul_f32 {v(T[0])}, {v(T[0])}, {v(T[8])}")
    rnd(v(T[0]), v(T[0]))
    a(f"v_add_f32 {v(T[0])}, {v(T[0])}, {v(T[12])}")
    a(f"v_cvt_pk_bf16_f32 {v(T[0])}, {v(T[0])}, {v(T[0])}")
    mask_n8()
    a(f"buffer_store_short {v(T[0])}, {v(T[26])}, {SA}, {t4} offen")
    a("s_mov_b64 exec, -1")
    stamp(14)
    a(f"s_cmp_eq_u32 {sGI}, 0")
    a("s_cbranch_scc0 L_fin")
    a("s_mov_b64 exec, 1")
    a(f"buffer_store_dword {vT32}, {vL4}, {WS}, 0 offen offset:{EPOCH}")
    a("s_mov_b64 exec, -1")
    if cfg.amp:
        a("s_memrealtime s[60:61]")
        a("s_waitcnt lgkmcnt(0)")
        a("s_sub_u32 s62, s98, s100")
        a(f"s_mul_i32 s62, s62, {cfg.amp}")
        a.label("L_amp")
        a("s_memrealtime s[64:65]")
        a("s_waitcnt lgkmcnt(0)")
        a("s_sub_u32 s63, s64, s60")
        a("s_cmp_lt_u32 s63, s62")
        a("s_cbranch_scc1 L_amp")
    a.label("L_fin")
    write_stamps()
    a.label("L_end")
    a("s_endpgm")

    hdr = open("cdna_kernels/" + NAME + ".s.ref").read().split("; @launch")[0]
    out = hdr
    out += f"; @launch grid=(256,1,1) block=(512,1,1) lds={LDS_BYTES}\n"
    out += '.amdgcn_target "amdgcn-amd-amdhsa--gfx950"\n.text\n'
    out += f".globl {NAME}_kernel\n.p2align 8\n.type {NAME}_kernel,@function\n"
    out += a.text()
    out += f""".section .rodata,"a"
.p2align 6
.amdhsa_kernel {NAME}_kernel
  .amdhsa_next_free_vgpr 256
  .amdhsa_next_free_sgpr 102
  .amdhsa_accum_offset 256
  .amdhsa_group_segment_fixed_size 0
  .amdhsa_kernarg_size 112
  .amdhsa_user_sgpr_count 2
  .amdhsa_user_sgpr_kernarg_segment_ptr 1
  .amdhsa_system_sgpr_workgroup_id_x 1
.end_amdhsa_kernel
"""
    if cfg.nomem:
        for n in (12582912, 8388608, 7340032, 67108864):
            out = out.replace(f", {n}\n", ", 0\n")
    return out, a.ninstr


if __name__ == "__main__":
    cfg = Cfg()
    outp = sys.argv[1]
    for kv in sys.argv[2:]:
        k, val = kv.split("=")
        setattr(cfg, k, type(getattr(cfg, k))(int(val)))
    txt, n = gen(cfg)
    open(outp, "w").write(txt)
    print("wrote", outp, n, "instructions")
```

```python
import sys
from asmlib import Asm

NAME = "adaLN_cond__sliding_block_cached__swiglu_ffn__decode"

EPOCH = 0
MODN = 0x1000
XR = 0x31000
H5 = 0x41000
GOFF = 0xB0000
MODP = MODN + GOFF
H2 = 0x161000
H3O = 0x181000
H3ML = 0x201000
H4 = 0x211000
H6 = 0x231000
FLG = 0x241000
STAMP = 0x251000
WS_USED = 0x260000
F_H2, F_H3 = 0, 1

L_K = 0
L_V = 32768
L_RED0 = 65536
L_RED1 = L_RED0 + 8192
L_QS = L_RED1 + 4096
L_PS = L_QS + 8 * 272
L_WM = L_PS + 8 * 272
L_XL = L_WM + 256
LDS_BYTES = L_XL + 1024

TAGK = 0x9D6B5A37
LOG2E = 0x3FB8AA3B
SCALE = 0x3DB504F3
EPS = 0x3727C5AC


PN = ["", "h1", "h2", "h3", "h4", "h5", "h6", "h5a", "sbcb"]


class Cfg:
    nt = True
    stamps = False
    amp = 0
    ampA = 0
    ampB = 14
    backoff = 0
    mback = 16
    mask = 1
    pre = 0
    cpf = 0
    g2 = 1
    g3 = 1
    qbar = 1
    sw = 0
    prep = 0
    cnt = 0
    lback = 2
    far = 0
    predirty = 0
    qA = 8
    capP3 = 5
    capN = 16
    capP4 = 0
    capQ2 = 0
    early = 0
    nomem = 0
    kv0 = 0
    kv1 = 2
    p3a = 4
    p3b = 3
    q2a = 0
    q7a = 2
    q7b = 0
    q7c = 0
    gbe = 1


def gen(cfg):
    a = Asm()
    NT = " nt" if cfg.nt else ""
    PRE = ["", " sc1", " nt"][cfg.prep]
    P_X, P_K, P_V, P_WQ, P_WO, P_BX, P_WG, P_WU = 8, 10, 12, 14, 16, 18, 20, 22
    P_WD, P_C, P_WM, P_OUT, P_DBG, P_WS = 24, 26, 28, 30, 32, 34
    WS = "s[36:39]"
    SA = "s[40:43]"
    SB = "s[44:47]"
    SM = "s[4:7]"
    sLG, tG = "s0", "s1"
    pMC = "s14"
    qXR, qR, pH5, pH6 = "s10", "s11", "s12", "s13"
    sW, sGI, sKS, sCS = "s48", "s49", "s50", "s51"
    sT = ["s52", "s53", "s54", "s55"]
    sT32, sT16 = "s56", "s57"
    sMROW = "s58"
    t0, t1, t2, t3, t4, t5 = "s60", "s61", "s62", "s63", "s64", "s65"
    sSPIN = "s70"
    sO6, sR6 = "s18", "s19"
    sKVL, sKVO = "s59", "s8"
    sFA, sW2, sMODK = "s3", "s32", "s33"
    vL, vN, vG = "v1", "v2", "v3"
    vM = ["v4", "v5", "v6", "v7"]
    vFF, vTL, vTE = "v8", "v9", "v10"
    vOB = "v11"
    vRW = "v12"
    vRB = "v13"
    vL4 = "v14"
    vXB = ["v15", "v16"]
    vXA = ["v17", "v18", "v19", "v20"]
    vBAD = "v21"
    vX = "v22"
    vLN = "v23"
    vT32 = "v0"
    A0, A1 = 24, 28
    D0, D1 = 32, 36
    T = list(range(40, 76))
    vXR, vONE, vFA, vMP = "v76", "v77", "v78", "v79"
    F0 = 80
    vQE4 = "v96"
    vA1, GU, vA4 = "v97", 98, "v100"
    vA2, vA3, vSH, vSC = "v252", "v253", "v254", "v255"
    vKV = [101, 102, 103, 104, 105, 106]
    vSTA = "v107"
    W0, W1, W2, W3 = 108, 140, 172, 204

    def v(i):
        return f"v{i}"

    def vr(i, n):
        return f"v[{i}:{i + n - 1}]"

    def srd(dst, ptr, nbytes):
        b = int(dst[2:dst.index(":")])
        a(f"s_mov_b32 s{b}, s{ptr}")
        a(f"s_mov_b32 s{b + 1}, s{ptr + 1}")
        a(f"s_mov_b32 s{b + 2}, {nbytes}")
        a(f"s_mov_b32 s{b + 3}, 0x00020000")

    def stamp(i):
        if cfg.amp and cfg.ampA == i:
            a("s_memrealtime s[100:101]")
        if cfg.amp and cfg.ampB == i:
            a("s_memrealtime s[98:99]")
        if cfg.stamps:
            a(f"s_memrealtime s[{72 + 2 * i}:{73 + 2 * i}]")

    def rnd(dst, src):
        a(f"v_cvt_pk_bf16_f32 {dst}, {src}, {src}")
        a(f"v_and_b32 {dst}, 0xffff0000, {dst}")

    DPP = " row_mask:0xf bank_mask:0xf"

    def allsum(x, tmp, op="add"):
        o = f"v_{op}_f32"
        a(f"{o}_dpp {x}, {x}, {x} quad_perm:[1,0,3,2]{DPP}")
        a(f"{o}_dpp {x}, {x}, {x} quad_perm:[2,3,0,1]{DPP}")
        a(f"{o}_dpp {x}, {x}, {x} row_half_mirror{DPP}")
        a(f"{o}_dpp {x}, {x}, {x} row_mirror{DPP}")
        rowsum(x, tmp, op)

    def rowsum(x, tmp, op="add"):
        o = f"v_{op}_f32"
        a(f"v_mov_b32 {tmp}, {x}")
        a(f"v_permlane16_swap_b32 {x}, {tmp}")
        a(f"{o} {x}, {x}, {tmp}")
        a(f"v_mov_b32 {tmp}, {x}")
        a(f"v_permlane32_swap_b32 {x}, {tmp}")
        a(f"{o} {x}, {x}, {tmp}")

    def swapred(x):
        a(f"v_permlane32_swap_b32 {v(x)}, {v(x + 2)}")
        a(f"v_permlane32_swap_b32 {v(x + 1)}, {v(x + 3)}")
        a(f"v_add_f32 {v(x)}, {v(x)}, {v(x + 2)}")
        a(f"v_add_f32 {v(x + 1)}, {v(x + 1)}, {v(x + 3)}")
        a(f"v_permlane16_swap_b32 {v(x)}, {v(x + 1)}")
        a(f"v_add_f32 {v(x)}, {v(x)}, {v(x + 1)}")

    def swapred2(x, y):
        for z in (x, y):
            a(f"v_permlane32_swap_b32 {v(z)}, {v(z + 2)}")
            a(f"v_permlane32_swap_b32 {v(z + 1)}, {v(z + 3)}")
        for z in (x, y):
            a(f"v_add_f32 {v(z)}, {v(z)}, {v(z + 2)}")
            a(f"v_add_f32 {v(z + 1)}, {v(z + 1)}, {v(z + 3)}")
        for z in (x, y):
            a(f"v_permlane16_swap_b32 {v(z)}, {v(z + 1)}")
        for z in (x, y):
            a(f"v_add_f32 {v(z)}, {v(z)}, {v(z + 1)}")

    def silu(dst, src, tmp):
        a(f"v_mul_f32 {tmp}, 0xbfb8aa3b, {src}")
        a(f"v_exp_f32 {tmp}, {tmp}")
        a(f"v_add_f32 {tmp}, 1.0, {tmp}")
        a(f"v_rcp_f32 {tmp}, {tmp}")
        a(f"v_mul_f32 {dst}, {src}, {tmp}")

    def clean(pairs):
        for r, t in pairs:
            a(f"v_xor_b32 {v(r)}, {t}, {v(r)}")
        regs = [r for r, _ in pairs]
        if len(regs) == 1:
            a(f"v_mov_b32 {vBAD}, {v(regs[0])}")
            return
        if len(regs) % 2 == 0:
            a(f"v_or_b32 {vBAD}, {v(regs[0])}, {v(regs[1])}")
            regs = regs[2:]
        else:
            a(f"v_or3_b32 {vBAD}, {v(regs[0])}, {v(regs[1])}, {v(regs[2])}")
            regs = regs[3:]
        for i in range(0, len(regs), 2):
            a(f"v_or3_b32 {vBAD}, {vBAD}, {v(regs[i])}, {v(regs[i + 1])}")

    def g4(regs):
        return [(r + d, sT[d]) for r in regs for d in range(4)]

    def poll(name, loads, checks, back=None, after=None):
        lw = a.newlabel(name + "_w")
        ld = a.newlabel(name + "_d")
        loads()
        a("s_waitcnt vmcnt(0)")
        VM.q = []
        if name == PN[cfg.cnt]:
            stamp(1)
        if after:
            after()
        a.label(lw)
        checks()
        a(f"v_cmp_ne_u32 vcc, 0, {vBAD}")
        a(f"s_cbranch_vccz {ld}")
        msk = cfg.mask and name not in ("h5a", "h6", "h3")
        if msk:
            a("s_mov_b64 exec, vcc")
        back = cfg.backoff if back is None else back
        if back:
            a(f"s_sleep {back}")
        loads()
        if cfg.stamps and cfg.cnt in (0, PN.index(name)):
            a("s_add_u32 s71, s71, 1")
        a(f"s_sub_u32 {sSPIN}, {sSPIN}, 1")
        a("s_waitcnt vmcnt(0)")
        a(f"s_cbranch_scc0 {lw}")
        a(f"s_mov_b32 {sSPIN}, 0")
        a.label(ld)
        if msk:
            a("s_mov_b64 exec, -1")

    def gate(h):
        lp = a.newlabel("gate")
        ld = a.newlabel("gated")
        a(f"s_cmp_eq_u32 {sW}, 0")
        a(f"s_cbranch_scc0 {ld}")
        a("s_lshl_b32 s68, s2, 7")
        a(f"s_add_u32 s68, s68, {FLG + h * 32768}")
        a.label(lp)
        a(f"s_buffer_load_dword s69, {WS}, s68 glc")
        a("s_waitcnt lgkmcnt(0)")
        a(f"s_cmp_eq_u32 s69, {sT32}")
        a(f"s_cbranch_scc1 {ld}")
        a(f"s_sub_u32 {sSPIN}, {sSPIN}, 1")
        a(f"s_cbranch_scc0 {lp}")
        a(f"s_mov_b32 {sSPIN}, 0")
        a.label(ld)
        barrier()

    def signal_partner(h):
        a("s_xor_b32 s68, s2, 8")
        a("s_lshl_b32 s68, s68, 7")
        a(f"s_add_u32 s68, s68, {FLG + h * 32768}")
        a("s_mov_b64 exec, 1")
        a(f"buffer_store_dword {vT32}, {vL4}, {WS}, s68 offen sc1")
        a("s_mov_b64 exec, -1")

    def signal_w(h, wave=7):
        sk = a.newlabel("sg")
        a(f"s_cmp_eq_u32 {sW}, {wave}")
        a(f"s_cbranch_scc0 {sk}")
        signal_partner(h)
        a.label(sk)

    def setexec(m):
        if m == -1:
            a("s_mov_b64 exec, -1")
        elif m < 64:
            a(f"s_mov_b64 exec, {m}")
        else:
            a(f"s_mov_b32 exec_lo, {m & 0xffffffff:#x}")
            a(f"s_mov_b32 exec_hi, {m >> 32:#x}")

    def store2(items, defer=False):
        l1 = a.newlabel("sn")
        l2 = a.newlabel("sf")

        def emit(far, sc):
            cur = -1
            for op, data, va, so, imm, m in items:
                if m != cur:
                    setexec(m)
                    cur = m
                if far:
                    a(f"s_add_u32 {tG}, {so}, {GOFF}")
                    so = tG
                a(f"{op} {data}, {va}, {WS}, {so} offen offset:{imm}{sc}")
            if cur != -1:
                setexec(-1)
        a(f"s_cmp_eq_u32 {sLG}, 0")
        a(f"s_cbranch_scc0 {l1}")
        emit(False, "")
        if defer:
            a(f"s_branch {l2}")
        a.label(l1)
        emit(True, " sc1")
        if not defer:
            a(f"s_cmp_eq_u32 {sLG}, 0")
            a(f"s_cbranch_scc1 {l2}")
        emit(False, " sc1")
        a.label(l2)

    def far_A(soff):
        sk = a.newlabel("df")
        a(f"s_add_u32 {tG}, {soff}, {GOFF}")
        a(f"s_cmp_eq_u32 {sW2}, 0")
        a(f"s_cbranch_scc0 {sk}")
        a(f"buffer_store_dword {v(F0)}, {vL4}, {WS}, {tG} offen sc1")
        a.label(sk)

    def predirty(items):
        if not cfg.predirty:
            return
        l1 = a.newlabel("pd")
        a(f"s_cmp_eq_u32 {sLG}, 0")
        a(f"s_cbranch_scc0 {l1}")
        for op, data, va, so, imm, m in items:
            setexec(m)
            a(f"{op} {data}, {va}, {WS}, {so} offen offset:{imm}")
        setexec(-1)
        a.label(l1)

    def gemv_bcast(D, wbase, nt_):
        def prep(t):
            A = A0 if t % 2 == 0 else A1
            for d in range(4):
                a(f"v_and_b32_dpp {v(A + d)}, {vX}, {vM[d]} row_newbcast:{t}{DPP}")
        prep(0)
        for t in range(nt_):
            if t + 1 < nt_:
                prep(t + 1)
            A = A0 if t % 2 == 0 else A1
            c = "0" if t == 0 else vr(D, 4)
            a(f"v_mfma_f32_16x16x32_bf16 {vr(D, 4)}, {vr(A, 4)}, {vr(wbase + 4 * t, 4)}, {c}")

    def gemv_regs(D, wbase, xs):
        def prep(t):
            A = A0 if t % 2 == 0 else A1
            for d in range(4):
                a(f"v_and_b32 {v(A + d)}, {xs[t]}, {vM[d]}")
        prep(0)
        for t in range(len(xs)):
            if t + 1 < len(xs):
                prep(t + 1)
            A = A0 if t % 2 == 0 else A1
            c = "0" if t == 0 else vr(D, 4)
            a(f"v_mfma_f32_16x16x32_bf16 {vr(D, 4)}, {vr(A, 4)}, {vr(wbase + 4 * t, 4)}, {c}")

    def red_write_A(D, red):
        a("s_mov_b32 exec_hi, 0")
        a(f"ds_write_b128 {vRW}, {vr(D, 4)} offset:{red - L_RED0}")
        a("s_mov_b32 exec_hi, -1")

    def red_write_B(D, red):
        a("s_mov_b32 exec_lo, 0x00ff00ff")
        a("s_mov_b32 exec_hi, 0xff00ff00")
        a(f"ds_write_b128 {vRB}, {vr(D, 4)} offset:{red - L_RED0}")
        a("s_mov_b64 exec, -1")

    def finalize(vaddr, offs, soff, near=0):
        n = len(offs)
        for i in range(0, n, 2):
            a(f"ds_read2st64_b32 {vr(F0 + i, 2)}, {vaddr} offset0:{offs[i]} offset1:{offs[i + 1]}")
        a("s_waitcnt lgkmcnt(0)")
        step = 1
        while step < n:
            for i in range(0, n, 2 * step):
                a(f"v_add_f32 {v(F0 + i)}, {v(F0 + i)}, {v(F0 + i + step)}")
            step *= 2
        a(f"v_bfi_b32 {v(F0)}, {vFF}, {vTL}, {v(F0)}")
        if near:
            store2([("buffer_store_dword", v(F0), vL4, soff, 0, -1)], defer=near == 2)
        else:
            a(f"buffer_store_dword {v(F0)}, {vL4}, {WS}, {soff} offen sc1")

    def barrier():
        a("s_waitcnt lgkmcnt(0)")
        a("s_barrier")

    def finalize_A(red, sbase, w0=0, sig=None, near=0):
        sk = a.newlabel("fa")
        if not near:
            a(f"s_add_u32 {t5}, {sFA}, {sbase}")
        a(f"s_cmp_eq_u32 {sW2}, {w0 // 2}")
        a(f"s_cbranch_scc0 {sk}")
        o = (red - L_RED0) // 256
        finalize(vFA, [o + 2 * i for i in range(8)], sbase if near else t5, near)
        if sig is not None:
            a(f"s_cmp_eq_u32 {sW}, {w0}")
            a(f"s_cbranch_scc0 {sk}")
            signal_partner(sig)
        a.label(sk)

    def finalize_B(wave, red, colbytes):
        assert wave % 2 == 0
        sk = a.newlabel("fb")
        a(f"s_add_u32 {t5}, {sMODK}, {colbytes}")
        a(f"s_cmp_eq_u32 {sW}, {wave}")
        a(f"s_cbranch_scc0 {sk}")
        o = (red - L_RED0) // 256
        finalize(vFA, [o + i for i in range(16)], t5)
        a.label(sk)

    def predirty_A(soff):
        sk = a.newlabel("pa")
        a(f"s_cmp_eq_u32 {sW2}, 0")
        a(f"s_cbranch_scc0 {sk}")
        a(f"v_not_b32 {v(F0 + 8)}, {vTL}")
        predirty([("buffer_store_dword", v(F0 + 8), vL4, soff, 0, -1)])
        a.label(sk)

    def mod_prep():
        rnd(vSH, v(T[0]))
        a(f"v_add_f32_dpp {vSC}, {vSH}, {vONE} row_ror:8{DPP}")
        rnd(vSC, vSC)

    def modulate(sc=vSC):
        a(f"v_mul_f32 {v(T[1])}, {vLN}, {sc}")
        rnd(v(T[1]), v(T[1]))
        a(f"v_add_f32 {v(T[1])}, {v(T[1])}, {vSH}")
        a(f"v_cvt_pk_bf16_f32 {vX}, {v(T[1])}, {v(T[1])}")

    def ln_stats(mean, var):
        rnd(var, var)
        rnd(mean, mean)
        a(f"v_add_f32 {var}, {EPS}, {var}")
        rnd(var, var)
        a(f"v_sqrt_f32 {var}, {var}")
        rnd(var, var)
        a(f"v_rcp_f32 {var}, {var}")

    def ln_apply(xval, mean, rstd, tmp):
        a(f"v_sub_f32 {tmp}, {xval}, {mean}")
        rnd(tmp, tmp)
        a(f"v_mul_f32 {tmp}, {tmp}, {rstd}")
        rnd(vLN, tmp)

    def ln_finish(xval, mean, var, tmp):
        ln_stats(mean, var)
        ln_apply(xval, mean, var, tmp)

    class VM:
        q = []

    def vm_add(tag):
        VM.q.append(tag)

    def vm_wait(tag=None):
        if tag is None:
            n = 0
        else:
            if tag not in VM.q:
                return
            idx = max(i for i, t in enumerate(VM.q) if t == tag)
            n = len(VM.q) - 1 - idx
        a(f"s_waitcnt vmcnt({n})")
        VM.q = VM.q[len(VM.q) - n:] if n else []

    class Tile:
        def __init__(self, name, srdname, wreg, n, va, tstep):
            self.name, self.srd, self.wreg, self.n, self.va, self.tstep = name, srdname, wreg, n, va, tstep
            self.next = 0

        def addr(self, sbase, gstep):
            a(f"v_mul_u32_u24 {self.va}, {gstep}, {vG}")
            a(f"v_lshl_add_u32 {self.va}, {vN}, 4, {self.va}")
            a(f"v_add_u32 {self.va}, {sbase}, {self.va}")

        def issue(self, upto=None, cap=0):
            upto = self.n if upto is None else min(upto, self.n)
            while self.next < upto:
                t = self.next
                if cap and len(VM.q) >= cap:
                    a(f"s_waitcnt vmcnt({cap - 1})")
                    VM.q = VM.q[len(VM.q) - (cap - 1):] if cap > 1 else []
                self.load(t)
                vm_add(self.name)
                self.next += 1

        def load(self, t):
            so = "0"
            if t:
                so = "s69" if t % 2 else "s68"
                a(f"s_mov_b32 {so}, {t * self.tstep}")
            a(f"buffer_load_dwordx4 {vr(self.wreg + 4 * t, 4)}, {self.va}, {self.srd}, {so} offen{NT}")

    class TileG(Tile):
        def load(self, t):
            if cfg.nomem:
                a(f"buffer_load_dwordx4 {vr(self.wreg + 4 * t, 4)}, {vL4}, {SM}, 0 offen{NT}")
                return
            if t:
                a(f"v_add_co_u32 {v(GU)}, vcc, {4 * 7168}, {v(GU)}")
                a(f"v_addc_co_u32 {v(GU + 1)}, vcc, 0, {v(GU + 1)}, vcc")
            a(f"global_load_dwordx4 {vr(self.wreg + 4 * t, 4)}, {vr(GU, 2)}, off{NT}")

    def tileB(name, wreg, va, colbase, cs):
        tl = Tile(name, SM, wreg, 2, va, 12288)
        a(f"s_lshl_b32 {t0}, {cs}, 7")
        a(f"s_add_u32 {t0}, {t0}, {sMROW}")
        a(f"s_add_u32 {t0}, {t0}, {colbase}")
        a(f"v_add_u32 {va}, {t0}, {vOB}")
        return tl

    def tile6(wreg):
        a(f"s_max_u32 {t1}, {sW}, 1")
        a(f"s_sub_u32 {t1}, {t1}, 1")
        a(f"s_lshl_b32 {sR6}, {sCS}, 6")
        a(f"s_mul_i32 {sO6}, {sCS}, 3584")
        a(f"s_mul_i32 {t2}, {sKS}, 57344")
        a(f"s_add_u32 {sO6}, {sO6}, {t2}")
        a(f"s_add_u32 {sO6}, {sO6}, {H5}")
        a(f"s_cmp_ge_u32 {t1}, 3")
        a(f"s_cselect_b32 s69, 1, 0")
        a(f"s_cselect_b32 {t2}, 3, 0")
        a(f"s_sub_u32 {t2}, {t1}, {t2}")
        a(f"s_lshl_b32 {t2}, {t2}, 7")
        a(f"s_and_b32 {t0}, {sKS}, 1")
        a(f"s_lshl_b32 {t0}, {t0}, 6")
        a(f"s_add_u32 {t2}, {t2}, {t0}")
        a(f"s_cmp_eq_u32 {t2}, 448")
        a(f"s_cselect_b32 {t2}, 0, {t2}")
        a(f"s_add_u32 {t3}, {t2}, 64")
        a(f"s_cmp_eq_u32 {t1}, 6")
        a(f"s_cselect_b32 {t3}, {t2}, {t3}")
        a(f"s_cselect_b32 s68, 0, s69")
        a(f"s_mul_i32 {t0}, s68, 448")
        a(f"s_add_u32 {t0}, {t0}, {t2}")
        a(f"s_mul_i32 {t1}, s69, 448")
        a(f"s_add_u32 {t1}, {t1}, {t3}")
        a(f"v_mov_b32 {v(T[4])}, {t0}")
        a(f"v_mov_b32 {v(T[5])}, {t1}")
        a(f"s_mul_i32 {t0}, {sR6}, 7168")
        a(f"s_mul_i32 {t1}, {sKS}, 896")
        a(f"s_add_u32 {t0}, {t0}, {t1}")
        a(f"s_lshl_b32 {t2}, {t2}, 1")
        a(f"s_lshl_b32 {t3}, {t3}, 1")
        a(f"s_add_u32 {t2}, {t2}, {t0}")
        a(f"s_add_u32 {t3}, {t3}, {t0}")
        for sel, off, lo, hi in (("s68", t2, T[0], T[1]), ("s69", t3, T[2], T[3])):
            a(f"s_cmp_eq_u32 {sel}, 1")
            a(f"s_cselect_b32 {t0}, s{P_WU}, s{P_WG}")
            a(f"s_cselect_b32 {t1}, s{P_WU + 1}, s{P_WG + 1}")
            a(f"s_add_u32 {t0}, {t0}, {off}")
            a(f"s_addc_u32 {t1}, {t1}, 0")
            a(f"v_mov_b32 {v(lo)}, {t0}")
            a(f"v_mov_b32 {v(hi)}, {t1}")
        a(f"v_cmp_lt_u32 vcc, 7, {vN}")
        a(f"v_cndmask_b32 {v(GU)}, {v(T[0])}, {v(T[2])}, vcc")
        a(f"v_cndmask_b32 {v(GU + 1)}, {v(T[1])}, {v(T[3])}, vcc")
        a(f"v_cndmask_b32 {vA4}, {v(T[4])}, {v(T[5])}, vcc")
        a(f"v_mul_u32_u24 {v(T[0])}, {0 if cfg.nomem else 7168}, {vG}")
        a(f"v_and_b32 {v(T[1])}, 7, {vL}")
        a(f"v_lshl_add_u32 {v(T[0])}, {v(T[1])}, 4, {v(T[0])}")
        a(f"v_lshl_add_u32 {vA4}, {v(T[1])}, 3, {vA4}")
        a(f"v_lshl_add_u32 {vA4}, {vG}, 2, {vA4}")
        a(f"v_lshlrev_b32 {vA4}, 2, {vA4}")
        a(f"v_add_co_u32 {v(GU)}, vcc, {v(GU)}, {v(T[0])}")
        a(f"v_addc_co_u32 {v(GU + 1)}, vcc, 0, {v(GU + 1)}, vcc")

        return TileG("gu", None, wreg, 16, None, 0)

    def pair_sum():
        for d in range(4):
            a(f"v_add_f32 {v(T[d])}, {v(T[d])}, {v(T[4 + d])}")
        swapred(T[0])

    def pair_checks():
        clean(g4([T[0], T[4]]))
        a(f"v_and_b32 {vBAD}, 0xff, {vBAD}")

    def pair_loads():
        a(f"buffer_load_dwordx4 {vr(T[0], 4)}, {vMP}, {WS}, {t0} offen sc1")
        a(f"buffer_load_dwordx4 {vr(T[4], 4)}, {vMP}, {WS}, {t1} offen sc1")

    def not_w0(f, w0=None):
        sk = a.newlabel("nw")
        lj = a.newlabel("nj")
        a(f"s_cmp_eq_u32 {sW}, 0")
        a(f"s_cbranch_scc1 {sk}")
        f()
        if w0:
            a(f"s_branch {lj}")
        a.label(sk)
        if w0:
            w0()
            a.label(lj)

    def stage6_input():
        vs, vx, vm = v(T[27]), v(T[26]), v(T[25])
        a(f"v_and_b32 {vs}, 31, {vL}")
        a(f"v_lshlrev_b32 {vs}, 8, {vs}")
        a(f"v_bfe_u32 {vx}, {vL}, 3, 1")
        a(f"v_lshl_add_u32 {vx}, {vx}, 8, {vQE4}")
        a(f"v_mul_u32_u24 {vm}, 24576, {vG}")
        a(f"v_lshl_add_u32 {vm}, {vN}, 4, {vm}")
        a(f"s_lshl_b32 {t0}, {sR6}, 2")
        a(f"s_add_u32 {t0}, {t0}, {MODP + 3072 * 4}")
        a(f"s_add_u32 {t1}, {t0}, {4 * 24576}")
        a(f"s_add_u32 {t4}, {t0}, 4096")
        a(f"s_add_u32 {t5}, {t1}, 4096")
        a(f"s_lshl_b32 {t3}, {sKS}, 13")
        a(f"s_add_u32 {t3}, {t3}, {XR}")
        a(f"s_add_u32 {t3}, {t3}, {sLG}")
        a(f"s_lshl_b32 {t2}, {sR6}, 3")
        a(f"s_add_u32 {t2}, {t2}, {t3}")

        def mloads():
            for i, so in enumerate((t0, t4, t1, t5)):
                a(f"buffer_load_dwordx4 {vr(T[4 * i], 4)}, {vm}, {WS}, {so} offen sc1")

        def mchecks():
            clean(g4([T[0], T[4], T[8], T[12]]))
            a(f"v_and_b32 {vBAD}, 0xff, {vBAD}")
        poll("sbcb", mloads, mchecks, back=cfg.mback)
        stamp(7)
        for d in range(8):
            a(f"v_add_f32 {v(T[d])}, {v(T[d])}, {v(T[8 + d])}")
        swapred2(T[0], T[4])
        rnd(vSH, v(T[0]))
        rnd(vSC, v(T[4]))
        a(f"v_add_f32 {vSC}, 1.0, {vSC}")
        rnd(vSC, vSC)

        def loads0():
            a(f"buffer_load_dwordx4 {vr(T[12], 4)}, {vs}, {WS}, {t3} offen offset:128 sc1")
            a(f"buffer_load_dword {v(T[8])}, {vx}, {WS}, {t2} offen sc1")

        def checks0():
            a(f"v_xor_b32 {v(T[8])}, {vTE}, {v(T[8])}")
            a(f"v_and_b32 {vBAD}, 0xff, {v(T[8])}")
            a(f"v_bitop3_b32 {vBAD}, {vBAD}, {v(T[13])}, {sT32} bitop3:0xf6")
            a(f"v_bitop3_b32 {vBAD}, {vBAD}, {v(T[15])}, {sT32} bitop3:0xf6")
        poll("h5a", loads0, checks0, back=cfg.lback)
        stamp(9)
        a(f"v_mov_b32 {v(T[16])}, {v(T[12])}")
        allsum(v(T[16]), v(T[10]))
        a(f"v_mul_f32 {v(T[16])}, 0x3c800000, {v(T[16])}")
        a(f"v_sub_f32 {v(T[10])}, {v(T[12])}, {v(T[16])}")
        a(f"v_mul_f32 {v(T[10])}, {v(T[10])}, {v(T[10])}")
        a(f"v_fmac_f32 {v(T[14])}, 0x42000000, {v(T[10])}")
        allsum(v(T[14]), v(T[10]))
        a(f"v_mul_f32 {v(T[17])}, 0x3a000000, {v(T[14])}")
        ln_stats(v(T[16]), v(T[17]))
        ln_apply(v(T[8]), v(T[16]), v(T[17]), v(T[10]))
        modulate()
        a(f"ds_write_b32 {vSTA}, {vX}")

    def col32_reduce(x):
        swapred(x)
        a(f"v_add_f32_dpp {v(x)}, {v(x)}, {v(x)} row_ror:8{DPP}")

    def write_stamps():
        if not cfg.stamps:
            return
        sk = a.newlabel("st")
        a(f"s_cmp_eq_u32 {sW}, {cfg.sw}")
        a(f"s_cbranch_scc0 {sk}")
        a("s_waitcnt lgkmcnt(0)")
        a("s_mov_b64 exec, 1")
        a(f"s_lshl_b32 {t0}, s2, 6")
        a(f"s_add_u32 {t0}, {t0}, {STAMP}")
        a(f"v_mov_b32 {v(T[1])}, 0")
        for i in range(15):
            a(f"v_mov_b32 {v(T[2 + i])}, s{72 + 2 * i}")
            a(f"buffer_store_dword {v(T[2 + i])}, {v(T[1])}, {WS}, {t0} offen offset:{4 * i}")
        a(f"v_mov_b32 {v(T[20])}, s71")
        a(f"buffer_store_dword {v(T[20])}, {v(T[1])}, {WS}, {t0} offen offset:60")
        a("s_mov_b64 exec, -1")
        a.label(sk)

    M_N8 = 0x00ff00ff00ff00ff

    def mask_n8():
        a("s_mov_b32 exec_lo, 0x00ff00ff")
        a("s_mov_b32 exec_hi, 0x00ff00ff")

    def common():
        a(f"s_load_dword {sT32}, s[{P_WS}:{P_WS + 1}], {EPOCH}")
        srd(WS, P_WS, WS_USED)
        a(f"s_getreg_b32 {t0}, hwreg(HW_REG_XCC_ID, 0, 4)")
        if cfg.far == 1:
            a(f"s_mov_b32 {t0}, 99")
        if cfg.far == 2:
            a(f"s_bitcmp1_b32 s2, 5")
            a(f"s_cselect_b32 {t0}, 99, {t0}")
        a(f"s_cmp_eq_u32 {t0}, {sKS}")
        a(f"s_cselect_b32 {sLG}, 0, {GOFF}")
        a(f"v_and_b32 {v(T[0])}, 1, {vL}")
        a(f"v_mov_b32 {v(T[1])}, 0xffff")
        a(f"v_lshlrev_b32 {v(T[0])}, 4, {v(T[0])}")
        a(f"v_lshlrev_b32 {v(T[1])}, {v(T[0])}, {v(T[1])}")
        a(f"v_bfe_u32 {v(T[0])}, {vL}, 1, 2")
        for d in range(4):
            a(f"v_cmp_eq_u32 vcc, {d}, {v(T[0])}")
            a(f"v_cndmask_b32 {vM[d]}, 0, {v(T[1])}, vcc")
        a(f"v_mov_b32 {vFF}, 0xff")
        a(f"v_mov_b32 {vONE}, 1.0")
        a(f"v_add_u32 {vSTA}, {L_XL}, {vL4}")
        a(f"s_lshl_b32 {t0}, {sW}, 9")
        a(f"s_add_u32 {t0}, {t0}, {L_RED0}")
        a(f"v_lshlrev_b32 {vRW}, 5, {vN}")
        a(f"v_lshl_add_u32 {vRW}, {vG}, 4, {vRW}")
        a(f"v_add_u32 {vRW}, {t0}, {vRW}")
        a(f"v_and_b32 {v(T[0])}, 7, {vL}")
        a(f"v_lshlrev_b32 {vRB}, 5, {v(T[0])}")
        a(f"v_and_b32 {v(T[1])}, 1, {vG}")
        a(f"v_lshl_add_u32 {vRB}, {v(T[1])}, 4, {vRB}")
        a(f"v_lshrrev_b32 {v(T[1])}, 1, {vG}")
        a(f"v_lshl_add_u32 {vRB}, {v(T[1])}, 8, {vRB}")
        a(f"v_add_u32 {vRB}, {t0}, {vRB}")
        a(f"s_and_b32 {sFA}, {sW}, 1")
        a(f"s_lshl_b32 {sFA}, {sFA}, 8")
        a(f"s_lshr_b32 {sW2}, {sW}, 1")
        a(f"s_add_u32 {t0}, {sFA}, {L_RED0}")
        a(f"v_add_u32 {vFA}, {t0}, {vL4}")
        a(f"s_mul_i32 {sMODK}, {t4}, 24576")
        a(f"s_add_u32 {sMODK}, {sMODK}, {MODP}")
        a(f"v_mul_u32_u24 {vMP}, 24576, {vG}")
        a(f"v_bfe_u32 {v(T[1])}, {vL}, 3, 1")
        a(f"v_lshl_add_u32 {vMP}, {v(T[1])}, 12, {vMP}")
        a(f"v_lshl_add_u32 {vMP}, {v(T[0])}, 4, {vMP}")
        a("s_waitcnt lgkmcnt(0)")
        a(f"s_xor_b32 {sT32}, {sT32}, {TAGK}")
        for d in range(4):
            a(f"s_bfe_u32 {sT[d]}, {sT32}, {(8 << 16) | (8 * d)}")
        a(f"s_lshr_b32 {sT16}, {sT32}, 16")
        a(f"v_mov_b32 {vT32}, {sT32}")
        a(f"v_and_b32 {v(T[0])}, 3, {vL}")
        a(f"v_lshlrev_b32 {v(T[0])}, 3, {v(T[0])}")
        a(f"v_bfe_u32 {vTL}, {vT32}, {v(T[0])}, 8")
        a(f"v_lshlrev_b32 {v(T[0])}, 3, {vG}")
        a(f"v_bfe_u32 {vTE}, {vT32}, {v(T[0])}, 8")

    a.raw(f"{NAME}_kernel:")
    a("s_cmp_ge_u32 s2, 256")
    a("s_cbranch_scc1 L_end")
    a("s_load_dwordx8 s[24:31], s[0:1], 64")
    a("s_load_dwordx16 s[8:23], s[0:1], 0")
    a("s_load_dwordx4 s[32:35], s[0:1], 96")
    if cfg.stamps:
        for i in range(15):
            a(f"s_mov_b64 s[{72 + 2 * i}:{73 + 2 * i}], 0")
        a("s_mov_b32 s71, 0")
    stamp(0)
    a(f"v_and_b32 {vL}, 63, v0")
    a(f"v_lshrrev_b32 {v(T[0])}, 6, v0")
    a(f"v_and_b32 {vN}, 15, v0")
    a(f"v_readfirstlane_b32 {sW}, {v(T[0])}")
    a(f"v_lshrrev_b32 {vG}, 4, {vL}")
    a(f"s_and_b32 {sKS}, s2, 7")
    a(f"s_lshr_b32 {sCS}, s2, 4")
    a(f"s_lshl_b32 {sGI}, {sCS}, 3")
    a(f"s_or_b32 {sGI}, {sGI}, {sKS}")
    a(f"s_mov_b32 {sSPIN}, 200000")
    if cfg.cpf:
        a.raw("L_pc:")
        a("s_getpc_b64 s[66:67]")
        a("s_lshr_b32 s68, s2, 3")
        a("s_lshl_b32 s68, s68, 10")
        a(f"v_lshl_add_u32 {v(F0 + 4)}, {vL}, 4, s68")
        a(f"v_min_u32 {v(F0 + 4)}, L_end-L_pc-16, {v(F0 + 4)}")
        a(f"v_and_b32 {v(F0 + 4)}, -4, {v(F0 + 4)}")
        sk = a.newlabel("cpf")
        a(f"s_cmp_eq_u32 {sW}, {cfg.cpf - 1}")
        a(f"s_cbranch_scc0 {sk}")
        a(f"global_load_dwordx4 {vr(F0, 4)}, {v(F0 + 4)}, s[66:67]")
        a.label(sk)
    a(f"v_lshrrev_b32 {v(T[0])}, 3, {vL}")
    a(f"v_mul_u32_u24 {vOB}, 24576, {v(T[0])}")
    a(f"v_and_b32 {v(T[1])}, 7, {vL}")
    a(f"v_lshl_add_u32 {vOB}, {v(T[1])}, 4, {vOB}")
    a(f"v_lshlrev_b32 {v(T[2])}, 2, {v(T[0])}")
    a(f"v_lshlrev_b32 {v(T[3])}, 3, {vG}")
    a(f"v_lshlrev_b32 {vL4}, 2, {vL}")
    a(f"v_lshl_add_u32 {vQE4}, {v(T[1])}, 2, {vG}")
    a(f"v_lshlrev_b32 {v(T[9])}, 1, {vQE4}")
    a(f"v_lshlrev_b32 {vQE4}, 2, {vQE4}")
    a(f"v_lshlrev_b32 {v(T[8])}, 5, {vL}")
    a(f"s_and_b32 {t4}, {sCS}, 7")
    a("s_bitcmp1_b32 s2, 3")
    a(f"s_cselect_b32 {t4}, {sKS}, {t4}")
    a(f"s_lshl_b32 {t2}, {t4}, 7")
    a(f"s_lshl_b32 {t3}, {sW}, 4")
    a(f"s_add_u32 {t2}, {t2}, {t3}")
    a(f"s_mul_i32 {sMROW}, {t2}, 12288")
    a(f"s_lshl_b32 {t2}, {t2}, 1")
    a("s_mov_b32 s6, 12582912")
    a("s_mov_b32 s7, 0x00020000")
    a("s_mov_b32 s46, 2048")
    a("s_mov_b32 s47, 0x00020000")
    a("s_bitcmp1_b32 s2, 3")
    a("s_cbranch_scc1 L_Q_pre")
    a(f"s_and_b32 {t5}, {sCS}, 8")
    a(f"s_or_b32 {t5}, {t5}, {sKS}")
    a(f"s_lshl_b32 {t0}, {t5}, 8")
    a(f"s_add_u32 {t0}, {t0}, {sMROW}")
    tS1 = Tile("s1", SM, W0, 4, vA1, 12288)
    tS1.addr(t0, 4 * 12288)
    a("s_waitcnt lgkmcnt(0)")
    a(f"s_mov_b32 s4, s{P_WM}")
    a(f"s_mov_b32 s5, s{P_WM + 1}")
    a(f"s_mov_b32 s44, s{P_C}")
    a(f"s_mov_b32 s45, s{P_C + 1}")
    VM.q = []
    a(f"buffer_load_dwordx2 {vr(T[6], 2)}, {v(T[3])}, {SB}, {t2} offen")
    a(f"buffer_load_dword {v(T[4])}, {v(T[2])}, {SB}, {t2} offen")
    vm_add("c")
    tS1.issue()
    a(f"s_mov_b32 {pMC}, {t5}")
    a(f"s_and_b32 s66, {sGI}, 3")
    a(f"s_lshr_b32 s67, {sGI}, 2")
    a(f"s_lshl_b32 {t2}, s66, 24")
    a(f"s_lshl_b32 {t1}, s67, 15")
    a(f"s_add_u32 {t2}, {t2}, {t1}")
    a(f"s_lshl_b32 {sKVL}, {sW}, 12")
    a(f"s_add_u32 {t2}, {t2}, {sKVL}")
    a(f"s_add_u32 {sKVO}, {t2}, {61440 * 256}")
    srd(SA, P_K, 67108864)
    srd(SB, P_V, 67108864)
    a(f"v_xor_b32 {v(vKV[0])}, {vN}, {vG}")
    a(f"v_lshlrev_b32 {v(vKV[0])}, 4, {v(vKV[0])}")
    a(f"v_lshl_add_u32 {v(vKV[0])}, {vG}, 8, {v(vKV[0])}")
    for u in range(1, 4):
        a(f"v_xor_b32 {v(vKV[u])}, {64 * u}, {v(vKV[0])}")
    a(f"v_lshlrev_b32 {v(vKV[4])}, 1, {vG}")
    a(f"v_xor_b32 {v(vKV[4])}, {vN}, {v(vKV[4])}")
    a(f"v_lshlrev_b32 {v(vKV[4])}, 4, {v(vKV[4])}")
    a(f"v_lshl_add_u32 {v(vKV[4])}, {vG}, 8, {v(vKV[4])}")
    a(f"v_xor_b32 {v(vKV[5])}, 128, {v(vKV[4])}")
    kvn = [0]

    def kv_issue(upto):
        while kvn[0] < upto:
            u = kvn[0]
            if u == 0:
                a(f"s_mov_b32 m0, {sKVL}")
            if u == 4:
                a(f"s_add_u32 m0, {sKVL}, {L_V}")
            if u < 4:
                a(f"buffer_load_dwordx4 {v(vKV[u])}, {SA}, {sKVO} offen offset:{1024 * u}{NT} lds")
            else:
                a(f"buffer_load_dwordx4 {v(vKV[4 + ((u - 4) >> 1)])}, {SB}, {sKVO} offen offset:{1024 * (u - 4)}{NT} lds")
            vm_add("kv")
            kvn[0] += 1
    if cfg.kv0:
        a("s_barrier")
    kv_issue(cfg.kv0)
    VMP = list(VM.q)
    common()

    def silu_c(typeA):
        if typeA:
            srcs = [(T[6], vXA[0], vXA[1]), (T[7], vXA[2], vXA[3])]
        else:
            srcs = [(T[4], vXB[0], vXB[1])]
        for s_, lo, hi in srcs:
            a(f"v_lshlrev_b32 {v(T[0])}, 16, {v(s_)}")
            a(f"v_and_b32 {v(T[1])}, 0xffff0000, {v(s_)}")
            silu(v(T[0]), v(T[0]), v(T[2]))
            silu(v(T[1]), v(T[1]), v(T[3]))
            a(f"v_cvt_pk_bf16_f32 {lo}, {v(T[0])}, {v(T[0])}")
            a(f"v_cvt_pk_bf16_f32 {hi}, {v(T[1])}, {v(T[1])}")

    a.c("======== P: S1")
    VM.q = VMP
    vm_wait("c")
    silu_c(True)
    a(f"s_lshl_b32 {t4}, {t5}, 9")
    a(f"s_add_u32 {sMODK}, {t4}, {sMODK}")
    a(f"s_add_u32 {t4}, {sMODK}, {sFA}")
    a(f"s_sub_u32 {t4}, {t4}, {GOFF}")
    tSC = Tile("sc", SM, W0 + 16, 4, vA2, 12288)
    a(f"v_add_u32 {vA2}, 6144, {vA1}")
    vm_wait("s1")
    stamp(1)
    kv_issue(cfg.kv1)
    gemv_regs(D0, W0, vXA)
    red_write_A(D0, L_RED0)
    barrier()
    finalize_A(L_RED0, t4, near=1)
    a("s_barrier")
    stamp(2)
    kv_issue(8)
    silu_c(False)
    tGU = tile6(W1)
    tGB = tileB("gb", W3, vA3, 10240, pMC)
    KF, VF, QF = W3, W3 + 16, W3 + 32
    vKA, vVA, vQA, vH2, vQW, vPW = v(T[30]), v(T[31]), v(T[32]), v(T[33]), v(T[34]), v(T[35])
    vWMr, vWMw, vOA, vMLA = v(T[26]), v(T[27]), v(T[28]), v(T[29])
    a(f"v_xor_b32 {vKA}, {vN}, {vG}")
    a(f"v_lshlrev_b32 {vKA}, 4, {vKA}")
    a(f"v_lshl_add_u32 {vKA}, {vN}, 8, {vKA}")
    a(f"s_lshl_b32 {t1}, {sW}, 12")
    a(f"v_add_u32 {vKA}, {t1}, {vKA}")
    a(f"v_bfe_u32 {v(T[0])}, {vL}, 2, 2")
    a(f"v_and_b32 {v(T[1])}, 1, {vG}")
    a(f"v_lshl_or_b32 {v(T[1])}, {v(T[1])}, 2, {v(T[0])}")
    a(f"v_lshlrev_b32 {v(T[1])}, 1, {v(T[1])}")
    a(f"v_bfe_u32 {v(T[2])}, {vL}, 1, 1")
    a(f"s_lshl_b32 {t1}, {sW}, 1")
    a(f"v_or_b32 {v(T[2])}, {t1}, {v(T[2])}")
    a(f"v_xor_b32 {v(T[2])}, {v(T[2])}, {v(T[1])}")
    a(f"v_lshl_add_u32 {v(T[0])}, {vG}, 3, {v(T[0])}")
    a(f"v_lshlrev_b32 {vVA}, 8, {v(T[0])}")
    a(f"v_lshl_add_u32 {vVA}, {v(T[2])}, 4, {vVA}")
    a(f"v_and_b32 {v(T[0])}, 1, {vL}")
    a(f"v_lshl_add_u32 {vVA}, {v(T[0])}, 3, {vVA}")
    a(f"v_add_u32 {vVA}, {L_V}, {vVA}")
    a(f"v_and_b32 {v(T[0])}, 7, {vL}")
    a(f"v_mul_u32_u24 {vQA}, 272, {v(T[0])}")
    a(f"v_lshl_add_u32 {vPW}, {vG}, 3, {vQA}")
    a(f"v_lshl_add_u32 {vQA}, {vG}, 4, {vQA}")
    a(f"v_add_u32 {vQA}, {L_QS}, {vQA}")
    a(f"s_lshl_b32 {t1}, {sW}, 5")
    a(f"s_add_u32 {t1}, {t1}, {L_PS}")
    a(f"v_add_u32 {vPW}, {t1}, {vPW}")
    a(f"v_lshlrev_b32 {vWMr}, 5, {v(T[0])}")
    a(f"v_add_u32 {vWMr}, {L_WM}, {vWMr}")
    a(f"s_lshl_b32 {t1}, {sW}, 2")
    a(f"v_add_u32 {vWMw}, {t1}, {vWMr}")
    a(f"v_lshlrev_b32 {vH2}, 14, {vG}")
    a(f"v_lshl_add_u32 {vH2}, {vN}, 4, {vH2}")
    a(f"v_lshl_add_u32 {vQW}, {vN}, 2, {vG}")
    a(f"v_lshlrev_b32 {vQW}, 1, {vQW}")
    a(f"s_mul_i32 {t1}, {sW}, 272")
    a(f"s_add_u32 {t1}, {t1}, {L_QS}")
    a(f"v_add_u32 {vQW}, {t1}, {vQW}")
    a(f"v_lshlrev_b32 {vOA}, 7, {vG}")
    a(f"v_lshl_add_u32 {vOA}, {vN}, 4, {vOA}")
    a(f"v_lshlrev_b32 {vMLA}, 3, {vL}")
    a(f"s_lshl_b32 {t2}, s66, 3")
    a(f"s_add_u32 {t2}, {t2}, {sW}")
    a(f"s_lshl_b32 {t3}, {t2}, 5")
    a(f"s_add_u32 {t3}, {t3}, s67")
    a(f"s_lshl_b32 {t2}, {t2}, 9")
    a(f"s_add_u32 {t2}, {t2}, {H2}")
    a(f"s_lshl_b32 s66, {t3}, 9")
    a(f"s_add_u32 s66, s66, {H3O}")
    a(f"s_lshl_b32 s67, {t3}, 6")
    a(f"s_add_u32 s67, s67, {H3ML}")
    a(f"s_add_u32 {t3}, {t2}, 65536")
    if cfg.pre & 1:
        mask_n8()
        a(f"buffer_load_dwordx4 {vr(F0, 4)}, {vOA}, {WS}, s66 offen{PRE}")
        a("s_mov_b64 exec, 0xff")
        a(f"buffer_load_dwordx2 {vr(F0 + 4, 2)}, {vMLA}, {WS}, s67 offen{PRE}")
        a("s_mov_b64 exec, -1")

    def k_reads():
        for s_ in range(4):
            a(f"ds_read_b128 {vr(KF + 4 * s_, 4)}, {v(T[19 + s_]) if s_ else vKA}")

    def v_reads():
        for s_ in range(4):
            for u in range(2):
                a(f"ds_read_b64_tr_b16 {vr(VF + 4 * s_ + 2 * u, 2)}, {vVA} offset:{8192 * s_ + 1024 * u}")
    for s_ in range(1, 4):
        a(f"v_xor_b32 {v(T[19 + s_])}, {64 * s_}, {vKA}")
    if not cfg.g2:
        vm_wait()
        stamp(3)
        a("s_barrier")
        k_reads()
        v_reads()
    for d in range(4):
        a(f"v_mov_b32 {v(A0 + d)}, 0x3f803f80")
    a(f"s_mov_b32 {t1}, {LOG2E}")
    gate(F_H2)
    stamp(4)

    def h2_loads():
        a(f"buffer_load_dwordx4 {vr(T[0], 4)}, {vH2}, {WS}, {t2} offen sc1")
        a(f"buffer_load_dwordx4 {vr(T[4], 4)}, {vH2}, {WS}, {t2} offen offset:256 sc1")
        a(f"buffer_load_dwordx4 {vr(T[8], 4)}, {vH2}, {WS}, {t3} offen sc1")
        a(f"buffer_load_dwordx4 {vr(T[12], 4)}, {vH2}, {WS}, {t3} offen offset:256 sc1")

    def h2_checks():
        clean(g4([T[0], T[4], T[8], T[12]]))
        a(f"v_and_b32 {vBAD}, 0xff, {vBAD}")
    poll("h2", h2_loads, h2_checks, after=k_reads if cfg.g2 else None)
    stamp(5)
    for d in range(8):
        a(f"v_add_f32 {v(T[d])}, {v(T[d])}, {v(T[8 + d])}")
    swapred2(T[0], T[4])
    a(f"v_cvt_pk_bf16_f32 {v(T[0])}, {v(T[0])}, {v(T[4])}")
    a(f"ds_write_b16 {vQW}, {v(T[0])}")
    a(f"ds_write_b16_d16_hi {vQW}, {v(T[0])} offset:128")
    barrier()
    for s_ in range(4):
        a(f"ds_read_b128 {vr(QF + 4 * s_, 4)}, {vQA} offset:{64 * s_}")
    if cfg.g2:
        v_reads()
    tSC.issue(cfg.p3a)
    if cfg.p3a > 4:
        not_w0(lambda: tGU.issue(cfg.p3a - 4))
    for s_ in range(4):
        a(f"s_waitcnt lgkmcnt({(11 if cfg.g2 else 3) - s_})")
        c = "0" if s_ == 0 else vr(D0, 4)
        a(f"v_mfma_f32_16x16x32_bf16 {vr(D0, 4)}, {vr(KF + 4 * s_, 4)}, {vr(QF + 4 * s_, 4)}, {c}")
    a(f"v_cvt_pk_bf16_f32 {v(T[0])}, {v(D0)}, {v(D0 + 1)}")
    a(f"v_cvt_pk_bf16_f32 {v(T[2])}, {v(D0 + 2)}, {v(D0 + 3)}")
    for p in (0, 2):
        a(f"v_and_b32 {v(T[p + 1])}, 0xffff0000, {v(T[p])}")
        a(f"v_lshlrev_b32 {v(T[p])}, 16, {v(T[p])}")
    for r in range(4):
        a(f"v_mul_f32 {v(T[r])}, {SCALE}, {v(T[r])}")
    a(f"v_cvt_pk_bf16_f32 {v(T[0])}, {v(T[0])}, {v(T[1])}")
    a(f"v_cvt_pk_bf16_f32 {v(T[2])}, {v(T[2])}, {v(T[3])}")
    for p in (0, 2):
        a(f"v_and_b32 {v(T[p + 1])}, 0xffff0000, {v(T[p])}")
        a(f"v_lshlrev_b32 {v(T[p])}, 16, {v(T[p])}")
    a(f"v_max3_f32 {v(T[4])}, {v(T[0])}, {v(T[1])}, {v(T[2])}")
    a(f"v_max_f32 {v(T[4])}, {v(T[4])}, {v(T[3])}")
    rowsum(v(T[4]), v(T[5]), "max")
    a("s_mov_b64 exec, 0xff")
    a(f"ds_write_b32 {vWMw}, {v(T[4])}")
    a("s_mov_b64 exec, -1")
    barrier()
    a(f"ds_read_b128 {vr(T[12], 4)}, {vWMr}")
    a(f"ds_read_b128 {vr(T[16], 4)}, {vWMr} offset:16")
    if cfg.early & 4:
        signal_w(F_H3)
    a("s_waitcnt lgkmcnt(0)")
    a(f"v_max3_f32 {v(T[4])}, {v(T[12])}, {v(T[13])}, {v(T[14])}")
    a(f"v_max3_f32 {v(T[5])}, {v(T[15])}, {v(T[16])}, {v(T[17])}")
    a(f"v_max3_f32 {v(T[4])}, {v(T[4])}, {v(T[18])}, {v(T[19])}")
    a(f"v_max_f32 {v(T[4])}, {v(T[4])}, {v(T[5])}")
    for r in range(4):
        a(f"v_sub_f32 {v(T[r])}, {v(T[r])}, {v(T[4])}")
    for r in range(4):
        a(f"v_mul_f32 {v(T[r])}, {t1}, {v(T[r])}")
    for r in range(4):
        a(f"v_exp_f32 {v(T[r])}, {v(T[r])}")
    a(f"v_cvt_pk_bf16_f32 {v(T[6])}, {v(T[0])}, {v(T[1])}")
    a(f"v_cvt_pk_bf16_f32 {v(T[7])}, {v(T[2])}, {v(T[3])}")
    mask_n8()
    a(f"ds_write_b64 {vPW}, {vr(T[6], 2)}")
    a("s_mov_b64 exec, -1")
    a(f"v_mul_f32 {v(T[4])}, {t1}, {v(T[4])}")
    a(f"s_mov_b32 {t2}, 0x07060503")
    a(f"s_mov_b32 {t3}, 0x07060502")
    a(f"s_mov_b32 {t4}, 0x07060501")
    barrier()
    for s_ in range(4):
        a(f"ds_read_b128 {vr(QF + 4 * s_, 4)}, {vQA} offset:{L_PS - L_QS + 64 * s_}")
    if cfg.early & 2:
        signal_w(F_H3)
    for s_ in range(4):
        a(f"s_waitcnt lgkmcnt({3 - s_})")
        c = "0" if s_ == 0 else vr(D1, 4)
        a(f"v_mfma_f32_16x16x32_bf16 {vr(D1, 4)}, {vr(A0, 4)}, {vr(QF + 4 * s_, 4)}, {c}")
        c = "0" if s_ == 0 else vr(D0, 4)
        a(f"v_mfma_f32_16x16x32_bf16 {vr(D0, 4)}, {vr(VF + 4 * s_, 4)}, {vr(QF + 4 * s_, 4)}, {c}")
    a(f"v_log_f32 {v(T[5])}, {v(D1)}")
    a(f"v_rcp_f32 {v(T[6])}, {v(D1)}")
    a(f"v_add_f32 {v(T[4])}, {v(T[4])}, {v(T[5])}")
    for d in range(4):
        a(f"v_mul_f32 {v(D0 + d)}, {v(D0 + d)}, {v(T[6])}")
    a(f"v_bfi_b32 {v(D0)}, {vFF}, {vTL}, {v(D0)}")
    for d, sel in ((1, t2), (2, t3), (3, t4)):
        a(f"v_perm_b32 {v(D0 + d)}, {v(D0 + d)}, {v(T[4])}, {sel}")
    mask_n8()
    a(f"buffer_store_dwordx4 {vr(D0, 4)}, {vOA}, {WS}, s66 offen sc1")
    a("s_mov_b64 exec, -1")
    if not cfg.early & 6:
        signal_w(F_H3, 0)
    a("s_barrier")
    stamp(6)
    a.c("======== P: sb/cb tile, gate/up tile, w_down tile")
    tSC.issue(cap=cfg.capP3)

    def gu1():
        tGU.issue(cfg.p3b, cap=cfg.capP3)
        vm_wait("sc")
    not_w0(gu1, lambda: a("s_waitcnt vmcnt(0)"))
    gemv_regs(D0, W0 + 16, vXA)
    red_write_A(D0, L_RED1)
    barrier()
    a(f"s_add_u32 {t4}, {sMODK}, {3072 * 4}")
    finalize_A(L_RED1, t4, w0=2)
    stamp(13)

    def gu2():
        tGU.issue(cfg.capN, cap=cfg.capP3)
        tGU.issue(cap=cfg.capP4)
        stamp(12)
        vm_wait()
        stamp(11)
    not_w0(gu2, stage6_input)
    barrier()
    stamp(8)
    a(f"ds_read_b32 {vX}, {vSTA}")
    if cfg.gbe:
        tGB.issue()
    a("s_waitcnt lgkmcnt(0)")

    def s6():
        gemv_bcast(D0, W1, 16)
        for d in range(4):
            a(f"v_bfi_b32 {v(D0 + d)}, {vFF}, {sT[d]}, {v(D0 + d)}")
        store2([("buffer_store_dwordx4", vr(D0, 4), vA4, sO6, 0, 0xffffffff)])
    not_w0(s6)
    if cfg.stamps:
        a("s_barrier")
    stamp(10)
    tGB.issue()
    a(f"s_lshl_b32 {t4}, {pMC}, 8")
    a(f"s_sub_u32 {t4}, 20480, {t4}")
    vm_wait("gb")
    gemv_regs(D1, W3, vXB)
    red_write_B(D1, L_RED0 + 4096)
    barrier()
    finalize_B(0, L_RED0 + 4096, t4)
    stamp(14)
    a("s_branch L_fin")

    a.label("L_Q_pre")
    a(f"s_lshl_b32 s66, {sKS}, 7")
    a(f"s_and_b32 {t1}, {sW}, 3")
    a(f"s_lshl_b32 {t1}, {t1}, 5")
    a(f"s_add_u32 s66, s66, {t1}")
    a(f"s_lshl_b32 {t1}, {sCS}, 9")
    a(f"s_lshr_b32 {t0}, {sW}, 2")
    a(f"s_lshl_b32 {t0}, {t0}, 8")
    a(f"s_add_u32 {t1}, {t1}, {t0}")
    a(f"s_lshl_b32 {t0}, s66, 13")
    a(f"s_add_u32 {t0}, {t0}, {t1}")
    tWQ = Tile("wq", SA, W0, 8, vA1, 4 * 8192)
    tWQ.addr(t0, 8192)
    a("s_mov_b32 s42, 8388608")
    a("s_mov_b32 s43, 0x00020000")
    a("s_waitcnt lgkmcnt(0)")
    a(f"s_mov_b32 s40, s{P_WQ}")
    a(f"s_mov_b32 s41, s{P_WQ + 1}")
    a(f"s_mov_b32 s44, s{P_X}")
    a(f"s_mov_b32 s45, s{P_X + 1}")
    VM.q = []
    a(f"buffer_load_dwordx4 {vr(T[12], 4)}, {v(T[8])}, {SB}, 0 offen")
    a(f"buffer_load_dwordx4 {vr(T[16], 4)}, {v(T[8])}, {SB}, 0 offen offset:16")
    a(f"s_lshl_b32 {t1}, s66, 1")
    a(f"buffer_load_ushort {v(T[20])}, {v(T[9])}, {SB}, {t1} offen")
    a(f"s_and_b32 {t1}, {sW}, 1")
    a(f"s_lshl_b32 {qR}, {sCS}, 1")
    a(f"s_add_u32 {qR}, {qR}, {t1}")
    a(f"s_lshl_b32 {t1}, {qR}, 6")
    a(f"buffer_load_ushort {vXR}, {v(T[9])}, {SB}, {t1} offen")
    a(f"s_mov_b32 s44, s{P_C}")
    a(f"s_mov_b32 s45, s{P_C + 1}")
    a(f"buffer_load_dword {v(T[4])}, {v(T[2])}, {SB}, {t2} offen")
    vm_add("c")
    if cfg.qbar:
        a("s_barrier")
    tWQ.issue(cfg.qA)
    a(f"s_mov_b32 s4, s{P_WM}")
    a(f"s_mov_b32 s5, s{P_WM + 1}")
    VMQ = list(VM.q)
    common()
    a.c("======== Q: layernorm of x, silu(c)")
    VM.q = VMQ
    vm_wait("c")
    stamp(1)
    tWQ.issue()
    silu_c(False)
    XU = W3
    for i in range(8):
        a(f"v_lshlrev_b32 {v(XU + 2 * i)}, 16, {v(T[12 + i])}")
        a(f"v_and_b32 {v(XU + 2 * i + 1)}, 0xffff0000, {v(T[12 + i])}")
    a(f"v_lshlrev_b32 {v(T[20])}, 16, {v(T[20])}")
    a(f"v_add_f32 {v(T[0])}, {v(XU)}, {v(XU + 1)}")
    for i in range(2, 16):
        a(f"v_add_f32 {v(T[0])}, {v(T[0])}, {v(XU + i)}")
    allsum(v(T[0]), v(T[1]))
    a(f"v_mul_f32 {v(T[0])}, 0x3a800000, {v(T[0])}")
    a(f"v_mov_b32 {v(T[2])}, 0")
    for i in range(16):
        a(f"v_sub_f32 {v(XU + i)}, {v(XU + i)}, {v(T[0])}")
        a(f"v_fmac_f32 {v(T[2])}, {v(XU + i)}, {v(XU + i)}")
    allsum(v(T[2]), v(T[1]))
    a(f"v_mul_f32 {v(T[2])}, 0x3a800000, {v(T[2])}")
    ln_finish(v(T[20]), v(T[0]), v(T[2]), v(T[1]))
    a.c("======== Q: S2")
    tGA = tileB("ga", W3, vA3, 4096, sCS)
    srd(SB, P_WD, 7340032)
    a(f"s_and_b32 {t0}, {sCS}, 1")
    a(f"s_mul_i32 {t2}, {t0}, 224")
    a(f"s_mul_i32 {t1}, {sW}, 28")
    a(f"s_add_u32 {t2}, {t2}, {t1}")
    a(f"s_mul_i32 {t1}, {sKS}, 448")
    a(f"s_add_u32 {t4}, {t2}, {t1}")
    a(f"s_lshl_b32 {t4}, {t4}, 11")
    a(f"s_lshr_b32 {t3}, {sCS}, 1")
    a(f"s_lshl_b32 {t1}, {t3}, 8")
    a(f"s_add_u32 {t4}, {t4}, {t1}")
    tWD = Tile("wd", SB, W2, 7, vA4, 4 * 2048)
    tWD.addr(t4, 2048)
    a(f"s_lshl_b32 {pH5}, {t2}, 2")
    a(f"s_mul_i32 {t1}, {sKS}, 57344")
    a(f"s_add_u32 {pH5}, {pH5}, {t1}")
    a(f"s_add_u32 {pH5}, {pH5}, {H5}")
    a(f"s_add_u32 {pH5}, {pH5}, {sLG}")
    a(f"s_lshl_b32 {pH6}, {sKS}, 1")
    a(f"s_add_u32 {pH6}, {pH6}, {t0}")
    a(f"s_lshl_b32 {pH6}, {pH6}, 12")
    a(f"s_lshl_b32 {t1}, {t3}, 9")
    a(f"s_add_u32 {pH6}, {pH6}, {t1}")
    a(f"s_add_u32 {pH6}, {pH6}, {H6}")
    a(f"s_lshl_b32 {qXR}, {sKS}, 13")
    a(f"s_lshl_b32 {t3}, {qR}, 8")
    a(f"s_add_u32 {qXR}, {qXR}, {t3}")
    a(f"s_add_u32 {qXR}, {qXR}, {XR}")
    xr_items = [("buffer_store_dword", v(T[1]), vQE4, qXR, 0, M_N8),
                ("buffer_store_dwordx4", vr(T[20], 4), vL4, qXR, 128, 1)]
    a(f"s_lshl_b32 {t0}, s66, 2")
    a(f"s_add_u32 {t0}, {t0}, {MODN}")
    a(f"s_add_u32 {t0}, {t0}, {sLG}")
    a(f"s_add_u32 {t1}, {t0}, {4 * 24576}")
    a(f"s_lshl_b32 {t4}, {sKS}, 14")
    a(f"s_lshl_b32 {t3}, {sCS}, 10")
    a(f"s_add_u32 {t4}, {t4}, {t3}")
    a(f"s_lshl_b32 {t3}, {sW}, 8")
    a(f"s_add_u32 {t4}, {t4}, {t3}")
    a(f"s_add_u32 {t4}, {t4}, {H2}")
    a(f"s_lshl_b32 {t3}, {sW2}, 11")
    a(f"v_add_u32 {v(T[34])}, {t3}, {vFA}")
    if cfg.pre & 2:
        a(f"buffer_load_dword {v(F0)}, {vL4}, {WS}, {t4} offen{PRE}")
    if cfg.pre & 8:
        a(f"s_add_u32 {t3}, {pH6}, {sFA}")
        a(f"buffer_load_dword {v(F0 + 1)}, {vL4}, {WS}, {t3} offen{PRE}")
    srd(SA, P_WO, 8388608)
    a(f"s_and_b32 s66, {sGI}, 31")
    a(f"s_lshr_b32 s67, {sGI}, 5")
    a(f"s_lshr_b32 {t3}, s66, 3")
    a(f"s_lshl_b32 {t2}, {t3}, 10")
    a(f"s_and_b32 {t3}, s66, 7")
    a(f"s_lshl_b32 {t3}, {t3}, 4")
    a(f"s_add_u32 {t2}, {t2}, {t3}")
    a(f"s_and_b32 {t3}, {sW}, 3")
    a(f"s_lshl_b32 {t3}, {t3}, 2")
    a(f"s_add_u32 {t2}, {t2}, {t3}")
    a(f"s_lshl_b32 {t2}, {t2}, 11")
    a(f"s_lshl_b32 {t3}, s67, 9")
    a(f"s_add_u32 {t2}, {t2}, {t3}")
    a(f"s_lshr_b32 {t3}, {sW}, 2")
    a(f"s_lshl_b32 {t3}, {t3}, 8")
    a(f"s_add_u32 {t2}, {t2}, {t3}")
    tWO = Tile("wo", SA, W1, 8, vA2, 128 * 2048)
    tWO.addr(t2, 2048)
    vm_wait()
    stamp(3)
    poll("h1", pair_loads, pair_checks, back=cfg.lback)
    stamp(4)
    tWO.issue(cfg.q2a)
    pair_sum()
    mod_prep()
    modulate()
    if cfg.early & 1:
        signal_w(F_H2)
    gemv_bcast(D0, W0, 8)
    red_write_A(D0, L_RED1)
    barrier()
    sk = a.newlabel("f2")
    a(f"s_cmp_lt_u32 {sW}, 4")
    a(f"s_cbranch_scc0 {sk}")
    finalize(v(T[34]), [32, 34, 36, 38], t4)
    if not cfg.early & 1:
        a(f"s_cmp_eq_u32 {sW}, 0")
        a(f"s_cbranch_scc0 {sk}")
        signal_partner(F_H2)
    a.label(sk)
    a("s_barrier")
    stamp(5)
    a.c("======== Q: wo tile + gb tile")
    tGA.issue(cap=cfg.capQ2)
    tWO.issue(cap=cfg.capQ2)
    tWD.issue(cfg.q7a, cap=cfg.capQ2)
    a(f"s_and_b32 {t1}, {sW}, 3")
    a(f"s_lshl_b32 {t1}, {t1}, 8")
    a(f"s_add_u32 {t1}, {t1}, {L_XL}")
    a(f"v_add_u32 {v(T[33])}, {t1}, {vL4}")
    va, vb = v(T[31]), v(T[32])
    a(f"v_lshrrev_b32 {v(T[28])}, 3, {vL}")
    a(f"v_and_b32 {v(T[29])}, 7, {vL}")
    a(f"v_lshlrev_b32 {va}, 11, {v(T[28])}")
    a(f"v_lshl_add_u32 {va}, {v(T[29])}, 4, {va}")
    a(f"s_lshl_b32 {t2}, s66, 14")
    a(f"s_lshl_b32 {t1}, {sW}, 7")
    a(f"s_add_u32 {t2}, {t2}, {t1}")
    a(f"s_add_u32 {t2}, {t2}, {H3O}")
    a(f"s_lshl_b32 s59, s66, 12")
    a(f"s_lshl_b32 {t1}, s67, 10")
    a(f"s_add_u32 s59, s59, {t1}")
    a(f"s_lshl_b32 {t1}, {sW}, 8")
    a(f"s_add_u32 s59, s59, {t1}")
    a(f"s_add_u32 s59, s59, {H4}")
    if cfg.pre & 4:
        a(f"buffer_load_dword {v(T[35])}, {vL4}, {WS}, s59 offen{PRE}")
    vm_wait("ga")
    gemv_regs(D0, W3, vXB)
    red_write_B(D0, L_RED0 + 4096)
    barrier()
    a(f"s_lshl_b32 {t4}, {sCS}, 8")
    a(f"s_add_u32 {t4}, {t4}, 8192")
    finalize_B(4, L_RED0 + 4096, t4)
    a(f"s_mov_b32 {t1}, 0x04000c0c")
    a(f"s_mov_b32 {t3}, 0x0706000c")
    if not cfg.g3:
        vm_wait()
    stamp(6)
    gate(F_H3)
    stamp(11)
    a(f"s_cmp_lt_u32 {sW}, 4")
    a("s_cbranch_scc0 L_s4_wait")

    def h3_loads():
        for i in range(4):
            a(f"buffer_load_dwordx4 {vr(T[4 * i], 4)}, {va}, {WS}, {t2} offen offset:{512 * i} sc1")

    def h3_checks():
        clean([(T[4 * i], vTL) for i in range(4)])
        a(f"v_and_b32 {vBAD}, 0xff, {vBAD}")
    poll("h3", h3_loads, h3_checks)
    stamp(12)
    for i in range(4):
        a(f"v_perm_b32 {v(T[16 + i])}, {v(T[4 * i + 1])}, {v(T[4 * i + 2])}, {t1}")
    for i in range(4):
        a(f"v_perm_b32 {v(T[16 + i])}, {v(T[16 + i])}, {v(T[4 * i + 3])}, {t3}")
    a(f"v_max3_f32 {v(T[24])}, {v(T[16])}, {v(T[17])}, {v(T[18])}")
    a(f"v_max_f32 {v(T[24])}, {v(T[24])}, {v(T[19])}")
    a(f"v_max_f32_dpp {v(T[24])}, {v(T[24])}, {v(T[24])} row_ror:8{DPP}")
    rowsum(v(T[24]), v(T[25]), "max")
    for i in range(4):
        a(f"v_sub_f32 {v(T[16 + i])}, {v(T[16 + i])}, {v(T[24])}")
    for i in range(4):
        a(f"v_exp_f32 {v(T[16 + i])}, {v(T[16 + i])}")
    a(f"v_add_f32 {v(T[24])}, {v(T[16])}, {v(T[17])}")
    a(f"v_add_f32 {v(T[25])}, {v(T[18])}, {v(T[19])}")
    for d in range(4):
        a(f"v_mul_f32 {v(T[d])}, {v(T[16])}, {v(T[d])}")
    a(f"v_add_f32 {v(T[24])}, {v(T[24])}, {v(T[25])}")
    for d in range(4):
        a(f"v_fmac_f32 {v(T[d])}, {v(T[17])}, {v(T[4 + d])}")
    a(f"v_add_f32_dpp {v(T[24])}, {v(T[24])}, {v(T[24])} row_ror:8{DPP}")
    for i in range(2, 4):
        for d in range(4):
            a(f"v_fmac_f32 {v(T[d])}, {v(T[16 + i])}, {v(T[4 * i + d])}")
    rowsum(v(T[24]), v(T[25]), "add")
    a(f"v_rcp_f32 {v(T[24])}, {v(T[24])}")
    col32_reduce(T[0])
    a(f"v_mul_f32 {v(T[0])}, {v(T[0])}, {v(T[24])}")
    a(f"v_cvt_pk_bf16_f32 {vX}, {v(T[0])}, {v(T[0])}")
    a(f"ds_write_b32 {v(T[33])}, {vX}")
    a.label("L_s4_wait")
    a("s_waitcnt vmcnt(0)")
    barrier()
    a(f"ds_read_b32 {vX}, {v(T[33])}")
    tWD.issue(cfg.q7b)
    a("s_waitcnt lgkmcnt(0)")
    gemv_bcast(D0, W1, 8)
    red_write_A(D0, L_RED0)
    barrier()
    sk = a.newlabel("f4")
    a(f"s_cmp_lt_u32 {sW}, 4")
    a(f"s_cbranch_scc0 {sk}")
    finalize(v(T[34]), [0, 2, 4, 6], "s59")
    a.label(sk)
    stamp(13)
    if cfg.q7c > tWD.next:
        a("s_barrier")
        tWD.issue(cfg.q7c)
    a.c("======== Q: x1 slices (waves 0, 1)")
    a(f"s_cmp_lt_u32 {sW}, 2")
    a("s_cbranch_scc0 L_s5_done")
    va = v(T[24])
    a(f"v_lshrrev_b32 {v(T[27])}, 3, {vL}")
    a(f"v_and_b32 {v(T[28])}, 7, {vL}")
    a(f"v_lshlrev_b32 {v(T[28])}, 4, {v(T[28])}")
    a(f"v_lshl_add_u32 {va}, {v(T[27])}, 12, {v(T[28])}")
    a(f"s_lshl_b32 {t5}, {qR}, 7")
    a(f"s_add_u32 {t0}, {t5}, {H4}")
    a(f"s_add_u32 {t1}, {t0}, 32768")
    a(f"s_add_u32 {t2}, {t0}, 65536")
    a(f"s_add_u32 {t3}, {t0}, 98304")
    a(f"s_add_u32 {t4}, {t5}, {MODP + 2048 * 4}")
    a(f"v_lshlrev_b32 {vXR}, 16, {vXR}")
    a(f"v_mov_b32 {v(T[21])}, {sT32}")
    a(f"v_mov_b32 {v(T[23])}, {sT32}")
    a("s_waitcnt vmcnt(0)")

    def h4_loads():
        for i, s_ in enumerate((t0, t1, t2, t3)):
            a(f"buffer_load_dwordx4 {vr(T[4 * i], 4)}, {va}, {WS}, {s_} offen sc1")
        a(f"buffer_load_dwordx4 {vr(T[16], 4)}, {vOB}, {WS}, {t4} offen sc1")

    def h4_checks():
        clean(g4([T[0], T[4], T[8], T[12], T[16]]))
        a(f"v_and_b32 {vBAD}, 0xff, {vBAD}")
    poll("h4", h4_loads, h4_checks)
    stamp(8)
    for d in range(4):
        a(f"v_add_f32 {v(T[d])}, {v(T[d])}, {v(T[4 + d])}")
        a(f"v_add_f32 {v(T[8 + d])}, {v(T[8 + d])}, {v(T[12 + d])}")
    for d in range(4):
        a(f"v_add_f32 {v(T[d])}, {v(T[d])}, {v(T[8 + d])}")
    swapred2(T[0], T[16])
    a(f"v_add_f32_dpp {v(T[0])}, {v(T[0])}, {v(T[0])} row_ror:8{DPP}")
    a(f"v_add_f32_dpp {v(T[16])}, {v(T[16])}, {v(T[16])} row_ror:8{DPP}")
    rnd(v(T[0]), v(T[0]))
    rnd(v(T[16]), v(T[16]))
    a(f"v_mul_f32 {v(T[0])}, {v(T[0])}, {v(T[16])}")
    rnd(v(T[0]), v(T[0]))
    a(f"v_add_f32 {v(T[0])}, {v(T[0])}, {vXR}")
    rnd(v(T[0]), v(T[0]))
    a(f"v_or_b32 {v(T[1])}, {vTE}, {v(T[0])}")
    a(f"v_mov_b32 {v(T[20])}, {v(T[0])}")
    allsum(v(T[20]), v(T[2]))
    a(f"v_mul_f32 {v(T[20])}, 0x3c800000, {v(T[20])}")
    a(f"v_sub_f32 {v(T[22])}, {v(T[0])}, {v(T[20])}")
    a(f"v_mul_f32 {v(T[22])}, {v(T[22])}, {v(T[22])}")
    allsum(v(T[22]), v(T[2]))
    a(f"v_mul_f32 {v(T[22])}, 0.5, {v(T[22])}")
    store2(xr_items)
    stamp(9)
    a.label("L_s5_done")
    a("s_barrier")
    a.c("======== Q: w_down tile")
    VM.q = []
    tWD.issue()
    va = v(T[24])
    a(f"v_mul_u32_u24 {va}, 3584, {vG}")
    a(f"v_bfe_u32 {v(T[25])}, {vL}, 3, 1")
    a(f"v_mul_u32_u24 {v(T[25])}, 1792, {v(T[25])}")
    a(f"v_add_u32 {va}, {va}, {v(T[25])}")
    a(f"v_and_b32 {v(T[25])}, 7, {vL}")
    a(f"v_min_u32 {v(T[25])}, 6, {v(T[25])}")
    a(f"v_lshl_add_u32 {va}, {v(T[25])}, 4, {va}")
    for u in range(1, 4):
        a(f"s_add_u32 {[t0, t1, t2][u - 1]}, {pH5}, {14336 * u}")
    vm_wait()
    stamp(7)

    def h5_loads():
        for u, so in enumerate((pH5, t0, t1, t2)):
            a(f"buffer_load_dwordx4 {vr(T[4 * u], 4)}, {va}, {WS}, {so} offen sc1")
    poll("h5", h5_loads, h2_checks, back=cfg.lback)
    stamp(10)
    for d in range(8):
        a(f"v_add_f32 {v(T[d])}, {v(T[d])}, {v(T[8 + d])}")
    for d in range(4):
        a(f"v_add_f32 {v(T[d])}, {v(T[d])}, {v(T[4 + d])}")
    swapred(T[0])
    rnd(v(T[0]), v(T[0]))
    silu(v(T[2]), v(T[0]), v(T[3]))
    rnd(v(T[2]), v(T[2]))
    a(f"v_mul_f32_dpp {v(T[2])}, {v(T[0])}, {v(T[2])} row_ror:8{DPP}")
    a(f"v_cvt_pk_bf16_f32 {vX}, {v(T[2])}, {v(T[2])}")
    gemv_bcast(D0, W2, 7)
    red_write_A(D0, L_RED1)
    barrier()
    finalize_A(L_RED1, pH6)
    stamp(2)
    a.c("======== Q: final reduction on gi < 32, wave 0")
    a(f"s_cmp_lt_u32 {sGI}, 32")
    a("s_cbranch_scc0 L_fin")
    a(f"s_cmp_eq_u32 {sW}, 0")
    a("s_cbranch_scc0 L_fin")
    va = v(T[24])
    a(f"v_lshrrev_b32 {v(T[27])}, 3, {vL}")
    a(f"v_and_b32 {v(T[28])}, 7, {vL}")
    a(f"v_lshlrev_b32 {v(T[28])}, 4, {v(T[28])}")
    a(f"v_lshl_add_u32 {va}, {v(T[27])}, 12, {v(T[28])}")
    a(f"s_lshl_b32 {t3}, {sGI}, 7")
    a(f"s_add_u32 {t0}, {t3}, {H6}")
    a(f"s_add_u32 {t1}, {t0}, 32768")
    a(f"s_add_u32 {t2}, {t3}, {MODP + 5120 * 4}")
    a(f"s_lshl_b32 {t3}, {sGI}, 8")
    a(f"s_lshl_b32 {t4}, {sKS}, 13")
    a(f"s_add_u32 {t3}, {t3}, {t4}")
    a(f"s_add_u32 {t3}, {t3}, {XR}")
    a(f"s_add_u32 {t3}, {t3}, {sLG}")
    srd(SA, P_OUT, 2048)
    a(f"v_lshrrev_b32 {v(T[26])}, 1, {vQE4}")
    a(f"s_lshl_b32 {t4}, {sGI}, 6")
    if not cfg.early & 64:
        a("s_waitcnt vmcnt(0)")

    def h6_loads():
        a(f"buffer_load_dwordx4 {vr(T[0], 4)}, {va}, {WS}, {t0} offen sc1")
        a(f"buffer_load_dwordx4 {vr(T[4], 4)}, {va}, {WS}, {t1} offen sc1")
        a(f"buffer_load_dwordx4 {vr(T[8], 4)}, {vOB}, {WS}, {t2} offen sc1")
        a(f"buffer_load_dword {v(T[12])}, {vQE4}, {WS}, {t3} offen sc1")

    def h6_checks():
        clean(g4([T[0], T[4], T[8]]) + [(T[12], vTE)])
        a(f"v_and_b32 {vBAD}, 0xff, {vBAD}")
    poll("h6", h6_loads, h6_checks)
    for d in range(4):
        a(f"v_add_f32 {v(T[d])}, {v(T[d])}, {v(T[4 + d])}")
    swapred2(T[0], T[8])
    a(f"v_add_f32_dpp {v(T[0])}, {v(T[0])}, {v(T[0])} row_ror:8{DPP}")
    a(f"v_add_f32_dpp {v(T[8])}, {v(T[8])}, {v(T[8])} row_ror:8{DPP}")
    rnd(v(T[0]), v(T[0]))
    rnd(v(T[8]), v(T[8]))
    a(f"v_mul_f32 {v(T[0])}, {v(T[0])}, {v(T[8])}")
    rnd(v(T[0]), v(T[0]))
    a(f"v_add_f32 {v(T[0])}, {v(T[0])}, {v(T[12])}")
    a(f"v_cvt_pk_bf16_f32 {v(T[0])}, {v(T[0])}, {v(T[0])}")
    mask_n8()
    a(f"buffer_store_short {v(T[0])}, {v(T[26])}, {SA}, {t4} offen")
    a("s_mov_b64 exec, -1")
    stamp(14)
    a(f"s_cmp_eq_u32 {sGI}, 0")
    a("s_cbranch_scc0 L_fin")
    a("s_mov_b64 exec, 1")
    a(f"buffer_store_dword {vT32}, {vL4}, {WS}, 0 offen offset:{EPOCH}")
    a("s_mov_b64 exec, -1")
    if cfg.amp:
        a("s_memrealtime s[60:61]")
        a("s_waitcnt lgkmcnt(0)")
        a("s_sub_u32 s62, s98, s100")
        a(f"s_mul_i32 s62, s62, {cfg.amp}")
        a.label("L_amp")
        a("s_memrealtime s[64:65]")
        a("s_waitcnt lgkmcnt(0)")
        a("s_sub_u32 s63, s64, s60")
        a("s_cmp_lt_u32 s63, s62")
        a("s_cbranch_scc1 L_amp")
    a.label("L_fin")
    write_stamps()
    a.label("L_end")
    a("s_endpgm")

    hdr = open("cdna_kernels/" + NAME + ".s.ref").read().split("; @launch")[0]
    out = hdr
    out += f"; @launch grid=(256,1,1) block=(512,1,1) lds={LDS_BYTES}\n"
    out += '.amdgcn_target "amdgcn-amd-amdhsa--gfx950"\n.text\n'
    out += f".globl {NAME}_kernel\n.p2align 8\n.type {NAME}_kernel,@function\n"
    out += a.text()
    out += f""".section .rodata,"a"
.p2align 6
.amdhsa_kernel {NAME}_kernel
  .amdhsa_next_free_vgpr 256
  .amdhsa_next_free_sgpr 102
  .amdhsa_accum_offset 256
  .amdhsa_group_segment_fixed_size 0
  .amdhsa_kernarg_size 112
  .amdhsa_user_sgpr_count 2
  .amdhsa_user_sgpr_kernarg_segment_ptr 1
  .amdhsa_system_sgpr_workgroup_id_x 1
.end_amdhsa_kernel
"""
    if cfg.nomem:
        for n in (12582912, 8388608, 7340032, 67108864):
            out = out.replace(f", {n}\n", ", 0\n")
    return out, a.ninstr


if __name__ == "__main__":
    cfg = Cfg()
    outp = sys.argv[1]
    for kv in sys.argv[2:]:
        k, val = kv.split("=")
        setattr(cfg, k, type(getattr(cfg, k))(int(val)))
    txt, n = gen(cfg)
    open(outp, "w").write(txt)
    print("wrote", outp, n, "instructions")
```

```python
import sys
from asmlib import Asm

NAME = "adaLN_cond__sliding_block_cached__swiglu_ffn__decode"

EPOCH = 0
MODN = 0x1000
XR = 0x31000
MD = 0x41000
H5 = 0x51000
GOFF = 0xC0000
MODP = MODN + GOFF
H2 = 0x181000
H3O = 0x1A1000
H3ML = H3O
H4 = 0x221000
H6 = 0x241000
FLG = 0x251000
STAMP = 0x261000
WS_USED = 0x270000
F_H2, F_H3 = 0, 1

L_K = 0
L_V = 32768
L_RED0 = 65536
L_RED1 = L_RED0 + 8192
L_QS = L_RED1 + 4096
L_PS = L_QS + 8 * 272
L_WM = L_PS + 8 * 272
L_XL = L_WM + 256
LDS_BYTES = L_XL + 1024

TAGK = 0x9D6B5A37
LOG2E = 0x3FB8AA3B
SCALE = 0x3DB504F3
EPS = 0x3727C5AC


PN = ["", "h1", "h2", "h3", "h4", "h5", "h6", "h5a", "sbcb", "md"]


class Cfg:
    nt = True
    stamps = False
    amp = 0
    ampA = 0
    ampB = 14
    backoff = 0
    mback = 4
    mask = 1
    pre = 0
    h4w = 1
    scb = 1
    mdb = 4
    comb = 1
    cpf = 0
    g2 = 1
    g3 = 1
    qbar = 1
    sw = 0
    prep = 0
    cnt = 0
    lback = 2
    far = 0
    predirty = 0
    qA = 8
    capP3 = 0
    capN = 16
    capP4 = 0
    capQ2 = 0
    early = 0
    nomem = 0
    kv0 = 0
    kv1 = 2
    p3a = 4
    p3b = 4
    q2a = 0
    q7a = 0
    q7b = 2
    q7c = 0
    gbe = 1


def gen(cfg):
    a = Asm()
    NT = " nt" if cfg.nt else ""
    PRE = ["", " sc1", " nt"][cfg.prep]
    P_X, P_K, P_V, P_WQ, P_WO, P_BX, P_WG, P_WU = 8, 10, 12, 14, 16, 18, 20, 22
    P_WD, P_C, P_WM, P_OUT, P_DBG, P_WS = 24, 26, 28, 30, 32, 34
    WS = "s[36:39]"
    SA = "s[40:43]"
    SB = "s[44:47]"
    SM = "s[4:7]"
    sLG, tG = "s0", "s1"
    pMC = "s14"
    qXR, qR, pH5, pH6 = "s10", "s11", "s12", "s13"
    sW, sGI, sKS, sCS = "s48", "s49", "s50", "s51"
    sT = ["s52", "s53", "s54", "s55"]
    sT32, sT16 = "s56", "s57"
    sMROW = "s58"
    t0, t1, t2, t3, t4, t5 = "s60", "s61", "s62", "s63", "s64", "s65"
    sSPIN = "s70"
    sO6, sR6 = "s18", "s19"
    sKVL, sKVO = "s59", "s8"
    sFA, sW2, sMODK = "s3", "s32", "s33"
    vL, vN, vG = "v1", "v2", "v3"
    vM = ["v4", "v5", "v6", "v7"]
    vFF, vTL, vTE = "v8", "v9", "v10"
    vOB = "v11"
    vRW = "v12"
    vRB = "v13"
    vL4 = "v14"
    vXB = ["v15", "v16"]
    vXA = ["v17", "v18", "v19", "v20"]
    vBAD = "v21"
    vX = "v22"
    vLN = "v23"
    vT32 = "v0"
    A0, A1 = 24, 28
    D0, D1 = 32, 36
    T = list(range(40, 76))
    vXR, vONE, vFA, vMP = "v76", "v77", "v78", "v79"
    F0 = 80
    vQE4 = "v96"
    vA1, GU, vA4 = "v97", 98, "v100"
    vA2, vA3, vSH, vSC = "v252", "v253", "v254", "v255"
    vKV = [101, 102, 103, 104, 105, 106]
    vSTA = "v107"
    W0, W1, W2, W3 = 108, 140, 172, 204

    def v(i):
        return f"v{i}"

    def vr(i, n):
        return f"v[{i}:{i + n - 1}]"

    def srd(dst, ptr, nbytes):
        b = int(dst[2:dst.index(":")])
        a(f"s_mov_b32 s{b}, s{ptr}")
        a(f"s_mov_b32 s{b + 1}, s{ptr + 1}")
        a(f"s_mov_b32 s{b + 2}, {nbytes}")
        a(f"s_mov_b32 s{b + 3}, 0x00020000")

    def stamp(i):
        if cfg.amp and cfg.ampA == i:
            a("s_memrealtime s[100:101]")
        if cfg.amp and cfg.ampB == i:
            a("s_memrealtime s[98:99]")
        if cfg.stamps:
            a(f"s_memrealtime s[{72 + 2 * i}:{73 + 2 * i}]")

    def rnd(dst, src):
        a(f"v_cvt_pk_bf16_f32 {dst}, {src}, {src}")
        a(f"v_and_b32 {dst}, 0xffff0000, {dst}")

    DPP = " row_mask:0xf bank_mask:0xf"

    def allsum(x, tmp, op="add"):
        o = f"v_{op}_f32"
        a(f"{o}_dpp {x}, {x}, {x} quad_perm:[1,0,3,2]{DPP}")
        a(f"{o}_dpp {x}, {x}, {x} quad_perm:[2,3,0,1]{DPP}")
        a(f"{o}_dpp {x}, {x}, {x} row_half_mirror{DPP}")
        a(f"{o}_dpp {x}, {x}, {x} row_mirror{DPP}")
        rowsum(x, tmp, op)

    def rowsum(x, tmp, op="add"):
        o = f"v_{op}_f32"
        a(f"v_mov_b32 {tmp}, {x}")
        a(f"v_permlane16_swap_b32 {x}, {tmp}")
        a(f"{o} {x}, {x}, {tmp}")
        a(f"v_mov_b32 {tmp}, {x}")
        a(f"v_permlane32_swap_b32 {x}, {tmp}")
        a(f"{o} {x}, {x}, {tmp}")

    def swapred(x):
        a(f"v_permlane32_swap_b32 {v(x)}, {v(x + 2)}")
        a(f"v_permlane32_swap_b32 {v(x + 1)}, {v(x + 3)}")
        a(f"v_add_f32 {v(x)}, {v(x)}, {v(x + 2)}")
        a(f"v_add_f32 {v(x + 1)}, {v(x + 1)}, {v(x + 3)}")
        a(f"v_permlane16_swap_b32 {v(x)}, {v(x + 1)}")
        a(f"v_add_f32 {v(x)}, {v(x)}, {v(x + 1)}")

    def swapred2(x, y):
        for z in (x, y):
            a(f"v_permlane32_swap_b32 {v(z)}, {v(z + 2)}")
            a(f"v_permlane32_swap_b32 {v(z + 1)}, {v(z + 3)}")
        for z in (x, y):
            a(f"v_add_f32 {v(z)}, {v(z)}, {v(z + 2)}")
            a(f"v_add_f32 {v(z + 1)}, {v(z + 1)}, {v(z + 3)}")
        for z in (x, y):
            a(f"v_permlane16_swap_b32 {v(z)}, {v(z + 1)}")
        for z in (x, y):
            a(f"v_add_f32 {v(z)}, {v(z)}, {v(z + 1)}")

    def silu(dst, src, tmp):
        a(f"v_mul_f32 {tmp}, 0xbfb8aa3b, {src}")
        a(f"v_exp_f32 {tmp}, {tmp}")
        a(f"v_add_f32 {tmp}, 1.0, {tmp}")
        a(f"v_rcp_f32 {tmp}, {tmp}")
        a(f"v_mul_f32 {dst}, {src}, {tmp}")

    def clean(pairs):
        for r, t in pairs:
            a(f"v_xor_b32 {v(r)}, {t}, {v(r)}")
        regs = [r for r, _ in pairs]
        if len(regs) == 1:
            a(f"v_mov_b32 {vBAD}, {v(regs[0])}")
            return
        if len(regs) % 2 == 0:
            a(f"v_or_b32 {vBAD}, {v(regs[0])}, {v(regs[1])}")
            regs = regs[2:]
        else:
            a(f"v_or3_b32 {vBAD}, {v(regs[0])}, {v(regs[1])}, {v(regs[2])}")
            regs = regs[3:]
        for i in range(0, len(regs), 2):
            a(f"v_or3_b32 {vBAD}, {vBAD}, {v(regs[i])}, {v(regs[i + 1])}")

    def g4(regs):
        return [(r + d, sT[d]) for r in regs for d in range(4)]

    def poll(name, loads, checks, back=None, after=None, first=True):
        lw = a.newlabel(name + "_w")
        ld = a.newlabel(name + "_d")
        if first:
            loads()
            a("s_waitcnt vmcnt(0)")
        VM.q = []
        if name == PN[cfg.cnt]:
            stamp(1)
        if after:
            after()
        a.label(lw)
        checks()
        a(f"v_cmp_ne_u32 vcc, 0, {vBAD}")
        a(f"s_cbranch_vccz {ld}")
        msk = cfg.mask and name not in ("h5a", "h6", "h3") and not (cfg.comb and name == "sbcb")
        if msk:
            a("s_mov_b64 exec, vcc")
        back = cfg.backoff if back is None else back
        if back:
            a(f"s_sleep {back}")
        loads()
        if cfg.stamps and cfg.cnt in (0, PN.index(name)):
            a("s_add_u32 s71, s71, 1")
        a(f"s_sub_u32 {sSPIN}, {sSPIN}, 1")
        a("s_waitcnt vmcnt(0)")
        a(f"s_cbranch_scc0 {lw}")
        a(f"s_mov_b32 {sSPIN}, 0")
        a.label(ld)
        if msk:
            a("s_mov_b64 exec, -1")

    def gate(h):
        lp = a.newlabel("gate")
        ld = a.newlabel("gated")
        a(f"s_cmp_eq_u32 {sW}, 0")
        a(f"s_cbranch_scc0 {ld}")
        a("s_lshl_b32 s68, s2, 7")
        a(f"s_add_u32 s68, s68, {FLG + h * 32768}")
        a.label(lp)
        a(f"s_buffer_load_dword s69, {WS}, s68 glc")
        a("s_waitcnt lgkmcnt(0)")
        a(f"s_cmp_eq_u32 s69, {sT32}")
        a(f"s_cbranch_scc1 {ld}")
        a(f"s_sub_u32 {sSPIN}, {sSPIN}, 1")
        a(f"s_cbranch_scc0 {lp}")
        a(f"s_mov_b32 {sSPIN}, 0")
        a.label(ld)
        barrier()

    def signal_partner(h):
        a("s_xor_b32 s68, s2, 8")
        a("s_lshl_b32 s68, s68, 7")
        a(f"s_add_u32 s68, s68, {FLG + h * 32768}")
        a("s_mov_b64 exec, 1")
        a(f"buffer_store_dword {vT32}, {vL4}, {WS}, s68 offen sc1")
        a("s_mov_b64 exec, -1")

    def signal_w(h, wave=7):
        sk = a.newlabel("sg")
        a(f"s_cmp_eq_u32 {sW}, {wave}")
        a(f"s_cbranch_scc0 {sk}")
        signal_partner(h)
        a.label(sk)

    def setexec(m):
        if m == -1:
            a("s_mov_b64 exec, -1")
        elif m < 64:
            a(f"s_mov_b64 exec, {m}")
        else:
            a(f"s_mov_b32 exec_lo, {m & 0xffffffff:#x}")
            a(f"s_mov_b32 exec_hi, {m >> 32:#x}")

    def store2(items, defer=False):
        l1 = a.newlabel("sn")
        l2 = a.newlabel("sf")

        def emit(far, sc):
            cur = -1
            for op, data, va, so, imm, m in items:
                if m != cur:
                    setexec(m)
                    cur = m
                if far:
                    a(f"s_add_u32 {tG}, {so}, {GOFF}")
                    so = tG
                a(f"{op} {data}, {va}, {WS}, {so} offen offset:{imm}{sc}")
            if cur != -1:
                setexec(-1)
        a(f"s_cmp_eq_u32 {sLG}, 0")
        a(f"s_cbranch_scc0 {l1}")
        emit(False, "")
        if defer:
            a(f"s_branch {l2}")
        a.label(l1)
        emit(True, " sc1")
        if not defer:
            a(f"s_cmp_eq_u32 {sLG}, 0")
            a(f"s_cbranch_scc1 {l2}")
        emit(False, " sc1")
        a.label(l2)

    def far_A(soff):
        sk = a.newlabel("df")
        a(f"s_add_u32 {tG}, {soff}, {GOFF}")
        a(f"s_cmp_eq_u32 {sW2}, 0")
        a(f"s_cbranch_scc0 {sk}")
        a(f"buffer_store_dword {v(F0)}, {vL4}, {WS}, {tG} offen sc1")
        a.label(sk)

    def predirty(items):
        if not cfg.predirty:
            return
        l1 = a.newlabel("pd")
        a(f"s_cmp_eq_u32 {sLG}, 0")
        a(f"s_cbranch_scc0 {l1}")
        for op, data, va, so, imm, m in items:
            setexec(m)
            a(f"{op} {data}, {va}, {WS}, {so} offen offset:{imm}")
        setexec(-1)
        a.label(l1)

    def gemv_bcast(D, wbase, nt_):
        def prep(t):
            A = A0 if t % 2 == 0 else A1
            for d in range(4):
                a(f"v_and_b32_dpp {v(A + d)}, {vX}, {vM[d]} row_newbcast:{t}{DPP}")
        prep(0)
        for t in range(nt_):
            if t + 1 < nt_:
                prep(t + 1)
            A = A0 if t % 2 == 0 else A1
            c = "0" if t == 0 else vr(D, 4)
            a(f"v_mfma_f32_16x16x32_bf16 {vr(D, 4)}, {vr(A, 4)}, {vr(wbase + 4 * t, 4)}, {c}")

    def gemv_regs(D, wbase, xs):
        def prep(t):
            A = A0 if t % 2 == 0 else A1
            for d in range(4):
                a(f"v_and_b32 {v(A + d)}, {xs[t]}, {vM[d]}")
        prep(0)
        for t in range(len(xs)):
            if t + 1 < len(xs):
                prep(t + 1)
            A = A0 if t % 2 == 0 else A1
            c = "0" if t == 0 else vr(D, 4)
            a(f"v_mfma_f32_16x16x32_bf16 {vr(D, 4)}, {vr(A, 4)}, {vr(wbase + 4 * t, 4)}, {c}")

    def red_write_A(D, red):
        a("s_mov_b32 exec_hi, 0")
        a(f"ds_write_b128 {vRW}, {vr(D, 4)} offset:{red - L_RED0}")
        a("s_mov_b32 exec_hi, -1")

    def red_write_B(D, red):
        a("s_mov_b32 exec_lo, 0x00ff00ff")
        a("s_mov_b32 exec_hi, 0xff00ff00")
        a(f"ds_write_b128 {vRB}, {vr(D, 4)} offset:{red - L_RED0}")
        a("s_mov_b64 exec, -1")

    def finalize(vaddr, offs, soff, near=0):
        n = len(offs)
        for i in range(0, n, 2):
            a(f"ds_read2st64_b32 {vr(F0 + i, 2)}, {vaddr} offset0:{offs[i]} offset1:{offs[i + 1]}")
        a("s_waitcnt lgkmcnt(0)")
        step = 1
        while step < n:
            for i in range(0, n, 2 * step):
                a(f"v_add_f32 {v(F0 + i)}, {v(F0 + i)}, {v(F0 + i + step)}")
            step *= 2
        a(f"v_bfi_b32 {v(F0)}, {vFF}, {vTL}, {v(F0)}")
        if near:
            store2([("buffer_store_dword", v(F0), vL4, soff, 0, -1)], defer=near == 2)
        else:
            a(f"buffer_store_dword {v(F0)}, {vL4}, {WS}, {soff} offen sc1")

    def barrier():
        a("s_waitcnt lgkmcnt(0)")
        a("s_barrier")

    def finalize_A(red, sbase, w0=0, sig=None, near=0):
        sk = a.newlabel("fa")
        if not near:
            a(f"s_add_u32 {t5}, {sFA}, {sbase}")
        a(f"s_cmp_eq_u32 {sW2}, {w0 // 2}")
        a(f"s_cbranch_scc0 {sk}")
        o = (red - L_RED0) // 256
        finalize(vFA, [o + 2 * i for i in range(8)], sbase if near else t5, near)
        if sig is not None:
            a(f"s_cmp_eq_u32 {sW}, {w0}")
            a(f"s_cbranch_scc0 {sk}")
            signal_partner(sig)
        a.label(sk)

    def finalize_B(wave, red, colbytes):
        assert wave % 2 == 0
        sk = a.newlabel("fb")
        a(f"s_add_u32 {t5}, {sMODK}, {colbytes}")
        a(f"s_cmp_eq_u32 {sW}, {wave}")
        a(f"s_cbranch_scc0 {sk}")
        o = (red - L_RED0) // 256
        finalize(vFA, [o + i for i in range(16)], t5)
        a.label(sk)

    def predirty_A(soff):
        sk = a.newlabel("pa")
        a(f"s_cmp_eq_u32 {sW2}, 0")
        a(f"s_cbranch_scc0 {sk}")
        a(f"v_not_b32 {v(F0 + 8)}, {vTL}")
        predirty([("buffer_store_dword", v(F0 + 8), vL4, soff, 0, -1)])
        a.label(sk)

    def mod_prep():
        rnd(vSH, v(T[0]))
        a(f"v_add_f32_dpp {vSC}, {vSH}, {vONE} row_ror:8{DPP}")
        rnd(vSC, vSC)

    def modulate(sc=vSC):
        a(f"v_mul_f32 {v(T[1])}, {vLN}, {sc}")
        rnd(v(T[1]), v(T[1]))
        a(f"v_add_f32 {v(T[1])}, {v(T[1])}, {vSH}")
        a(f"v_cvt_pk_bf16_f32 {vX}, {v(T[1])}, {v(T[1])}")

    def ln_stats(mean, var):
        rnd(var, var)
        rnd(mean, mean)
        a(f"v_add_f32 {var}, {EPS}, {var}")
        rnd(var, var)
        a(f"v_sqrt_f32 {var}, {var}")
        rnd(var, var)
        a(f"v_rcp_f32 {var}, {var}")

    def ln_apply(xval, mean, rstd, tmp):
        a(f"v_sub_f32 {tmp}, {xval}, {mean}")
        rnd(tmp, tmp)
        a(f"v_mul_f32 {tmp}, {tmp}, {rstd}")
        rnd(vLN, tmp)

    def ln_finish(xval, mean, var, tmp):
        ln_stats(mean, var)
        ln_apply(xval, mean, var, tmp)

    class VM:
        q = []

    def vm_add(tag):
        VM.q.append(tag)

    def vm_wait(tag=None):
        if tag is None:
            n = 0
        else:
            if tag not in VM.q:
                return
            idx = max(i for i, t in enumerate(VM.q) if t == tag)
            n = len(VM.q) - 1 - idx
        a(f"s_waitcnt vmcnt({n})")
        VM.q = VM.q[len(VM.q) - n:] if n else []

    class Tile:
        def __init__(self, name, srdname, wreg, n, va, tstep):
            self.name, self.srd, self.wreg, self.n, self.va, self.tstep = name, srdname, wreg, n, va, tstep
            self.next = 0

        def addr(self, sbase, gstep):
            a(f"v_mul_u32_u24 {self.va}, {gstep}, {vG}")
            a(f"v_lshl_add_u32 {self.va}, {vN}, 4, {self.va}")
            a(f"v_add_u32 {self.va}, {sbase}, {self.va}")

        def issue(self, upto=None, cap=0):
            upto = self.n if upto is None else min(upto, self.n)
            while self.next < upto:
                t = self.next
                if cap and len(VM.q) >= cap:
                    a(f"s_waitcnt vmcnt({cap - 1})")
                    VM.q = VM.q[len(VM.q) - (cap - 1):] if cap > 1 else []
                self.load(t)
                vm_add(self.name)
                self.next += 1

        def load(self, t):
            so = "0"
            if t:
                so = "s69" if t % 2 else "s68"
                a(f"s_mov_b32 {so}, {t * self.tstep}")
            a(f"buffer_load_dwordx4 {vr(self.wreg + 4 * t, 4)}, {self.va}, {self.srd}, {so} offen{NT}")

    class TileG(Tile):
        def load(self, t):
            if cfg.nomem:
                a(f"buffer_load_dwordx4 {vr(self.wreg + 4 * t, 4)}, {vL4}, {SM}, 0 offen{NT}")
                return
            if t:
                a(f"v_add_co_u32 {v(GU)}, vcc, {4 * 7168}, {v(GU)}")
                a(f"v_addc_co_u32 {v(GU + 1)}, vcc, 0, {v(GU + 1)}, vcc")
            a(f"global_load_dwordx4 {vr(self.wreg + 4 * t, 4)}, {vr(GU, 2)}, off{NT}")

    def tileB(name, wreg, va, colbase, cs):
        tl = Tile(name, SM, wreg, 2, va, 12288)
        a(f"s_lshl_b32 {t0}, {cs}, 7")
        a(f"s_add_u32 {t0}, {t0}, {sMROW}")
        a(f"s_add_u32 {t0}, {t0}, {colbase}")
        a(f"v_add_u32 {va}, {t0}, {vOB}")
        return tl

    def tile6(wreg):
        a(f"s_max_u32 {t1}, {sW}, 1")
        a(f"s_sub_u32 {t1}, {t1}, 1")
        a(f"s_lshl_b32 {sR6}, {sCS}, 6")
        a(f"s_mul_i32 {sO6}, {sCS}, 3584")
        a(f"s_mul_i32 {t2}, {sKS}, 57344")
        a(f"s_add_u32 {sO6}, {sO6}, {t2}")
        a(f"s_add_u32 {sO6}, {sO6}, {H5}")
        a(f"s_cmp_ge_u32 {t1}, 3")
        a(f"s_cselect_b32 s69, 1, 0")
        a(f"s_cselect_b32 {t2}, 3, 0")
        a(f"s_sub_u32 {t2}, {t1}, {t2}")
        a(f"s_lshl_b32 {t2}, {t2}, 7")
        a(f"s_and_b32 {t0}, {sKS}, 1")
        a(f"s_lshl_b32 {t0}, {t0}, 6")
        a(f"s_add_u32 {t2}, {t2}, {t0}")
        a(f"s_cmp_eq_u32 {t2}, 448")
        a(f"s_cselect_b32 {t2}, 0, {t2}")
        a(f"s_add_u32 {t3}, {t2}, 64")
        a(f"s_cmp_eq_u32 {t1}, 6")
        a(f"s_cselect_b32 {t3}, {t2}, {t3}")
        a(f"s_cselect_b32 s68, 0, s69")
        a(f"s_mul_i32 {t0}, s68, 448")
        a(f"s_add_u32 {t0}, {t0}, {t2}")
        a(f"s_mul_i32 {t1}, s69, 448")
        a(f"s_add_u32 {t1}, {t1}, {t3}")
        a(f"v_mov_b32 {v(T[4])}, {t0}")
        a(f"v_mov_b32 {v(T[5])}, {t1}")
        a(f"s_mul_i32 {t0}, {sR6}, 7168")
        a(f"s_mul_i32 {t1}, {sKS}, 896")
        a(f"s_add_u32 {t0}, {t0}, {t1}")
        a(f"s_lshl_b32 {t2}, {t2}, 1")
        a(f"s_lshl_b32 {t3}, {t3}, 1")
        a(f"s_add_u32 {t2}, {t2}, {t0}")
        a(f"s_add_u32 {t3}, {t3}, {t0}")
        for sel, off, lo, hi in (("s68", t2, T[0], T[1]), ("s69", t3, T[2], T[3])):
            a(f"s_cmp_eq_u32 {sel}, 1")
            a(f"s_cselect_b32 {t0}, s{P_WU}, s{P_WG}")
            a(f"s_cselect_b32 {t1}, s{P_WU + 1}, s{P_WG + 1}")
            a(f"s_add_u32 {t0}, {t0}, {off}")
            a(f"s_addc_u32 {t1}, {t1}, 0")
            a(f"v_mov_b32 {v(lo)}, {t0}")
            a(f"v_mov_b32 {v(hi)}, {t1}")
        a(f"v_cmp_lt_u32 vcc, 7, {vN}")
        a(f"v_cndmask_b32 {v(GU)}, {v(T[0])}, {v(T[2])}, vcc")
        a(f"v_cndmask_b32 {v(GU + 1)}, {v(T[1])}, {v(T[3])}, vcc")
        a(f"v_cndmask_b32 {vA4}, {v(T[4])}, {v(T[5])}, vcc")
        a(f"v_mul_u32_u24 {v(T[0])}, {0 if cfg.nomem else 7168}, {vG}")
        a(f"v_and_b32 {v(T[1])}, 7, {vL}")
        a(f"v_lshl_add_u32 {v(T[0])}, {v(T[1])}, 4, {v(T[0])}")
        a(f"v_lshl_add_u32 {vA4}, {v(T[1])}, 3, {vA4}")
        a(f"v_lshl_add_u32 {vA4}, {vG}, 2, {vA4}")
        a(f"v_lshlrev_b32 {vA4}, 2, {vA4}")
        a(f"v_add_co_u32 {v(GU)}, vcc, {v(GU)}, {v(T[0])}")
        a(f"v_addc_co_u32 {v(GU + 1)}, vcc, 0, {v(GU + 1)}, vcc")

        return TileG("gu", None, wreg, 16, None, 0)

    def pair_sum():
        for d in range(4):
            a(f"v_add_f32 {v(T[d])}, {v(T[d])}, {v(T[4 + d])}")
        swapred(T[0])

    def pair_checks():
        clean(g4([T[0], T[4]]))
        a(f"v_and_b32 {vBAD}, 0xff, {vBAD}")

    def pair_loads():
        a(f"buffer_load_dwordx4 {vr(T[0], 4)}, {vMP}, {WS}, {t0} offen sc1")
        a(f"buffer_load_dwordx4 {vr(T[4], 4)}, {vMP}, {WS}, {t1} offen sc1")

    def not_w0(f, w0=None):
        sk = a.newlabel("nw")
        lj = a.newlabel("nj")
        a(f"s_cmp_eq_u32 {sW}, 0")
        a(f"s_cbranch_scc1 {sk}")
        f()
        if w0:
            a(f"s_branch {lj}")
        a.label(sk)
        if w0:
            w0()
            a.label(lj)

    def stage6_input():
        vs, vx, vm = v(T[27]), v(T[26]), v(T[25])
        a(f"v_and_b32 {vs}, 31, {vL}")
        a(f"v_lshlrev_b32 {vs}, 8, {vs}")
        a(f"v_bfe_u32 {vx}, {vL}, 3, 1")
        a(f"v_lshl_add_u32 {vx}, {vx}, 8, {vQE4}")
        a(f"s_lshl_b32 {t3}, {sKS}, 13")
        a(f"s_add_u32 {t3}, {t3}, {XR}")
        a(f"s_add_u32 {t3}, {t3}, {sLG}")
        a(f"s_lshl_b32 {t2}, {sR6}, 3")
        a(f"s_add_u32 {t2}, {t2}, {t3}")

        def loads0():
            a(f"buffer_load_dwordx4 {vr(T[16], 4)}, {vs}, {WS}, {t3} offen offset:128 sc1")
            a(f"buffer_load_dword {v(T[20])}, {vx}, {WS}, {t2} offen sc1")

        a(f"s_add_u32 {t0}, {t2}, {MD - XR}")

        def mloads():
            a(f"buffer_load_dword {vSH}, {vx}, {WS}, {t0} offen sc1")
            a(f"buffer_load_dword {vSC}, {vx}, {WS}, {t0} offen offset:128 sc1")
            loads0()

        def mchecks():
            a(f"v_xor_b32 {vSH}, {vTE}, {vSH}")
            a(f"v_xor_b32 {vSC}, {vTE}, {vSC}")
            a(f"v_or_b32 {vBAD}, {vSH}, {vSC}")
            a(f"v_and_b32 {vBAD}, 0xff, {vBAD}")
        poll("sbcb", mloads, mchecks, back=cfg.mback)
        stamp(7)

        def checks0():
            a(f"v_xor_b32 {v(T[20])}, {vTE}, {v(T[20])}")
            a(f"v_and_b32 {vBAD}, 0xff, {v(T[20])}")
            a(f"v_bitop3_b32 {vBAD}, {vBAD}, {v(T[17])}, {sT32} bitop3:0xf6")
            a(f"v_bitop3_b32 {vBAD}, {vBAD}, {v(T[19])}, {sT32} bitop3:0xf6")
        poll("h5a", loads0, checks0, back=cfg.lback, first=not cfg.comb)
        stamp(9)
        a(f"v_mov_b32 {v(T[12])}, {v(T[16])}")
        allsum(v(T[12]), v(T[10]))
        a(f"v_mul_f32 {v(T[12])}, 0x3c800000, {v(T[12])}")
        a(f"v_sub_f32 {v(T[10])}, {v(T[16])}, {v(T[12])}")
        a(f"v_mul_f32 {v(T[10])}, {v(T[10])}, {v(T[10])}")
        a(f"v_fmac_f32 {v(T[18])}, 0x42000000, {v(T[10])}")
        allsum(v(T[18]), v(T[10]))
        a(f"v_mul_f32 {v(T[13])}, 0x3a000000, {v(T[18])}")
        ln_stats(v(T[12]), v(T[13]))
        ln_apply(v(T[20]), v(T[12]), v(T[13]), v(T[10]))
        modulate()
        a(f"ds_write_b32 {vSTA}, {vX}")

    def col32_reduce(x):
        swapred(x)
        a(f"v_add_f32_dpp {v(x)}, {v(x)}, {v(x)} row_ror:8{DPP}")

    def write_stamps():
        if not cfg.stamps:
            return
        sk = a.newlabel("st")
        a(f"s_cmp_eq_u32 {sW}, {cfg.sw}")
        a(f"s_cbranch_scc0 {sk}")
        a("s_waitcnt lgkmcnt(0)")
        a("s_mov_b64 exec, 1")
        a(f"s_lshl_b32 {t0}, s2, 6")
        a(f"s_add_u32 {t0}, {t0}, {STAMP}")
        a(f"v_mov_b32 {v(T[1])}, 0")
        for i in range(15):
            a(f"v_mov_b32 {v(T[2 + i])}, s{72 + 2 * i}")
            a(f"buffer_store_dword {v(T[2 + i])}, {v(T[1])}, {WS}, {t0} offen offset:{4 * i}")
        a(f"v_mov_b32 {v(T[20])}, s71")
        a(f"buffer_store_dword {v(T[20])}, {v(T[1])}, {WS}, {t0} offen offset:60")
        a("s_mov_b64 exec, -1")
        a.label(sk)

    M_N8 = 0x00ff00ff00ff00ff

    def mask_n8():
        a("s_mov_b32 exec_lo, 0x00ff00ff")
        a("s_mov_b32 exec_hi, 0x00ff00ff")

    def common():
        a(f"s_load_dword {sT32}, s[{P_WS}:{P_WS + 1}], {EPOCH}")
        srd(WS, P_WS, WS_USED)
        a(f"s_getreg_b32 {t0}, hwreg(HW_REG_XCC_ID, 0, 4)")
        if cfg.far == 1:
            a(f"s_mov_b32 {t0}, 99")
        if cfg.far == 2:
            a(f"s_bitcmp1_b32 s2, 5")
            a(f"s_cselect_b32 {t0}, 99, {t0}")
        a(f"s_cmp_eq_u32 {t0}, {sKS}")
        a(f"s_cselect_b32 {sLG}, 0, {GOFF}")
        a(f"v_and_b32 {v(T[0])}, 1, {vL}")
        a(f"v_mov_b32 {v(T[1])}, 0xffff")
        a(f"v_lshlrev_b32 {v(T[0])}, 4, {v(T[0])}")
        a(f"v_lshlrev_b32 {v(T[1])}, {v(T[0])}, {v(T[1])}")
        a(f"v_bfe_u32 {v(T[0])}, {vL}, 1, 2")
        for d in range(4):
            a(f"v_cmp_eq_u32 vcc, {d}, {v(T[0])}")
            a(f"v_cndmask_b32 {vM[d]}, 0, {v(T[1])}, vcc")
        a(f"v_mov_b32 {vFF}, 0xff")
        a(f"v_mov_b32 {vONE}, 1.0")
        a(f"v_add_u32 {vSTA}, {L_XL}, {vL4}")
        a(f"s_lshl_b32 {t0}, {sW}, 9")
        a(f"s_add_u32 {t0}, {t0}, {L_RED0}")
        a(f"v_lshlrev_b32 {vRW}, 5, {vN}")
        a(f"v_lshl_add_u32 {vRW}, {vG}, 4, {vRW}")
        a(f"v_add_u32 {vRW}, {t0}, {vRW}")
        a(f"v_and_b32 {v(T[0])}, 7, {vL}")
        a(f"v_lshlrev_b32 {vRB}, 5, {v(T[0])}")
        a(f"v_and_b32 {v(T[1])}, 1, {vG}")
        a(f"v_lshl_add_u32 {vRB}, {v(T[1])}, 4, {vRB}")
        a(f"v_lshrrev_b32 {v(T[1])}, 1, {vG}")
        a(f"v_lshl_add_u32 {vRB}, {v(T[1])}, 8, {vRB}")
        a(f"v_add_u32 {vRB}, {t0}, {vRB}")
        a(f"s_and_b32 {sFA}, {sW}, 1")
        a(f"s_lshl_b32 {sFA}, {sFA}, 8")
        a(f"s_lshr_b32 {sW2}, {sW}, 1")
        a(f"s_add_u32 {t0}, {sFA}, {L_RED0}")
        a(f"v_add_u32 {vFA}, {t0}, {vL4}")
        a(f"s_mul_i32 {sMODK}, {t4}, 24576")
        a(f"s_add_u32 {sMODK}, {sMODK}, {MODP}")
        a(f"v_mul_u32_u24 {vMP}, 24576, {vG}")
        a(f"v_bfe_u32 {v(T[1])}, {vL}, 3, 1")
        a(f"v_lshl_add_u32 {vMP}, {v(T[1])}, 12, {vMP}")
        a(f"v_lshl_add_u32 {vMP}, {v(T[0])}, 4, {vMP}")
        a("s_waitcnt lgkmcnt(0)")
        a(f"s_xor_b32 {sT32}, {sT32}, {TAGK}")
        for d in range(4):
            a(f"s_bfe_u32 {sT[d]}, {sT32}, {(8 << 16) | (8 * d)}")
        a(f"s_lshr_b32 {sT16}, {sT32}, 16")
        a(f"v_mov_b32 {vT32}, {sT32}")
        a(f"v_and_b32 {v(T[0])}, 3, {vL}")
        a(f"v_lshlrev_b32 {v(T[0])}, 3, {v(T[0])}")
        a(f"v_bfe_u32 {vTL}, {vT32}, {v(T[0])}, 8")
        a(f"v_lshlrev_b32 {v(T[0])}, 3, {vG}")
        a(f"v_bfe_u32 {vTE}, {vT32}, {v(T[0])}, 8")

    a.raw(f"{NAME}_kernel:")
    a("s_cmp_ge_u32 s2, 256")
    a("s_cbranch_scc1 L_end")
    a("s_load_dwordx8 s[24:31], s[0:1], 64")
    a("s_load_dwordx16 s[8:23], s[0:1], 0")
    a("s_load_dwordx4 s[32:35], s[0:1], 96")
    if cfg.stamps:
        for i in range(15):
            a(f"s_mov_b64 s[{72 + 2 * i}:{73 + 2 * i}], 0")
        a("s_mov_b32 s71, 0")
    stamp(0)
    a(f"v_and_b32 {vL}, 63, v0")
    a(f"v_lshrrev_b32 {v(T[0])}, 6, v0")
    a(f"v_and_b32 {vN}, 15, v0")
    a(f"v_readfirstlane_b32 {sW}, {v(T[0])}")
    a(f"v_lshrrev_b32 {vG}, 4, {vL}")
    a(f"s_and_b32 {sKS}, s2, 7")
    a(f"s_lshr_b32 {sCS}, s2, 4")
    a(f"s_lshl_b32 {sGI}, {sCS}, 3")
    a(f"s_or_b32 {sGI}, {sGI}, {sKS}")
    a(f"s_mov_b32 {sSPIN}, 200000")
    if cfg.cpf:
        a.raw("L_pc:")
        a("s_getpc_b64 s[66:67]")
        a("s_lshr_b32 s68, s2, 3")
        a("s_lshl_b32 s68, s68, 10")
        a(f"v_lshl_add_u32 {v(F0 + 4)}, {vL}, 4, s68")
        a(f"v_min_u32 {v(F0 + 4)}, L_end-L_pc-16, {v(F0 + 4)}")
        a(f"v_and_b32 {v(F0 + 4)}, -4, {v(F0 + 4)}")
        sk = a.newlabel("cpf")
        a(f"s_cmp_eq_u32 {sW}, {cfg.cpf - 1}")
        a(f"s_cbranch_scc0 {sk}")
        a(f"global_load_dwordx4 {vr(F0, 4)}, {v(F0 + 4)}, s[66:67]")
        a.label(sk)
    a(f"v_lshrrev_b32 {v(T[0])}, 3, {vL}")
    a(f"v_mul_u32_u24 {vOB}, 24576, {v(T[0])}")
    a(f"v_and_b32 {v(T[1])}, 7, {vL}")
    a(f"v_lshl_add_u32 {vOB}, {v(T[1])}, 4, {vOB}")
    a(f"v_lshlrev_b32 {v(T[2])}, 2, {v(T[0])}")
    a(f"v_lshlrev_b32 {v(T[3])}, 3, {vG}")
    a(f"v_lshlrev_b32 {vL4}, 2, {vL}")
    a(f"v_lshl_add_u32 {vQE4}, {v(T[1])}, 2, {vG}")
    a(f"v_lshlrev_b32 {v(T[9])}, 1, {vQE4}")
    a(f"v_lshlrev_b32 {vQE4}, 2, {vQE4}")
    a(f"v_lshlrev_b32 {v(T[8])}, 5, {vL}")
    a(f"s_and_b32 {t4}, {sCS}, 7")
    a("s_bitcmp1_b32 s2, 3")
    a(f"s_cselect_b32 {t4}, {sKS}, {t4}")
    a(f"s_lshl_b32 {t2}, {t4}, 7")
    a(f"s_lshl_b32 {t3}, {sW}, 4")
    a(f"s_add_u32 {t2}, {t2}, {t3}")
    a(f"s_mul_i32 {sMROW}, {t2}, 12288")
    a(f"s_lshl_b32 {t2}, {t2}, 1")
    a("s_mov_b32 s6, 12582912")
    a("s_mov_b32 s7, 0x00020000")
    a("s_mov_b32 s46, 2048")
    a("s_mov_b32 s47, 0x00020000")
    a("s_bitcmp1_b32 s2, 3")
    a("s_cbranch_scc1 L_Q_pre")
    a(f"s_and_b32 {t5}, {sCS}, 8")
    a(f"s_or_b32 {t5}, {t5}, {sKS}")
    a(f"s_lshl_b32 {t0}, {t5}, 8")
    a(f"s_add_u32 {t0}, {t0}, {sMROW}")
    tS1 = Tile("s1", SM, W0, 4, vA1, 12288)
    tS1.addr(t0, 4 * 12288)
    a("s_waitcnt lgkmcnt(0)")
    a(f"s_mov_b32 s4, s{P_WM}")
    a(f"s_mov_b32 s5, s{P_WM + 1}")
    a(f"s_mov_b32 s44, s{P_C}")
    a(f"s_mov_b32 s45, s{P_C + 1}")
    VM.q = []
    a(f"buffer_load_dwordx2 {vr(T[6], 2)}, {v(T[3])}, {SB}, {t2} offen")
    a(f"buffer_load_dword {v(T[4])}, {v(T[2])}, {SB}, {t2} offen")
    vm_add("c")
    tS1.issue()
    a(f"s_mov_b32 {pMC}, {t5}")
    a(f"s_and_b32 s66, {sGI}, 3")
    a(f"s_lshr_b32 s67, {sGI}, 2")
    a(f"s_lshl_b32 {t2}, s66, 24")
    a(f"s_lshl_b32 {t1}, s67, 15")
    a(f"s_add_u32 {t2}, {t2}, {t1}")
    a(f"s_lshl_b32 {sKVL}, {sW}, 12")
    a(f"s_add_u32 {t2}, {t2}, {sKVL}")
    a(f"s_add_u32 {sKVO}, {t2}, {61440 * 256}")
    srd(SA, P_K, 67108864)
    srd(SB, P_V, 67108864)
    a(f"v_xor_b32 {v(vKV[0])}, {vN}, {vG}")
    a(f"v_lshlrev_b32 {v(vKV[0])}, 4, {v(vKV[0])}")
    a(f"v_lshl_add_u32 {v(vKV[0])}, {vG}, 8, {v(vKV[0])}")
    for u in range(1, 4):
        a(f"v_xor_b32 {v(vKV[u])}, {64 * u}, {v(vKV[0])}")
    a(f"v_lshlrev_b32 {v(vKV[4])}, 1, {vG}")
    a(f"v_xor_b32 {v(vKV[4])}, {vN}, {v(vKV[4])}")
    a(f"v_lshlrev_b32 {v(vKV[4])}, 4, {v(vKV[4])}")
    a(f"v_lshl_add_u32 {v(vKV[4])}, {vG}, 8, {v(vKV[4])}")
    a(f"v_xor_b32 {v(vKV[5])}, 128, {v(vKV[4])}")
    kvn = [0]

    def kv_issue(upto):
        while kvn[0] < upto:
            u = kvn[0]
            if u == 0:
                a(f"s_mov_b32 m0, {sKVL}")
            if u == 4:
                a(f"s_add_u32 m0, {sKVL}, {L_V}")
            if u < 4:
                a(f"buffer_load_dwordx4 {v(vKV[u])}, {SA}, {sKVO} offen offset:{1024 * u}{NT} lds")
            else:
                a(f"buffer_load_dwordx4 {v(vKV[4 + ((u - 4) >> 1)])}, {SB}, {sKVO} offen offset:{1024 * (u - 4)}{NT} lds")
            vm_add("kv")
            kvn[0] += 1
    if cfg.kv0:
        a("s_barrier")
    kv_issue(cfg.kv0)
    VMP = list(VM.q)
    common()

    def silu_c(typeA):
        if typeA:
            srcs = [(T[6], vXA[0], vXA[1]), (T[7], vXA[2], vXA[3])]
        else:
            srcs = [(T[4], vXB[0], vXB[1])]
        for s_, lo, hi in srcs:
            a(f"v_lshlrev_b32 {v(T[0])}, 16, {v(s_)}")
            a(f"v_and_b32 {v(T[1])}, 0xffff0000, {v(s_)}")
            silu(v(T[0]), v(T[0]), v(T[2]))
            silu(v(T[1]), v(T[1]), v(T[3]))
            a(f"v_cvt_pk_bf16_f32 {lo}, {v(T[0])}, {v(T[0])}")
            a(f"v_cvt_pk_bf16_f32 {hi}, {v(T[1])}, {v(T[1])}")

    a.c("======== P: S1")
    VM.q = VMP
    vm_wait("c")
    silu_c(True)
    a(f"s_lshl_b32 {t4}, {t5}, 9")
    a(f"s_add_u32 {sMODK}, {t4}, {sMODK}")
    a(f"s_add_u32 {t4}, {sMODK}, {sFA}")
    a(f"s_sub_u32 {t4}, {t4}, {GOFF}")
    tSC = Tile("sc", SM, W0 + 16, 4, vA2, 12288)
    a(f"v_add_u32 {vA2}, 6144, {vA1}")
    vm_wait("s1")
    stamp(1)
    kv_issue(cfg.kv1)
    gemv_regs(D0, W0, vXA)
    red_write_A(D0, L_RED0)
    barrier()
    finalize_A(L_RED0, t4, near=1)
    a("s_barrier")
    stamp(2)
    kv_issue(8)
    silu_c(False)
    tGU = tile6(W1)
    tGB = tileB("gb", W3, vA3, 10240, pMC)
    KF, VF, QF = W3, W3 + 16, W3 + 32
    vKA, vVA, vQA, vH2, vQW, vPW = v(T[30]), v(T[31]), v(T[32]), v(T[33]), v(T[34]), v(T[35])
    vWMr, vWMw, vOA, vMLA = v(T[26]), v(T[27]), v(T[28]), v(T[29])
    a(f"v_xor_b32 {vKA}, {vN}, {vG}")
    a(f"v_lshlrev_b32 {vKA}, 4, {vKA}")
    a(f"v_lshl_add_u32 {vKA}, {vN}, 8, {vKA}")
    a(f"s_lshl_b32 {t1}, {sW}, 12")
    a(f"v_add_u32 {vKA}, {t1}, {vKA}")
    a(f"v_bfe_u32 {v(T[0])}, {vL}, 2, 2")
    a(f"v_and_b32 {v(T[1])}, 1, {vG}")
    a(f"v_lshl_or_b32 {v(T[1])}, {v(T[1])}, 2, {v(T[0])}")
    a(f"v_lshlrev_b32 {v(T[1])}, 1, {v(T[1])}")
    a(f"v_bfe_u32 {v(T[2])}, {vL}, 1, 1")
    a(f"s_lshl_b32 {t1}, {sW}, 1")
    a(f"v_or_b32 {v(T[2])}, {t1}, {v(T[2])}")
    a(f"v_xor_b32 {v(T[2])}, {v(T[2])}, {v(T[1])}")
    a(f"v_lshl_add_u32 {v(T[0])}, {vG}, 3, {v(T[0])}")
    a(f"v_lshlrev_b32 {vVA}, 8, {v(T[0])}")
    a(f"v_lshl_add_u32 {vVA}, {v(T[2])}, 4, {vVA}")
    a(f"v_and_b32 {v(T[0])}, 1, {vL}")
    a(f"v_lshl_add_u32 {vVA}, {v(T[0])}, 3, {vVA}")
    a(f"v_add_u32 {vVA}, {L_V}, {vVA}")
    a(f"v_and_b32 {v(T[0])}, 7, {vL}")
    a(f"v_mul_u32_u24 {vQA}, 272, {v(T[0])}")
    a(f"v_lshl_add_u32 {vPW}, {vG}, 3, {vQA}")
    a(f"v_lshl_add_u32 {vQA}, {vG}, 4, {vQA}")
    a(f"v_add_u32 {vQA}, {L_QS}, {vQA}")
    a(f"s_lshl_b32 {t1}, {sW}, 5")
    a(f"s_add_u32 {t1}, {t1}, {L_PS}")
    a(f"v_add_u32 {vPW}, {t1}, {vPW}")
    a(f"v_lshlrev_b32 {vWMr}, 5, {v(T[0])}")
    a(f"v_add_u32 {vWMr}, {L_WM}, {vWMr}")
    a(f"s_lshl_b32 {t1}, {sW}, 2")
    a(f"v_add_u32 {vWMw}, {t1}, {vWMr}")
    a(f"v_lshlrev_b32 {vH2}, 14, {vG}")
    a(f"v_lshl_add_u32 {vH2}, {vN}, 4, {vH2}")
    a(f"v_lshl_add_u32 {vQW}, {vN}, 2, {vG}")
    a(f"v_lshlrev_b32 {vQW}, 1, {vQW}")
    a(f"s_mul_i32 {t1}, {sW}, 272")
    a(f"s_add_u32 {t1}, {t1}, {L_QS}")
    a(f"v_add_u32 {vQW}, {t1}, {vQW}")
    a(f"v_lshlrev_b32 {vOA}, 7, {vG}")
    a(f"v_lshl_add_u32 {vOA}, {vN}, 4, {vOA}")
    a(f"v_lshlrev_b32 {vMLA}, 3, {vL}")
    a(f"s_lshl_b32 {t2}, s66, 3")
    a(f"s_add_u32 {t2}, {t2}, {sW}")
    a(f"s_lshl_b32 {t3}, {t2}, 5")
    a(f"s_add_u32 {t3}, {t3}, s67")
    a(f"s_lshl_b32 {t2}, {t2}, 9")
    a(f"s_add_u32 {t2}, {t2}, {H2}")
    a(f"s_lshl_b32 s66, {t3}, 9")
    a(f"s_add_u32 s66, s66, {H3O}")
    a(f"s_lshl_b32 s67, {t3}, 6")
    a(f"s_add_u32 s67, s67, {H3ML}")
    a(f"s_add_u32 {t3}, {t2}, 65536")
    if cfg.pre & 1:
        mask_n8()
        a(f"buffer_load_dwordx4 {vr(F0, 4)}, {vOA}, {WS}, s66 offen{PRE}")
        a("s_mov_b64 exec, 0xff")
        a(f"buffer_load_dwordx2 {vr(F0 + 4, 2)}, {vMLA}, {WS}, s67 offen{PRE}")
        a("s_mov_b64 exec, -1")

    def k_reads():
        for s_ in range(4):
            a(f"ds_read_b128 {vr(KF + 4 * s_, 4)}, {v(T[19 + s_]) if s_ else vKA}")

    def v_reads():
        for s_ in range(4):
            for u in range(2):
                a(f"ds_read_b64_tr_b16 {vr(VF + 4 * s_ + 2 * u, 2)}, {vVA} offset:{8192 * s_ + 1024 * u}")
    for s_ in range(1, 4):
        a(f"v_xor_b32 {v(T[19 + s_])}, {64 * s_}, {vKA}")
    if not cfg.g2:
        vm_wait()
        stamp(3)
        a("s_barrier")
        k_reads()
        v_reads()
    for d in range(4):
        a(f"v_mov_b32 {v(A0 + d)}, 0x3f803f80")
    a(f"s_mov_b32 {t1}, {LOG2E}")
    gate(F_H2)
    stamp(4)

    def h2_loads():
        a(f"buffer_load_dwordx4 {vr(T[0], 4)}, {vH2}, {WS}, {t2} offen sc1")
        a(f"buffer_load_dwordx4 {vr(T[4], 4)}, {vH2}, {WS}, {t2} offen offset:256 sc1")
        a(f"buffer_load_dwordx4 {vr(T[8], 4)}, {vH2}, {WS}, {t3} offen sc1")
        a(f"buffer_load_dwordx4 {vr(T[12], 4)}, {vH2}, {WS}, {t3} offen offset:256 sc1")

    def h2_checks():
        clean(g4([T[0], T[4], T[8], T[12]]))
        a(f"v_and_b32 {vBAD}, 0xff, {vBAD}")
    poll("h2", h2_loads, h2_checks, after=k_reads if cfg.g2 else None)
    stamp(5)
    for d in range(8):
        a(f"v_add_f32 {v(T[d])}, {v(T[d])}, {v(T[8 + d])}")
    swapred2(T[0], T[4])
    a(f"v_cvt_pk_bf16_f32 {v(T[0])}, {v(T[0])}, {v(T[4])}")
    a(f"ds_write_b16 {vQW}, {v(T[0])}")
    a(f"ds_write_b16_d16_hi {vQW}, {v(T[0])} offset:128")
    barrier()
    for s_ in range(4):
        a(f"ds_read_b128 {vr(QF + 4 * s_, 4)}, {vQA} offset:{64 * s_}")
    if cfg.g2:
        v_reads()
    tSC.issue(cfg.p3a)
    if cfg.p3a > 4:
        not_w0(lambda: tGU.issue(cfg.p3a - 4))
    for s_ in range(4):
        a(f"s_waitcnt lgkmcnt({(11 if cfg.g2 else 3) - s_})")
        c = "0" if s_ == 0 else vr(D0, 4)
        a(f"v_mfma_f32_16x16x32_bf16 {vr(D0, 4)}, {vr(KF + 4 * s_, 4)}, {vr(QF + 4 * s_, 4)}, {c}")
    a(f"v_cvt_pk_bf16_f32 {v(T[0])}, {v(D0)}, {v(D0 + 1)}")
    a(f"v_cvt_pk_bf16_f32 {v(T[2])}, {v(D0 + 2)}, {v(D0 + 3)}")
    for p in (0, 2):
        a(f"v_and_b32 {v(T[p + 1])}, 0xffff0000, {v(T[p])}")
        a(f"v_lshlrev_b32 {v(T[p])}, 16, {v(T[p])}")
    for r in range(4):
        a(f"v_mul_f32 {v(T[r])}, {SCALE}, {v(T[r])}")
    a(f"v_cvt_pk_bf16_f32 {v(T[0])}, {v(T[0])}, {v(T[1])}")
    a(f"v_cvt_pk_bf16_f32 {v(T[2])}, {v(T[2])}, {v(T[3])}")
    for p in (0, 2):
        a(f"v_and_b32 {v(T[p + 1])}, 0xffff0000, {v(T[p])}")
        a(f"v_lshlrev_b32 {v(T[p])}, 16, {v(T[p])}")
    a(f"v_max3_f32 {v(T[4])}, {v(T[0])}, {v(T[1])}, {v(T[2])}")
    a(f"v_max_f32 {v(T[4])}, {v(T[4])}, {v(T[3])}")
    rowsum(v(T[4]), v(T[5]), "max")
    a("s_mov_b64 exec, 0xff")
    a(f"ds_write_b32 {vWMw}, {v(T[4])}")
    a("s_mov_b64 exec, -1")
    barrier()
    a(f"ds_read_b128 {vr(T[12], 4)}, {vWMr}")
    a(f"ds_read_b128 {vr(T[16], 4)}, {vWMr} offset:16")
    if cfg.early & 4:
        signal_w(F_H3)
    a("s_waitcnt lgkmcnt(0)")
    a(f"v_max3_f32 {v(T[4])}, {v(T[12])}, {v(T[13])}, {v(T[14])}")
    a(f"v_max3_f32 {v(T[5])}, {v(T[15])}, {v(T[16])}, {v(T[17])}")
    a(f"v_max3_f32 {v(T[4])}, {v(T[4])}, {v(T[18])}, {v(T[19])}")
    a(f"v_max_f32 {v(T[4])}, {v(T[4])}, {v(T[5])}")
    for r in range(4):
        a(f"v_sub_f32 {v(T[r])}, {v(T[r])}, {v(T[4])}")
    for r in range(4):
        a(f"v_mul_f32 {v(T[r])}, {t1}, {v(T[r])}")
    for r in range(4):
        a(f"v_exp_f32 {v(T[r])}, {v(T[r])}")
    a(f"v_cvt_pk_bf16_f32 {v(T[6])}, {v(T[0])}, {v(T[1])}")
    a(f"v_cvt_pk_bf16_f32 {v(T[7])}, {v(T[2])}, {v(T[3])}")
    mask_n8()
    a(f"ds_write_b64 {vPW}, {vr(T[6], 2)}")
    a("s_mov_b64 exec, -1")
    a(f"v_mul_f32 {v(T[4])}, {t1}, {v(T[4])}")
    a(f"s_mov_b32 {t2}, 0x07060503")
    a(f"s_mov_b32 {t3}, 0x07060502")
    a(f"s_mov_b32 {t4}, 0x07060501")
    barrier()
    for s_ in range(4):
        a(f"ds_read_b128 {vr(QF + 4 * s_, 4)}, {vQA} offset:{L_PS - L_QS + 64 * s_}")
    if cfg.early & 2:
        signal_w(F_H3)
    for s_ in range(4):
        a(f"s_waitcnt lgkmcnt({3 - s_})")
        c = "0" if s_ == 0 else vr(D1, 4)
        a(f"v_mfma_f32_16x16x32_bf16 {vr(D1, 4)}, {vr(A0, 4)}, {vr(QF + 4 * s_, 4)}, {c}")
        c = "0" if s_ == 0 else vr(D0, 4)
        a(f"v_mfma_f32_16x16x32_bf16 {vr(D0, 4)}, {vr(VF + 4 * s_, 4)}, {vr(QF + 4 * s_, 4)}, {c}")
    a(f"v_log_f32 {v(T[5])}, {v(D1)}")
    a(f"v_rcp_f32 {v(T[6])}, {v(D1)}")
    a(f"v_add_f32 {v(T[4])}, {v(T[4])}, {v(T[5])}")
    for d in range(4):
        a(f"v_mul_f32 {v(D0 + d)}, {v(D0 + d)}, {v(T[6])}")
    a(f"v_bfi_b32 {v(D0)}, {vFF}, {vTL}, {v(D0)}")
    for d, sel in ((1, t2), (2, t3), (3, t4)):
        a(f"v_perm_b32 {v(D0 + d)}, {v(D0 + d)}, {v(T[4])}, {sel}")
    mask_n8()
    a(f"buffer_store_dwordx4 {vr(D0, 4)}, {vOA}, {WS}, s66 offen sc1")
    a("s_mov_b64 exec, -1")
    if not cfg.early & 6:
        signal_w(F_H3, 0)
    a("s_barrier")
    stamp(6)
    a.c("======== P: sb/cb tile, gate/up tile, w_down tile")
    tSC.issue(cap=cfg.capP3)

    def gu1():
        tGU.issue(cfg.p3b, cap=cfg.capP3)
        vm_wait("sc")
    not_w0(gu1, lambda: a("s_waitcnt vmcnt(0)"))
    gemv_regs(D0, W0 + 16, vXA)
    red_write_A(D0, L_RED1)
    barrier()
    a(f"s_add_u32 {t4}, {sMODK}, {3072 * 4}")
    finalize_A(L_RED1, t4, w0=2)
    if cfg.scb:
        a("s_barrier")
    stamp(13)

    def gu2():
        tGU.issue(cfg.capN, cap=cfg.capP3)
        tGU.issue(cap=cfg.capP4)
        stamp(12)
        vm_wait()
        stamp(11)
    not_w0(gu2, stage6_input)
    barrier()
    stamp(8)
    a(f"ds_read_b32 {vX}, {vSTA}")
    if cfg.gbe:
        tGB.issue()
    a("s_waitcnt lgkmcnt(0)")

    def s6():
        gemv_bcast(D0, W1, 16)
        for d in range(4):
            a(f"v_bfi_b32 {v(D0 + d)}, {vFF}, {sT[d]}, {v(D0 + d)}")
        store2([("buffer_store_dwordx4", vr(D0, 4), vA4, sO6, 0, 0xffffffff)])
    not_w0(s6)
    if cfg.stamps:
        a("s_barrier")
    stamp(10)
    tGB.issue()
    a(f"s_lshl_b32 {t4}, {pMC}, 8")
    a(f"s_sub_u32 {t4}, 20480, {t4}")
    vm_wait("gb")
    gemv_regs(D1, W3, vXB)
    red_write_B(D1, L_RED0 + 4096)
    barrier()
    finalize_B(0, L_RED0 + 4096, t4)
    stamp(14)
    a("s_branch L_fin")

    a.label("L_Q_pre")
    a(f"s_lshl_b32 s66, {sKS}, 7")
    a(f"s_and_b32 {t1}, {sW}, 3")
    a(f"s_lshl_b32 {t1}, {t1}, 5")
    a(f"s_add_u32 s66, s66, {t1}")
    a(f"s_lshl_b32 {t1}, {sCS}, 9")
    a(f"s_lshr_b32 {t0}, {sW}, 2")
    a(f"s_lshl_b32 {t0}, {t0}, 8")
    a(f"s_add_u32 {t1}, {t1}, {t0}")
    a(f"s_lshl_b32 {t0}, s66, 13")
    a(f"s_add_u32 {t0}, {t0}, {t1}")
    tWQ = Tile("wq", SA, W0, 8, vA1, 4 * 8192)
    tWQ.addr(t0, 8192)
    a("s_mov_b32 s42, 8388608")
    a("s_mov_b32 s43, 0x00020000")
    a("s_waitcnt lgkmcnt(0)")
    a(f"s_mov_b32 s40, s{P_WQ}")
    a(f"s_mov_b32 s41, s{P_WQ + 1}")
    a(f"s_mov_b32 s44, s{P_X}")
    a(f"s_mov_b32 s45, s{P_X + 1}")
    VM.q = []
    a(f"buffer_load_dwordx4 {vr(T[12], 4)}, {v(T[8])}, {SB}, 0 offen")
    a(f"buffer_load_dwordx4 {vr(T[16], 4)}, {v(T[8])}, {SB}, 0 offen offset:16")
    a(f"s_lshl_b32 {t1}, s66, 1")
    a(f"buffer_load_ushort {v(T[20])}, {v(T[9])}, {SB}, {t1} offen")
    a(f"s_and_b32 {t1}, {sW}, 1")
    a(f"s_lshl_b32 {qR}, {sCS}, 1")
    a(f"s_add_u32 {qR}, {qR}, {t1}")
    a(f"s_lshl_b32 {t1}, {qR}, 6")
    a(f"buffer_load_ushort {vXR}, {v(T[9])}, {SB}, {t1} offen")
    a(f"s_mov_b32 s44, s{P_C}")
    a(f"s_mov_b32 s45, s{P_C + 1}")
    a(f"buffer_load_dword {v(T[4])}, {v(T[2])}, {SB}, {t2} offen")
    vm_add("c")
    if cfg.qbar:
        a("s_barrier")
    tWQ.issue(cfg.qA)
    a(f"s_mov_b32 s4, s{P_WM}")
    a(f"s_mov_b32 s5, s{P_WM + 1}")
    VMQ = list(VM.q)
    common()
    a.c("======== Q: layernorm of x, silu(c)")
    VM.q = VMQ
    vm_wait("c")
    stamp(1)
    tWQ.issue()
    silu_c(False)
    XU = W3
    for i in range(8):
        a(f"v_lshlrev_b32 {v(XU + 2 * i)}, 16, {v(T[12 + i])}")
        a(f"v_and_b32 {v(XU + 2 * i + 1)}, 0xffff0000, {v(T[12 + i])}")
    a(f"v_lshlrev_b32 {v(T[20])}, 16, {v(T[20])}")
    a(f"v_add_f32 {v(T[0])}, {v(XU)}, {v(XU + 1)}")
    for i in range(2, 16):
        a(f"v_add_f32 {v(T[0])}, {v(T[0])}, {v(XU + i)}")
    allsum(v(T[0]), v(T[1]))
    a(f"v_mul_f32 {v(T[0])}, 0x3a800000, {v(T[0])}")
    a(f"v_mov_b32 {v(T[2])}, 0")
    for i in range(16):
        a(f"v_sub_f32 {v(XU + i)}, {v(XU + i)}, {v(T[0])}")
        a(f"v_fmac_f32 {v(T[2])}, {v(XU + i)}, {v(XU + i)}")
    allsum(v(T[2]), v(T[1]))
    a(f"v_mul_f32 {v(T[2])}, 0x3a800000, {v(T[2])}")
    ln_finish(v(T[20]), v(T[0]), v(T[2]), v(T[1]))
    a.c("======== Q: S2")
    tGA = tileB("ga", W3, vA3, 4096, sCS)
    srd(SB, P_WD, 7340032)
    a(f"s_and_b32 {t0}, {sCS}, 1")
    a(f"s_mul_i32 {t2}, {t0}, 224")
    a(f"s_mul_i32 {t1}, {sW}, 28")
    a(f"s_add_u32 {t2}, {t2}, {t1}")
    a(f"s_mul_i32 {t1}, {sKS}, 448")
    a(f"s_add_u32 {t4}, {t2}, {t1}")
    a(f"s_lshl_b32 {t4}, {t4}, 11")
    a(f"s_lshr_b32 {t3}, {sCS}, 1")
    a(f"s_lshl_b32 {t1}, {t3}, 8")
    a(f"s_add_u32 {t4}, {t4}, {t1}")
    tWD = Tile("wd", SB, W2, 7, vA4, 4 * 2048)
    tWD.addr(t4, 2048)
    a(f"s_lshl_b32 {pH5}, {t2}, 2")
    a(f"s_mul_i32 {t1}, {sKS}, 57344")
    a(f"s_add_u32 {pH5}, {pH5}, {t1}")
    a(f"s_add_u32 {pH5}, {pH5}, {H5}")
    a(f"s_add_u32 {pH5}, {pH5}, {sLG}")
    a(f"s_lshl_b32 {pH6}, {sKS}, 1")
    a(f"s_add_u32 {pH6}, {pH6}, {t0}")
    a(f"s_lshl_b32 {pH6}, {pH6}, 12")
    a(f"s_lshl_b32 {t1}, {t3}, 9")
    a(f"s_add_u32 {pH6}, {pH6}, {t1}")
    a(f"s_add_u32 {pH6}, {pH6}, {H6}")
    a(f"s_lshl_b32 {qXR}, {sKS}, 13")
    a(f"s_lshl_b32 {t3}, {qR}, 8")
    a(f"s_add_u32 {qXR}, {qXR}, {t3}")
    a(f"s_add_u32 {qXR}, {qXR}, {XR}")
    xr_items = [("buffer_store_dword", v(T[1]), vQE4, qXR, 0, M_N8),
                ("buffer_store_dwordx4", vr(T[20], 4), vL4, qXR, 128, 1)]
    a(f"s_lshl_b32 {t0}, s66, 2")
    a(f"s_add_u32 {t0}, {t0}, {MODN}")
    a(f"s_add_u32 {t0}, {t0}, {sLG}")
    a(f"s_add_u32 {t1}, {t0}, {4 * 24576}")
    a(f"s_lshl_b32 {t4}, {sKS}, 14")
    a(f"s_lshl_b32 {t3}, {sCS}, 10")
    a(f"s_add_u32 {t4}, {t4}, {t3}")
    a(f"s_lshl_b32 {t3}, {sW}, 8")
    a(f"s_add_u32 {t4}, {t4}, {t3}")
    a(f"s_add_u32 {t4}, {t4}, {H2}")
    a(f"s_lshl_b32 {t3}, {sW2}, 11")
    a(f"v_add_u32 {v(T[34])}, {t3}, {vFA}")
    if cfg.pre & 2:
        a(f"buffer_load_dword {v(F0)}, {vL4}, {WS}, {t4} offen{PRE}")
    if cfg.pre & 8:
        a(f"s_add_u32 {t3}, {pH6}, {sFA}")
        a(f"buffer_load_dword {v(F0 + 1)}, {vL4}, {WS}, {t3} offen{PRE}")
    srd(SA, P_WO, 8388608)
    a(f"s_and_b32 s66, {sGI}, 31")
    a(f"s_lshr_b32 s67, {sGI}, 5")
    a(f"s_lshr_b32 {t3}, s66, 3")
    a(f"s_lshl_b32 {t2}, {t3}, 10")
    a(f"s_and_b32 {t3}, s66, 7")
    a(f"s_lshl_b32 {t3}, {t3}, 4")
    a(f"s_add_u32 {t2}, {t2}, {t3}")
    a(f"s_and_b32 {t3}, {sW}, 3")
    a(f"s_lshl_b32 {t3}, {t3}, 2")
    a(f"s_add_u32 {t2}, {t2}, {t3}")
    a(f"s_lshl_b32 {t2}, {t2}, 11")
    a(f"s_lshl_b32 {t3}, s67, 9")
    a(f"s_add_u32 {t2}, {t2}, {t3}")
    a(f"s_lshr_b32 {t3}, {sW}, 2")
    a(f"s_lshl_b32 {t3}, {t3}, 8")
    a(f"s_add_u32 {t2}, {t2}, {t3}")
    tWO = Tile("wo", SA, W1, 8, vA2, 128 * 2048)
    tWO.addr(t2, 2048)
    vm_wait()
    stamp(3)
    poll("h1", pair_loads, pair_checks, back=cfg.lback)
    stamp(4)
    tWO.issue(cfg.q2a)
    pair_sum()
    mod_prep()
    modulate()
    if cfg.early & 1:
        signal_w(F_H2)
    gemv_bcast(D0, W0, 8)
    red_write_A(D0, L_RED1)
    barrier()
    sk = a.newlabel("f2")
    a(f"s_cmp_lt_u32 {sW}, 4")
    a(f"s_cbranch_scc0 {sk}")
    finalize(v(T[34]), [32, 34, 36, 38], t4)
    if not cfg.early & 1:
        a(f"s_cmp_eq_u32 {sW}, 0")
        a(f"s_cbranch_scc0 {sk}")
        signal_partner(F_H2)
    a.label(sk)
    a("s_barrier")
    stamp(5)
    a.c("======== Q: wo tile + gb tile")
    tGA.issue(cap=cfg.capQ2)
    tWO.issue(cap=cfg.capQ2)
    tWD.issue(cfg.q7a, cap=cfg.capQ2)
    a(f"s_and_b32 {t1}, {sW}, 3")
    a(f"s_lshl_b32 {t1}, {t1}, 8")
    a(f"s_add_u32 {t1}, {t1}, {L_XL}")
    a(f"v_add_u32 {v(T[33])}, {t1}, {vL4}")
    va, vb = v(T[31]), v(T[32])
    a(f"v_lshrrev_b32 {v(T[28])}, 3, {vL}")
    a(f"v_and_b32 {v(T[29])}, 7, {vL}")
    a(f"v_lshlrev_b32 {va}, 11, {v(T[28])}")
    a(f"v_lshl_add_u32 {va}, {v(T[29])}, 4, {va}")
    a(f"s_lshl_b32 {t2}, s66, 14")
    a(f"s_lshl_b32 {t1}, {sW}, 7")
    a(f"s_add_u32 {t2}, {t2}, {t1}")
    a(f"s_add_u32 {t2}, {t2}, {H3O}")
    a(f"s_lshl_b32 s59, s66, 12")
    a(f"s_lshl_b32 {t1}, s67, 10")
    a(f"s_add_u32 s59, s59, {t1}")
    a(f"s_lshl_b32 {t1}, {sW}, 8")
    a(f"s_add_u32 s59, s59, {t1}")
    a(f"s_add_u32 s59, s59, {H4}")
    if cfg.pre & 4:
        a(f"buffer_load_dword {v(T[35])}, {vL4}, {WS}, s59 offen{PRE}")
    vm_wait("ga")
    gemv_regs(D0, W3, vXB)
    red_write_B(D0, L_RED0 + 4096)
    barrier()
    a(f"s_lshl_b32 {t4}, {sCS}, 8")
    a(f"s_add_u32 {t4}, {t4}, 8192")
    finalize_B(4, L_RED0 + 4096, t4)
    a(f"s_mov_b32 {t1}, 0x04000c0c")
    a(f"s_mov_b32 {t3}, 0x0706000c")
    if not cfg.g3:
        vm_wait()
    stamp(6)
    gate(F_H3)
    stamp(11)
    a(f"s_cmp_lt_u32 {sW}, 4")
    a("s_cbranch_scc0 L_s4_wait")

    def h3_loads():
        for i in range(4):
            a(f"buffer_load_dwordx4 {vr(T[4 * i], 4)}, {va}, {WS}, {t2} offen offset:{512 * i} sc1")

    def h3_checks():
        clean([(T[4 * i], vTL) for i in range(4)])
        a(f"v_and_b32 {vBAD}, 0xff, {vBAD}")
    poll("h3", h3_loads, h3_checks)
    stamp(12)
    for i in range(4):
        a(f"v_perm_b32 {v(T[16 + i])}, {v(T[4 * i + 1])}, {v(T[4 * i + 2])}, {t1}")
    for i in range(4):
        a(f"v_perm_b32 {v(T[16 + i])}, {v(T[16 + i])}, {v(T[4 * i + 3])}, {t3}")
    a(f"v_max3_f32 {v(T[24])}, {v(T[16])}, {v(T[17])}, {v(T[18])}")
    a(f"v_max_f32 {v(T[24])}, {v(T[24])}, {v(T[19])}")
    a(f"v_max_f32_dpp {v(T[24])}, {v(T[24])}, {v(T[24])} row_ror:8{DPP}")
    rowsum(v(T[24]), v(T[25]), "max")
    for i in range(4):
        a(f"v_sub_f32 {v(T[16 + i])}, {v(T[16 + i])}, {v(T[24])}")
    for i in range(4):
        a(f"v_exp_f32 {v(T[16 + i])}, {v(T[16 + i])}")
    a(f"v_add_f32 {v(T[24])}, {v(T[16])}, {v(T[17])}")
    a(f"v_add_f32 {v(T[25])}, {v(T[18])}, {v(T[19])}")
    for d in range(4):
        a(f"v_mul_f32 {v(T[d])}, {v(T[16])}, {v(T[d])}")
    a(f"v_add_f32 {v(T[24])}, {v(T[24])}, {v(T[25])}")
    for d in range(4):
        a(f"v_fmac_f32 {v(T[d])}, {v(T[17])}, {v(T[4 + d])}")
    a(f"v_add_f32_dpp {v(T[24])}, {v(T[24])}, {v(T[24])} row_ror:8{DPP}")
    for i in range(2, 4):
        for d in range(4):
            a(f"v_fmac_f32 {v(T[d])}, {v(T[16 + i])}, {v(T[4 * i + d])}")
    rowsum(v(T[24]), v(T[25]), "add")
    a(f"v_rcp_f32 {v(T[24])}, {v(T[24])}")
    col32_reduce(T[0])
    a(f"v_mul_f32 {v(T[0])}, {v(T[0])}, {v(T[24])}")
    a(f"v_cvt_pk_bf16_f32 {vX}, {v(T[0])}, {v(T[0])}")
    a(f"ds_write_b32 {v(T[33])}, {vX}")
    a.label("L_s4_wait")
    a("s_waitcnt vmcnt(0)")
    barrier()
    a(f"ds_read_b32 {vX}, {v(T[33])}")
    tWD.issue(cfg.q7b)
    a("s_waitcnt lgkmcnt(0)")
    gemv_bcast(D0, W1, 8)
    red_write_A(D0, L_RED0)
    barrier()
    sk = a.newlabel("f4")
    a(f"s_cmp_lt_u32 {sW}, 4")
    a(f"s_cbranch_scc0 {sk}")
    finalize(v(T[34]), [0, 2, 4, 6], "s59")
    a.label(sk)
    stamp(13)
    if cfg.q7c > tWD.next:
        a("s_barrier")
        tWD.issue(cfg.q7c)
    a.c("======== Q: x1 slices (waves 0, 1)")
    a(f"s_cmp_lt_u32 {sW}, 4")
    a("s_cbranch_scc0 L_s5_done")
    a(f"s_cmp_lt_u32 {sW}, 2")
    a("s_cbranch_scc1 L_s5_x1")
    a(f"s_lshl_b32 {t5}, {qR}, 7")
    a(f"s_add_u32 s68, {t5}, {MODP + 3072 * 4}")
    a(f"s_add_u32 s69, s68, {4 * 24576}")

    def md_loads():
        a(f"buffer_load_dwordx4 {vr(T[0], 4)}, {vMP}, {WS}, s68 offen sc1")
        a(f"buffer_load_dwordx4 {vr(T[4], 4)}, {vMP}, {WS}, s69 offen sc1")
    poll("md", md_loads, pair_checks, back=cfg.mdb)
    pair_sum()
    mod_prep()
    a(f"v_or_b32 {vSH}, {vTE}, {vSH}")
    a(f"v_or_b32 {vSC}, {vTE}, {vSC}")
    a(f"s_add_u32 {t5}, {qXR}, {MD - XR}")
    md_items = [("buffer_store_dword", vSH, vQE4, t5, 0, M_N8), ("buffer_store_dword", vSC, vQE4, t5, 128, M_N8)]
    store2(md_items)
    stamp(3)

    a("s_branch L_s5_done")
    a.label("L_s5_x1")
    va = v(T[24])
    a(f"v_lshrrev_b32 {v(T[27])}, 3, {vL}")
    a(f"v_and_b32 {v(T[28])}, 7, {vL}")
    a(f"v_lshlrev_b32 {v(T[28])}, 4, {v(T[28])}")
    a(f"v_lshl_add_u32 {va}, {v(T[27])}, 12, {v(T[28])}")
    a(f"s_lshl_b32 {t5}, {qR}, 7")
    a(f"s_add_u32 {t0}, {t5}, {H4}")
    a(f"s_add_u32 {t1}, {t0}, 32768")
    a(f"s_add_u32 {t2}, {t0}, 65536")
    a(f"s_add_u32 {t3}, {t0}, 98304")
    a(f"s_add_u32 {t4}, {t5}, {MODP + 2048 * 4}")
    a(f"v_lshlrev_b32 {vXR}, 16, {vXR}")
    a(f"v_mov_b32 {v(T[21])}, {sT32}")
    a(f"v_mov_b32 {v(T[23])}, {sT32}")
    if cfg.h4w:
        a("s_waitcnt vmcnt(0)")
    stamp(3)

    def h4_loads():
        for i, s_ in enumerate((t0, t1, t2, t3)):
            a(f"buffer_load_dwordx4 {vr(T[4 * i], 4)}, {va}, {WS}, {s_} offen sc1")
        a(f"buffer_load_dwordx4 {vr(T[16], 4)}, {vOB}, {WS}, {t4} offen sc1")

    def h4_checks():
        clean(g4([T[0], T[4], T[8], T[12], T[16]]))
        a(f"v_and_b32 {vBAD}, 0xff, {vBAD}")
    poll("h4", h4_loads, h4_checks)
    stamp(8)
    for d in range(4):
        a(f"v_add_f32 {v(T[d])}, {v(T[d])}, {v(T[4 + d])}")
        a(f"v_add_f32 {v(T[8 + d])}, {v(T[8 + d])}, {v(T[12 + d])}")
    for d in range(4):
        a(f"v_add_f32 {v(T[d])}, {v(T[d])}, {v(T[8 + d])}")
    swapred2(T[0], T[16])
    a(f"v_add_f32_dpp {v(T[0])}, {v(T[0])}, {v(T[0])} row_ror:8{DPP}")
    a(f"v_add_f32_dpp {v(T[16])}, {v(T[16])}, {v(T[16])} row_ror:8{DPP}")
    rnd(v(T[0]), v(T[0]))
    rnd(v(T[16]), v(T[16]))
    a(f"v_mul_f32 {v(T[0])}, {v(T[0])}, {v(T[16])}")
    rnd(v(T[0]), v(T[0]))
    a(f"v_add_f32 {v(T[0])}, {v(T[0])}, {vXR}")
    rnd(v(T[0]), v(T[0]))
    a(f"v_or_b32 {v(T[1])}, {vTE}, {v(T[0])}")
    a(f"v_mov_b32 {v(T[20])}, {v(T[0])}")
    allsum(v(T[20]), v(T[2]))
    a(f"v_mul_f32 {v(T[20])}, 0x3c800000, {v(T[20])}")
    a(f"v_sub_f32 {v(T[22])}, {v(T[0])}, {v(T[20])}")
    a(f"v_mul_f32 {v(T[22])}, {v(T[22])}, {v(T[22])}")
    allsum(v(T[22]), v(T[2]))
    a(f"v_mul_f32 {v(T[22])}, 0.5, {v(T[22])}")
    store2(xr_items)
    stamp(9)
    a.label("L_s5_done")
    a("s_barrier")
    a.c("======== Q: w_down tile")
    VM.q = []
    tWD.issue()
    va = v(T[24])
    a(f"v_mul_u32_u24 {va}, 3584, {vG}")
    a(f"v_bfe_u32 {v(T[25])}, {vL}, 3, 1")
    a(f"v_mul_u32_u24 {v(T[25])}, 1792, {v(T[25])}")
    a(f"v_add_u32 {va}, {va}, {v(T[25])}")
    a(f"v_and_b32 {v(T[25])}, 7, {vL}")
    a(f"v_min_u32 {v(T[25])}, 6, {v(T[25])}")
    a(f"v_lshl_add_u32 {va}, {v(T[25])}, 4, {va}")
    for u in range(1, 4):
        a(f"s_add_u32 {[t0, t1, t2][u - 1]}, {pH5}, {14336 * u}")
    vm_wait()
    stamp(7)

    def h5_loads():
        for u, so in enumerate((pH5, t0, t1, t2)):
            a(f"buffer_load_dwordx4 {vr(T[4 * u], 4)}, {va}, {WS}, {so} offen sc1")
    poll("h5", h5_loads, h2_checks, back=cfg.lback)
    stamp(10)
    for d in range(8):
        a(f"v_add_f32 {v(T[d])}, {v(T[d])}, {v(T[8 + d])}")
    for d in range(4):
        a(f"v_add_f32 {v(T[d])}, {v(T[d])}, {v(T[4 + d])}")
    swapred(T[0])
    rnd(v(T[0]), v(T[0]))
    silu(v(T[2]), v(T[0]), v(T[3]))
    rnd(v(T[2]), v(T[2]))
    a(f"v_mul_f32_dpp {v(T[2])}, {v(T[0])}, {v(T[2])} row_ror:8{DPP}")
    a(f"v_cvt_pk_bf16_f32 {vX}, {v(T[2])}, {v(T[2])}")
    gemv_bcast(D0, W2, 7)
    red_write_A(D0, L_RED1)
    barrier()
    finalize_A(L_RED1, pH6)
    stamp(2)
    a.c("======== Q: final reduction on gi < 32, wave 0")
    a(f"s_cmp_lt_u32 {sGI}, 32")
    a("s_cbranch_scc0 L_fin")
    a(f"s_cmp_eq_u32 {sW}, 0")
    a("s_cbranch_scc0 L_fin")
    va = v(T[24])
    a(f"v_lshrrev_b32 {v(T[27])}, 3, {vL}")
    a(f"v_and_b32 {v(T[28])}, 7, {vL}")
    a(f"v_lshlrev_b32 {v(T[28])}, 4, {v(T[28])}")
    a(f"v_lshl_add_u32 {va}, {v(T[27])}, 12, {v(T[28])}")
    a(f"s_lshl_b32 {t3}, {sGI}, 7")
    a(f"s_add_u32 {t0}, {t3}, {H6}")
    a(f"s_add_u32 {t1}, {t0}, 32768")
    a(f"s_add_u32 {t2}, {t3}, {MODP + 5120 * 4}")
    a(f"s_lshl_b32 {t3}, {sGI}, 8")
    a(f"s_lshl_b32 {t4}, {sKS}, 13")
    a(f"s_add_u32 {t3}, {t3}, {t4}")
    a(f"s_add_u32 {t3}, {t3}, {XR}")
    a(f"s_add_u32 {t3}, {t3}, {sLG}")
    srd(SA, P_OUT, 2048)
    a(f"v_lshrrev_b32 {v(T[26])}, 1, {vQE4}")
    a(f"s_lshl_b32 {t4}, {sGI}, 6")
    if not cfg.early & 64:
        a("s_waitcnt vmcnt(0)")

    def h6_loads():
        a(f"buffer_load_dwordx4 {vr(T[0], 4)}, {va}, {WS}, {t0} offen sc1")
        a(f"buffer_load_dwordx4 {vr(T[4], 4)}, {va}, {WS}, {t1} offen sc1")
        a(f"buffer_load_dwordx4 {vr(T[8], 4)}, {vOB}, {WS}, {t2} offen sc1")
        a(f"buffer_load_dword {v(T[12])}, {vQE4}, {WS}, {t3} offen sc1")

    def h6_checks():
        clean(g4([T[0], T[4], T[8]]) + [(T[12], vTE)])
        a(f"v_and_b32 {vBAD}, 0xff, {vBAD}")
    poll("h6", h6_loads, h6_checks)
    for d in range(4):
        a(f"v_add_f32 {v(T[d])}, {v(T[d])}, {v(T[4 + d])}")
    swapred2(T[0], T[8])
    a(f"v_add_f32_dpp {v(T[0])}, {v(T[0])}, {v(T[0])} row_ror:8{DPP}")
    a(f"v_add_f32_dpp {v(T[8])}, {v(T[8])}, {v(T[8])} row_ror:8{DPP}")
    rnd(v(T[0]), v(T[0]))
    rnd(v(T[8]), v(T[8]))
    a(f"v_mul_f32 {v(T[0])}, {v(T[0])}, {v(T[8])}")
    rnd(v(T[0]), v(T[0]))
    a(f"v_add_f32 {v(T[0])}, {v(T[0])}, {v(T[12])}")
    a(f"v_cvt_pk_bf16_f32 {v(T[0])}, {v(T[0])}, {v(T[0])}")
    mask_n8()
    a(f"buffer_store_short {v(T[0])}, {v(T[26])}, {SA}, {t4} offen")
    a("s_mov_b64 exec, -1")
    stamp(14)
    a(f"s_cmp_eq_u32 {sGI}, 0")
    a("s_cbranch_scc0 L_fin")
    a("s_mov_b64 exec, 1")
    a(f"buffer_store_dword {vT32}, {vL4}, {WS}, 0 offen offset:{EPOCH}")
    a("s_mov_b64 exec, -1")
    if cfg.amp:
        a("s_memrealtime s[60:61]")
        a("s_waitcnt lgkmcnt(0)")
        a("s_sub_u32 s62, s98, s100")
        a(f"s_mul_i32 s62, s62, {cfg.amp}")
        a.label("L_amp")
        a("s_memrealtime s[64:65]")
        a("s_waitcnt lgkmcnt(0)")
        a("s_sub_u32 s63, s64, s60")
        a("s_cmp_lt_u32 s63, s62")
        a("s_cbranch_scc1 L_amp")
    a.label("L_fin")
    write_stamps()
    a.label("L_end")
    a("s_endpgm")

    hdr = open("cdna_kernels/" + NAME + ".s.ref").read().split("; @launch")[0]
    out = hdr
    out += f"; @launch grid=(256,1,1) block=(512,1,1) lds={LDS_BYTES}\n"
    out += '.amdgcn_target "amdgcn-amd-amdhsa--gfx950"\n.text\n'
    out += f".globl {NAME}_kernel\n.p2align 8\n.type {NAME}_kernel,@function\n"
    out += a.text()
    out += f""".section .rodata,"a"
.p2align 6
.amdhsa_kernel {NAME}_kernel
  .amdhsa_next_free_vgpr 256
  .amdhsa_next_free_sgpr 102
  .amdhsa_accum_offset 256
  .amdhsa_group_segment_fixed_size 0
  .amdhsa_kernarg_size 112
  .amdhsa_user_sgpr_count 2
  .amdhsa_user_sgpr_kernarg_segment_ptr 1
  .amdhsa_system_sgpr_workgroup_id_x 1
.end_amdhsa_kernel
"""
    if cfg.nomem:
        for n in (12582912, 8388608, 7340032, 67108864):
            out = out.replace(f", {n}\n", ", 0\n")
    return out, a.ninstr


if __name__ == "__main__":
    cfg = Cfg()
    outp = sys.argv[1]
    for kv in sys.argv[2:]:
        k, val = kv.split("=")
        setattr(cfg, k, type(getattr(cfg, k))(int(val)))
    txt, n = gen(cfg)
    open(outp, "w").write(txt)
    print("wrote", outp, n, "instructions")
```

```python
import sys
from asmlib import Asm

NAME = "adaLN_cond__sliding_block_cached__swiglu_ffn__decode"

EPOCH = 0
MODN = 0x1000
XR = 0x31000
MD = 0x41000
H5 = 0x51000
GOFF = 0xC0000
MODP = MODN + GOFF
H2 = 0x181000
H3O = 0x1A1000
H3ML = H3O
H4 = 0x221000
H6 = 0x241000
FLG = 0x251000
STAMP = 0x279000
WS_USED = 0x280000
F_H2, F_H3 = 0, 1

L_K = 0
L_V = 32768
L_RED0 = 65536
L_RED1 = L_RED0 + 8192
L_QS = L_RED1 + 4096
L_PS = L_QS + 8 * 272
L_WM = L_PS + 8 * 272
L_XL = L_WM + 256
LDS_BYTES = L_XL + 1024

TAGK = 0x9D6B5A37
LOG2E = 0x3FB8AA3B
SCALE = 0x3DB504F3
EPS = 0x3727C5AC


PN = ["", "h1", "h2", "h3", "h4", "h5", "h6", "h5a", "sbcb", "md"]


class Cfg:
    nt = True
    stamps = False
    amp = 0
    ampA = 0
    ampB = 14
    backoff = 0
    mback = 4
    mask = 1
    pre = 0
    scw = 0
    gbq = 0
    fdef = 1
    capQ7 = 0
    dbl = 0
    h4w = 1
    scb = 1
    mdb = 4
    comb = 1
    cpf = 0
    g2 = 1
    g3 = 1
    qbar = 1
    sw = 0
    prep = 0
    cnt = 0
    lback = 2
    far = 0
    predirty = 0
    qA = 8
    capP3 = 0
    capN = 16
    capP4 = 0
    capQ2 = 0
    early = 0
    nomem = 0
    kv0 = 0
    kv1 = 2
    p3a = 4
    p3b = 4
    q2a = 0
    q7a = 0
    q7b = 2
    q7c = 0
    gbe = 0


def gen(cfg):
    a = Asm()
    NT = " nt" if cfg.nt else ""
    PRE = ["", " sc1", " nt"][cfg.prep]
    P_X, P_K, P_V, P_WQ, P_WO, P_BX, P_WG, P_WU = 8, 10, 12, 14, 16, 18, 20, 22
    P_WD, P_C, P_WM, P_OUT, P_DBG, P_WS = 24, 26, 28, 30, 32, 34
    WS = "s[36:39]"
    SA = "s[40:43]"
    SB = "s[44:47]"
    SM = "s[4:7]"
    sLG, tG = "s0", "s1"
    pMC = "s14"
    qXR, qR, pH5, pH6 = "s10", "s11", "s12", "s13"
    sW, sGI, sKS, sCS = "s48", "s49", "s50", "s51"
    sT = ["s52", "s53", "s54", "s55"]
    sT32, sT16 = "s56", "s57"
    sMROW = "s58"
    t0, t1, t2, t3, t4, t5 = "s60", "s61", "s62", "s63", "s64", "s65"
    sSPIN = "s70"
    sO6, sR6 = "s18", "s19"
    sKVL, sKVO = "s59", "s8"
    sFA, sW2, sMODK = "s3", "s32", "s33"
    vL, vN, vG = "v1", "v2", "v3"
    vM = ["v4", "v5", "v6", "v7"]
    vFF, vTL, vTE = "v8", "v9", "v10"
    vOB = "v11"
    vRW = "v12"
    vRB = "v13"
    vL4 = "v14"
    vXB = ["v15", "v16"]
    vXA = ["v17", "v18", "v19", "v20"]
    vBAD = "v21"
    vX = "v22"
    vLN = "v23"
    vT32 = "v0"
    A0, A1 = 24, 28
    D0, D1 = 32, 36
    T = list(range(40, 76))
    vXR, vONE, vFA, vMP = "v76", "v77", "v78", "v79"
    F0 = 80
    vQE4 = "v96"
    vA1, GU, vA4 = "v97", 98, "v100"
    vA2, vA3, vSH, vSC = "v252", "v253", "v254", "v255"
    vKV = [101, 102, 103, 104, 105, 106]
    vSTA = "v107"
    W0, W1, W2, W3 = 108, 140, 172, 204

    def v(i):
        return f"v{i}"

    def vr(i, n):
        return f"v[{i}:{i + n - 1}]"

    def srd(dst, ptr, nbytes):
        b = int(dst[2:dst.index(":")])
        a(f"s_mov_b32 s{b}, s{ptr}")
        a(f"s_mov_b32 s{b + 1}, s{ptr + 1}")
        a(f"s_mov_b32 s{b + 2}, {nbytes}")
        a(f"s_mov_b32 s{b + 3}, 0x00020000")

    def stamp(i):
        if cfg.amp and cfg.ampA == i:
            a("s_memrealtime s[100:101]")
        if cfg.amp and cfg.ampB == i:
            a("s_memrealtime s[98:99]")
        if cfg.stamps:
            a(f"s_memrealtime s[{72 + 2 * i}:{73 + 2 * i}]")

    def rnd(dst, src):
        a(f"v_cvt_pk_bf16_f32 {dst}, {src}, {src}")
        a(f"v_and_b32 {dst}, 0xffff0000, {dst}")

    DPP = " row_mask:0xf bank_mask:0xf"

    def allsum(x, tmp, op="add"):
        o = f"v_{op}_f32"
        a(f"{o}_dpp {x}, {x}, {x} quad_perm:[1,0,3,2]{DPP}")
        a(f"{o}_dpp {x}, {x}, {x} quad_perm:[2,3,0,1]{DPP}")
        a(f"{o}_dpp {x}, {x}, {x} row_half_mirror{DPP}")
        a(f"{o}_dpp {x}, {x}, {x} row_mirror{DPP}")
        rowsum(x, tmp, op)

    def rowsum(x, tmp, op="add"):
        o = f"v_{op}_f32"
        a(f"v_mov_b32 {tmp}, {x}")
        a(f"v_permlane16_swap_b32 {x}, {tmp}")
        a(f"{o} {x}, {x}, {tmp}")
        a(f"v_mov_b32 {tmp}, {x}")
        a(f"v_permlane32_swap_b32 {x}, {tmp}")
        a(f"{o} {x}, {x}, {tmp}")

    def swapred(x):
        a(f"v_permlane32_swap_b32 {v(x)}, {v(x + 2)}")
        a(f"v_permlane32_swap_b32 {v(x + 1)}, {v(x + 3)}")
        a(f"v_add_f32 {v(x)}, {v(x)}, {v(x + 2)}")
        a(f"v_add_f32 {v(x + 1)}, {v(x + 1)}, {v(x + 3)}")
        a(f"v_permlane16_swap_b32 {v(x)}, {v(x + 1)}")
        a(f"v_add_f32 {v(x)}, {v(x)}, {v(x + 1)}")

    def swapred2(x, y):
        for z in (x, y):
            a(f"v_permlane32_swap_b32 {v(z)}, {v(z + 2)}")
            a(f"v_permlane32_swap_b32 {v(z + 1)}, {v(z + 3)}")
        for z in (x, y):
            a(f"v_add_f32 {v(z)}, {v(z)}, {v(z + 2)}")
            a(f"v_add_f32 {v(z + 1)}, {v(z + 1)}, {v(z + 3)}")
        for z in (x, y):
            a(f"v_permlane16_swap_b32 {v(z)}, {v(z + 1)}")
        for z in (x, y):
            a(f"v_add_f32 {v(z)}, {v(z)}, {v(z + 1)}")

    def silu(dst, src, tmp):
        a(f"v_mul_f32 {tmp}, 0xbfb8aa3b, {src}")
        a(f"v_exp_f32 {tmp}, {tmp}")
        a(f"v_add_f32 {tmp}, 1.0, {tmp}")
        a(f"v_rcp_f32 {tmp}, {tmp}")
        a(f"v_mul_f32 {dst}, {src}, {tmp}")

    def clean(pairs):
        for r, t in pairs:
            a(f"v_xor_b32 {v(r)}, {t}, {v(r)}")
        regs = [r for r, _ in pairs]
        if len(regs) == 1:
            a(f"v_mov_b32 {vBAD}, {v(regs[0])}")
            return
        if len(regs) % 2 == 0:
            a(f"v_or_b32 {vBAD}, {v(regs[0])}, {v(regs[1])}")
            regs = regs[2:]
        else:
            a(f"v_or3_b32 {vBAD}, {v(regs[0])}, {v(regs[1])}, {v(regs[2])}")
            regs = regs[3:]
        for i in range(0, len(regs), 2):
            a(f"v_or3_b32 {vBAD}, {vBAD}, {v(regs[i])}, {v(regs[i + 1])}")

    def g4(regs):
        return [(r + d, sT[d]) for r in regs for d in range(4)]

    def poll(name, loads, checks, back=None, after=None, first=True):
        lw = a.newlabel(name + "_w")
        ld = a.newlabel(name + "_d")
        if first:
            loads()
            a("s_waitcnt vmcnt(0)")
        VM.q = []
        if name == PN[cfg.cnt]:
            stamp(1)
        if after:
            after()
        a.label(lw)
        checks()
        a(f"v_cmp_ne_u32 vcc, 0, {vBAD}")
        a(f"s_cbranch_vccz {ld}")
        msk = cfg.mask and name not in ("h5a", "h6", "h3") and not (cfg.comb and name == "sbcb")
        if msk:
            a("s_mov_b64 exec, vcc")
        back = cfg.backoff if back is None else back
        if back:
            a(f"s_sleep {back}")
        loads()
        if cfg.stamps and cfg.cnt in (0, PN.index(name)):
            a("s_add_u32 s71, s71, 1")
        a(f"s_sub_u32 {sSPIN}, {sSPIN}, 1")
        a("s_waitcnt vmcnt(0)")
        a(f"s_cbranch_scc0 {lw}")
        a(f"s_mov_b32 {sSPIN}, 0")
        a.label(ld)
        if msk:
            a("s_mov_b64 exec, -1")

    def gate(h):
        lp = a.newlabel("gate")
        ld = a.newlabel("gated")
        a(f"s_cmp_eq_u32 {sW}, 0")
        a(f"s_cbranch_scc0 {ld}")
        a("s_lshl_b32 s68, s2, 7")
        a(f"s_add_u32 s68, s68, {FLG + h * 32768}")
        if cfg.dbl >> h & 1:
            a(f"s_add_u32 {t0}, s68, 65536")
        a.label(lp)
        a(f"s_buffer_load_dword s69, {WS}, s68 glc")
        if cfg.dbl >> h & 1:
            a(f"s_buffer_load_dword {tG}, {WS}, {t0} glc")
        a("s_waitcnt lgkmcnt(0)")
        if cfg.dbl >> h & 1:
            a(f"s_cmp_eq_u32 {tG}, {sT32}")
            a(f"s_cselect_b32 s69, s69, {tG}")
        a(f"s_cmp_eq_u32 s69, {sT32}")
        a(f"s_cbranch_scc1 {ld}")
        a(f"s_sub_u32 {sSPIN}, {sSPIN}, 1")
        a(f"s_cbranch_scc0 {lp}")
        a(f"s_mov_b32 {sSPIN}, 0")
        a.label(ld)
        barrier()

    def signal_partner(h):
        a("s_xor_b32 s68, s2, 8")
        a("s_lshl_b32 s68, s68, 7")
        a(f"s_add_u32 s68, s68, {FLG + h * 32768}")
        a("s_mov_b64 exec, 1")
        a(f"buffer_store_dword {vT32}, {vL4}, {WS}, s68 offen sc1")
        if cfg.dbl >> h & 1:
            a("s_xor_b32 s68, s2, 12")
            a("s_lshl_b32 s68, s68, 7")
            a(f"s_add_u32 s68, s68, {FLG + (h + 2) * 32768}")
            a(f"buffer_store_dword {vT32}, {vL4}, {WS}, s68 offen sc1")
        a("s_mov_b64 exec, -1")

    def signal_w(h, wave=7):
        sk = a.newlabel("sg")
        a(f"s_cmp_eq_u32 {sW}, {wave}")
        a(f"s_cbranch_scc0 {sk}")
        signal_partner(h)
        a.label(sk)

    def setexec(m):
        if m == -1:
            a("s_mov_b64 exec, -1")
        elif m < 64:
            a(f"s_mov_b64 exec, {m}")
        else:
            a(f"s_mov_b32 exec_lo, {m & 0xffffffff:#x}")
            a(f"s_mov_b32 exec_hi, {m >> 32:#x}")

    def store2(items, defer=False):
        l1 = a.newlabel("sn")
        l2 = a.newlabel("sf")

        def emit(far, sc):
            cur = -1
            for op, data, va, so, imm, m in items:
                if m != cur:
                    setexec(m)
                    cur = m
                if far:
                    a(f"s_add_u32 {tG}, {so}, {GOFF}")
                    so = tG
                a(f"{op} {data}, {va}, {WS}, {so} offen offset:{imm}{sc}")
            if cur != -1:
                setexec(-1)
        a(f"s_cmp_eq_u32 {sLG}, 0")
        a(f"s_cbranch_scc0 {l1}")
        emit(False, "")
        if defer:
            a(f"s_branch {l2}")
        a.label(l1)
        emit(True, " sc1")
        if not defer:
            a(f"s_cmp_eq_u32 {sLG}, 0")
            a(f"s_cbranch_scc1 {l2}")
        emit(False, " sc1")
        a.label(l2)

    def far_A(soff):
        sk = a.newlabel("df")
        a(f"s_add_u32 {tG}, {soff}, {GOFF}")
        a(f"s_cmp_eq_u32 {sW2}, 0")
        a(f"s_cbranch_scc0 {sk}")
        a(f"buffer_store_dword {v(F0)}, {vL4}, {WS}, {tG} offen sc1")
        a.label(sk)

    def predirty(items):
        if not cfg.predirty:
            return
        l1 = a.newlabel("pd")
        a(f"s_cmp_eq_u32 {sLG}, 0")
        a(f"s_cbranch_scc0 {l1}")
        for op, data, va, so, imm, m in items:
            setexec(m)
            a(f"{op} {data}, {va}, {WS}, {so} offen offset:{imm}")
        setexec(-1)
        a.label(l1)

    def gemv_bcast(D, wbase, nt_):
        def prep(t):
            A = A0 if t % 2 == 0 else A1
            for d in range(4):
                a(f"v_and_b32_dpp {v(A + d)}, {vX}, {vM[d]} row_newbcast:{t}{DPP}")
        prep(0)
        for t in range(nt_):
            if t + 1 < nt_:
                prep(t + 1)
            A = A0 if t % 2 == 0 else A1
            c = "0" if t == 0 else vr(D, 4)
            a(f"v_mfma_f32_16x16x32_bf16 {vr(D, 4)}, {vr(A, 4)}, {vr(wbase + 4 * t, 4)}, {c}")

    def gemv_regs(D, wbase, xs):
        def prep(t):
            A = A0 if t % 2 == 0 else A1
            for d in range(4):
                a(f"v_and_b32 {v(A + d)}, {xs[t]}, {vM[d]}")
        prep(0)
        for t in range(len(xs)):
            if t + 1 < len(xs):
                prep(t + 1)
            A = A0 if t % 2 == 0 else A1
            c = "0" if t == 0 else vr(D, 4)
            a(f"v_mfma_f32_16x16x32_bf16 {vr(D, 4)}, {vr(A, 4)}, {vr(wbase + 4 * t, 4)}, {c}")

    def red_write_A(D, red):
        a("s_mov_b32 exec_hi, 0")
        a(f"ds_write_b128 {vRW}, {vr(D, 4)} offset:{red - L_RED0}")
        a("s_mov_b32 exec_hi, -1")

    def red_write_B(D, red):
        a("s_mov_b32 exec_lo, 0x00ff00ff")
        a("s_mov_b32 exec_hi, 0xff00ff00")
        a(f"ds_write_b128 {vRB}, {vr(D, 4)} offset:{red - L_RED0}")
        a("s_mov_b64 exec, -1")

    def finalize(vaddr, offs, soff, near=0):
        n = len(offs)
        for i in range(0, n, 2):
            a(f"ds_read2st64_b32 {vr(F0 + i, 2)}, {vaddr} offset0:{offs[i]} offset1:{offs[i + 1]}")
        a("s_waitcnt lgkmcnt(0)")
        step = 1
        while step < n:
            for i in range(0, n, 2 * step):
                a(f"v_add_f32 {v(F0 + i)}, {v(F0 + i)}, {v(F0 + i + step)}")
            step *= 2
        a(f"v_bfi_b32 {v(F0)}, {vFF}, {vTL}, {v(F0)}")
        if near:
            store2([("buffer_store_dword", v(F0), vL4, soff, 0, -1)], defer=near == 2)
        else:
            a(f"buffer_store_dword {v(F0)}, {vL4}, {WS}, {soff} offen sc1")

    def barrier():
        a("s_waitcnt lgkmcnt(0)")
        a("s_barrier")

    def finalize_A(red, sbase, w0=0, sig=None, near=0):
        sk = a.newlabel("fa")
        if not near:
            a(f"s_add_u32 {t5}, {sFA}, {sbase}")
        a(f"s_cmp_eq_u32 {sW2}, {w0 // 2}")
        a(f"s_cbranch_scc0 {sk}")
        o = (red - L_RED0) // 256
        finalize(vFA, [o + 2 * i for i in range(8)], sbase if near else t5, near)
        if sig is not None:
            a(f"s_cmp_eq_u32 {sW}, {w0}")
            a(f"s_cbranch_scc0 {sk}")
            signal_partner(sig)
        a.label(sk)

    def finalize_B(wave, red, colbytes):
        assert wave % 2 == 0
        sk = a.newlabel("fb")
        a(f"s_add_u32 {t5}, {sMODK}, {colbytes}")
        a(f"s_cmp_eq_u32 {sW}, {wave}")
        a(f"s_cbranch_scc0 {sk}")
        o = (red - L_RED0) // 256
        finalize(vFA, [o + i for i in range(16)], t5)
        a.label(sk)

    def predirty_A(soff):
        sk = a.newlabel("pa")
        a(f"s_cmp_eq_u32 {sW2}, 0")
        a(f"s_cbranch_scc0 {sk}")
        a(f"v_not_b32 {v(F0 + 8)}, {vTL}")
        predirty([("buffer_store_dword", v(F0 + 8), vL4, soff, 0, -1)])
        a.label(sk)

    def mod_prep():
        rnd(vSH, v(T[0]))
        a(f"v_add_f32_dpp {vSC}, {vSH}, {vONE} row_ror:8{DPP}")
        rnd(vSC, vSC)

    def modulate(sc=vSC):
        a(f"v_mul_f32 {v(T[1])}, {vLN}, {sc}")
        rnd(v(T[1]), v(T[1]))
        a(f"v_add_f32 {v(T[1])}, {v(T[1])}, {vSH}")
        a(f"v_cvt_pk_bf16_f32 {vX}, {v(T[1])}, {v(T[1])}")

    def ln_stats(mean, var):
        rnd(var, var)
        rnd(mean, mean)
        a(f"v_add_f32 {var}, {EPS}, {var}")
        rnd(var, var)
        a(f"v_sqrt_f32 {var}, {var}")
        rnd(var, var)
        a(f"v_rcp_f32 {var}, {var}")

    def ln_apply(xval, mean, rstd, tmp):
        a(f"v_sub_f32 {tmp}, {xval}, {mean}")
        rnd(tmp, tmp)
        a(f"v_mul_f32 {tmp}, {tmp}, {rstd}")
        rnd(vLN, tmp)

    def ln_finish(xval, mean, var, tmp):
        ln_stats(mean, var)
        ln_apply(xval, mean, var, tmp)

    class VM:
        q = []

    def vm_add(tag):
        VM.q.append(tag)

    def vm_wait(tag=None):
        if tag is None:
            n = 0
        else:
            if tag not in VM.q:
                return
            idx = max(i for i, t in enumerate(VM.q) if t == tag)
            n = len(VM.q) - 1 - idx
        a(f"s_waitcnt vmcnt({n})")
        VM.q = VM.q[len(VM.q) - n:] if n else []

    class Tile:
        def __init__(self, name, srdname, wreg, n, va, tstep):
            self.name, self.srd, self.wreg, self.n, self.va, self.tstep = name, srdname, wreg, n, va, tstep
            self.next = 0

        def addr(self, sbase, gstep):
            a(f"v_mul_u32_u24 {self.va}, {gstep}, {vG}")
            a(f"v_lshl_add_u32 {self.va}, {vN}, 4, {self.va}")
            a(f"v_add_u32 {self.va}, {sbase}, {self.va}")

        def issue(self, upto=None, cap=0):
            upto = self.n if upto is None else min(upto, self.n)
            while self.next < upto:
                t = self.next
                if cap and len(VM.q) >= cap:
                    a(f"s_waitcnt vmcnt({cap - 1})")
                    VM.q = VM.q[len(VM.q) - (cap - 1):] if cap > 1 else []
                self.load(t)
                vm_add(self.name)
                self.next += 1

        def load(self, t):
            so = "0"
            if t:
                so = "s69" if t % 2 else "s68"
                a(f"s_mov_b32 {so}, {t * self.tstep}")
            a(f"buffer_load_dwordx4 {vr(self.wreg + 4 * t, 4)}, {self.va}, {self.srd}, {so} offen{NT}")

    class TileG(Tile):
        def load(self, t):
            if cfg.nomem:
                a(f"buffer_load_dwordx4 {vr(self.wreg + 4 * t, 4)}, {vL4}, {SM}, 0 offen{NT}")
                return
            if t:
                a(f"v_add_co_u32 {v(GU)}, vcc, {4 * 7168}, {v(GU)}")
                a(f"v_addc_co_u32 {v(GU + 1)}, vcc, 0, {v(GU + 1)}, vcc")
            a(f"global_load_dwordx4 {vr(self.wreg + 4 * t, 4)}, {vr(GU, 2)}, off{NT}")

    def tileB(name, wreg, va, colbase, cs):
        tl = Tile(name, SM, wreg, 2, va, 12288)
        a(f"s_lshl_b32 {t0}, {cs}, 7")
        a(f"s_add_u32 {t0}, {t0}, {sMROW}")
        a(f"s_add_u32 {t0}, {t0}, {colbase}")
        a(f"v_add_u32 {va}, {t0}, {vOB}")
        return tl

    def tile6(wreg):
        a(f"s_max_u32 {t1}, {sW}, 1")
        a(f"s_sub_u32 {t1}, {t1}, 1")
        a(f"s_lshl_b32 {sR6}, {sCS}, 6")
        a(f"s_mul_i32 {sO6}, {sCS}, 3584")
        a(f"s_mul_i32 {t2}, {sKS}, 57344")
        a(f"s_add_u32 {sO6}, {sO6}, {t2}")
        a(f"s_add_u32 {sO6}, {sO6}, {H5}")
        a(f"s_cmp_ge_u32 {t1}, 3")
        a(f"s_cselect_b32 s69, 1, 0")
        a(f"s_cselect_b32 {t2}, 3, 0")
        a(f"s_sub_u32 {t2}, {t1}, {t2}")
        a(f"s_lshl_b32 {t2}, {t2}, 7")
        a(f"s_and_b32 {t0}, {sKS}, 1")
        a(f"s_lshl_b32 {t0}, {t0}, 6")
        a(f"s_add_u32 {t2}, {t2}, {t0}")
        a(f"s_cmp_eq_u32 {t2}, 448")
        a(f"s_cselect_b32 {t2}, 0, {t2}")
        a(f"s_add_u32 {t3}, {t2}, 64")
        a(f"s_cmp_eq_u32 {t1}, 6")
        a(f"s_cselect_b32 {t3}, {t2}, {t3}")
        a(f"s_cselect_b32 s68, 0, s69")
        a(f"s_mul_i32 {t0}, s68, 448")
        a(f"s_add_u32 {t0}, {t0}, {t2}")
        a(f"s_mul_i32 {t1}, s69, 448")
        a(f"s_add_u32 {t1}, {t1}, {t3}")
        a(f"v_mov_b32 {v(T[4])}, {t0}")
        a(f"v_mov_b32 {v(T[5])}, {t1}")
        a(f"s_mul_i32 {t0}, {sR6}, 7168")
        a(f"s_mul_i32 {t1}, {sKS}, 896")
        a(f"s_add_u32 {t0}, {t0}, {t1}")
        a(f"s_lshl_b32 {t2}, {t2}, 1")
        a(f"s_lshl_b32 {t3}, {t3}, 1")
        a(f"s_add_u32 {t2}, {t2}, {t0}")
        a(f"s_add_u32 {t3}, {t3}, {t0}")
        for sel, off, lo, hi in (("s68", t2, T[0], T[1]), ("s69", t3, T[2], T[3])):
            a(f"s_cmp_eq_u32 {sel}, 1")
            a(f"s_cselect_b32 {t0}, s{P_WU}, s{P_WG}")
            a(f"s_cselect_b32 {t1}, s{P_WU + 1}, s{P_WG + 1}")
            a(f"s_add_u32 {t0}, {t0}, {off}")
            a(f"s_addc_u32 {t1}, {t1}, 0")
            a(f"v_mov_b32 {v(lo)}, {t0}")
            a(f"v_mov_b32 {v(hi)}, {t1}")
        a(f"v_cmp_lt_u32 vcc, 7, {vN}")
        a(f"v_cndmask_b32 {v(GU)}, {v(T[0])}, {v(T[2])}, vcc")
        a(f"v_cndmask_b32 {v(GU + 1)}, {v(T[1])}, {v(T[3])}, vcc")
        a(f"v_cndmask_b32 {vA4}, {v(T[4])}, {v(T[5])}, vcc")
        a(f"v_mul_u32_u24 {v(T[0])}, {0 if cfg.nomem else 7168}, {vG}")
        a(f"v_and_b32 {v(T[1])}, 7, {vL}")
        a(f"v_lshl_add_u32 {v(T[0])}, {v(T[1])}, 4, {v(T[0])}")
        a(f"v_lshl_add_u32 {vA4}, {v(T[1])}, 3, {vA4}")
        a(f"v_lshl_add_u32 {vA4}, {vG}, 2, {vA4}")
        a(f"v_lshlrev_b32 {vA4}, 2, {vA4}")
        a(f"v_add_co_u32 {v(GU)}, vcc, {v(GU)}, {v(T[0])}")
        a(f"v_addc_co_u32 {v(GU + 1)}, vcc, 0, {v(GU + 1)}, vcc")

        return TileG("gu", None, wreg, 16, None, 0)

    def pair_sum():
        for d in range(4):
            a(f"v_add_f32 {v(T[d])}, {v(T[d])}, {v(T[4 + d])}")
        swapred(T[0])

    def pair_checks():
        clean(g4([T[0], T[4]]))
        a(f"v_and_b32 {vBAD}, 0xff, {vBAD}")

    def pair_loads():
        a(f"buffer_load_dwordx4 {vr(T[0], 4)}, {vMP}, {WS}, {t0} offen sc1")
        a(f"buffer_load_dwordx4 {vr(T[4], 4)}, {vMP}, {WS}, {t1} offen sc1")

    def not_w0(f, w0=None):
        sk = a.newlabel("nw")
        lj = a.newlabel("nj")
        a(f"s_cmp_eq_u32 {sW}, 0")
        a(f"s_cbranch_scc1 {sk}")
        f()
        if w0:
            a(f"s_branch {lj}")
        a.label(sk)
        if w0:
            w0()
            a.label(lj)

    def stage6_input():
        vs, vx, vm = v(T[27]), v(T[26]), v(T[25])
        a(f"v_and_b32 {vs}, 31, {vL}")
        a(f"v_lshlrev_b32 {vs}, 8, {vs}")
        a(f"v_bfe_u32 {vx}, {vL}, 3, 1")
        a(f"v_lshl_add_u32 {vx}, {vx}, 8, {vQE4}")
        a(f"s_lshl_b32 {t3}, {sKS}, 13")
        a(f"s_add_u32 {t3}, {t3}, {XR}")
        a(f"s_add_u32 {t3}, {t3}, {sLG}")
        a(f"s_lshl_b32 {t2}, {sR6}, 3")
        a(f"s_add_u32 {t2}, {t2}, {t3}")

        def loads0():
            a(f"buffer_load_dwordx4 {vr(T[16], 4)}, {vs}, {WS}, {t3} offen offset:128 sc1")
            a(f"buffer_load_dword {v(T[20])}, {vx}, {WS}, {t2} offen sc1")

        a(f"s_add_u32 {t0}, {t2}, {MD - XR}")

        def mloads():
            a(f"buffer_load_dword {vSH}, {vx}, {WS}, {t0} offen sc1")
            a(f"buffer_load_dword {vSC}, {vx}, {WS}, {t0} offen offset:128 sc1")
            loads0()

        def mchecks():
            a(f"v_xor_b32 {vSH}, {vTE}, {vSH}")
            a(f"v_xor_b32 {vSC}, {vTE}, {vSC}")
            a(f"v_or_b32 {vBAD}, {vSH}, {vSC}")
            a(f"v_and_b32 {vBAD}, 0xff, {vBAD}")
        poll("sbcb", mloads, mchecks, back=cfg.mback)
        stamp(7)

        def checks0():
            a(f"v_xor_b32 {v(T[20])}, {vTE}, {v(T[20])}")
            a(f"v_and_b32 {vBAD}, 0xff, {v(T[20])}")
            a(f"v_bitop3_b32 {vBAD}, {vBAD}, {v(T[17])}, {sT32} bitop3:0xf6")
            a(f"v_bitop3_b32 {vBAD}, {vBAD}, {v(T[19])}, {sT32} bitop3:0xf6")
        poll("h5a", loads0, checks0, back=cfg.lback, first=not cfg.comb)
        stamp(9)
        a(f"v_mov_b32 {v(T[12])}, {v(T[16])}")
        allsum(v(T[12]), v(T[10]))
        a(f"v_mul_f32 {v(T[12])}, 0x3c800000, {v(T[12])}")
        a(f"v_sub_f32 {v(T[10])}, {v(T[16])}, {v(T[12])}")
        a(f"v_mul_f32 {v(T[10])}, {v(T[10])}, {v(T[10])}")
        a(f"v_fmac_f32 {v(T[18])}, 0x42000000, {v(T[10])}")
        allsum(v(T[18]), v(T[10]))
        a(f"v_mul_f32 {v(T[13])}, 0x3a000000, {v(T[18])}")
        ln_stats(v(T[12]), v(T[13]))
        ln_apply(v(T[20]), v(T[12]), v(T[13]), v(T[10]))
        modulate()
        a(f"ds_write_b32 {vSTA}, {vX}")

    def col32_reduce(x):
        swapred(x)
        a(f"v_add_f32_dpp {v(x)}, {v(x)}, {v(x)} row_ror:8{DPP}")

    def write_stamps():
        if not cfg.stamps:
            return
        sk = a.newlabel("st")
        a(f"s_cmp_eq_u32 {sW}, {cfg.sw}")
        a(f"s_cbranch_scc0 {sk}")
        a("s_waitcnt lgkmcnt(0)")
        a("s_mov_b64 exec, 1")
        a(f"s_lshl_b32 {t0}, s2, 6")
        a(f"s_add_u32 {t0}, {t0}, {STAMP}")
        a(f"v_mov_b32 {v(T[1])}, 0")
        for i in range(15):
            a(f"v_mov_b32 {v(T[2 + i])}, s{72 + 2 * i}")
            a(f"buffer_store_dword {v(T[2 + i])}, {v(T[1])}, {WS}, {t0} offen offset:{4 * i}")
        a(f"v_mov_b32 {v(T[20])}, s71")
        a(f"buffer_store_dword {v(T[20])}, {v(T[1])}, {WS}, {t0} offen offset:60")
        a("s_mov_b64 exec, -1")
        a.label(sk)

    M_N8 = 0x00ff00ff00ff00ff

    def mask_n8():
        a("s_mov_b32 exec_lo, 0x00ff00ff")
        a("s_mov_b32 exec_hi, 0x00ff00ff")

    def common():
        a(f"s_load_dword {sT32}, s[{P_WS}:{P_WS + 1}], {EPOCH}")
        srd(WS, P_WS, WS_USED)
        a(f"s_getreg_b32 {t0}, hwreg(HW_REG_XCC_ID, 0, 4)")
        if cfg.far == 1:
            a(f"s_mov_b32 {t0}, 99")
        if cfg.far == 2:
            a(f"s_bitcmp1_b32 s2, 5")
            a(f"s_cselect_b32 {t0}, 99, {t0}")
        a(f"s_cmp_eq_u32 {t0}, {sKS}")
        a(f"s_cselect_b32 {sLG}, 0, {GOFF}")
        a(f"v_and_b32 {v(T[0])}, 1, {vL}")
        a(f"v_mov_b32 {v(T[1])}, 0xffff")
        a(f"v_lshlrev_b32 {v(T[0])}, 4, {v(T[0])}")
        a(f"v_lshlrev_b32 {v(T[1])}, {v(T[0])}, {v(T[1])}")
        a(f"v_bfe_u32 {v(T[0])}, {vL}, 1, 2")
        for d in range(4):
            a(f"v_cmp_eq_u32 vcc, {d}, {v(T[0])}")
            a(f"v_cndmask_b32 {vM[d]}, 0, {v(T[1])}, vcc")
        a(f"v_mov_b32 {vFF}, 0xff")
        a(f"v_mov_b32 {vONE}, 1.0")
        a(f"v_add_u32 {vSTA}, {L_XL}, {vL4}")
        a(f"s_lshl_b32 {t0}, {sW}, 9")
        a(f"s_add_u32 {t0}, {t0}, {L_RED0}")
        a(f"v_lshlrev_b32 {vRW}, 5, {vN}")
        a(f"v_lshl_add_u32 {vRW}, {vG}, 4, {vRW}")
        a(f"v_add_u32 {vRW}, {t0}, {vRW}")
        a(f"v_and_b32 {v(T[0])}, 7, {vL}")
        a(f"v_lshlrev_b32 {vRB}, 5, {v(T[0])}")
        a(f"v_and_b32 {v(T[1])}, 1, {vG}")
        a(f"v_lshl_add_u32 {vRB}, {v(T[1])}, 4, {vRB}")
        a(f"v_lshrrev_b32 {v(T[1])}, 1, {vG}")
        a(f"v_lshl_add_u32 {vRB}, {v(T[1])}, 8, {vRB}")
        a(f"v_add_u32 {vRB}, {t0}, {vRB}")
        a(f"s_and_b32 {sFA}, {sW}, 1")
        a(f"s_lshl_b32 {sFA}, {sFA}, 8")
        a(f"s_lshr_b32 {sW2}, {sW}, 1")
        a(f"s_add_u32 {t0}, {sFA}, {L_RED0}")
        a(f"v_add_u32 {vFA}, {t0}, {vL4}")
        a(f"s_mul_i32 {sMODK}, {t4}, 24576")
        a(f"s_add_u32 {sMODK}, {sMODK}, {MODP}")
        a(f"v_mul_u32_u24 {vMP}, 24576, {vG}")
        a(f"v_bfe_u32 {v(T[1])}, {vL}, 3, 1")
        a(f"v_lshl_add_u32 {vMP}, {v(T[1])}, 12, {vMP}")
        a(f"v_lshl_add_u32 {vMP}, {v(T[0])}, 4, {vMP}")
        a("s_waitcnt lgkmcnt(0)")
        a(f"s_xor_b32 {sT32}, {sT32}, {TAGK}")
        for d in range(4):
            a(f"s_bfe_u32 {sT[d]}, {sT32}, {(8 << 16) | (8 * d)}")
        a(f"s_lshr_b32 {sT16}, {sT32}, 16")
        a(f"v_mov_b32 {vT32}, {sT32}")
        a(f"v_and_b32 {v(T[0])}, 3, {vL}")
        a(f"v_lshlrev_b32 {v(T[0])}, 3, {v(T[0])}")
        a(f"v_bfe_u32 {vTL}, {vT32}, {v(T[0])}, 8")
        a(f"v_lshlrev_b32 {v(T[0])}, 3, {vG}")
        a(f"v_bfe_u32 {vTE}, {vT32}, {v(T[0])}, 8")

    a.raw(f"{NAME}_kernel:")
    a("s_cmp_ge_u32 s2, 256")
    a("s_cbranch_scc1 L_end")
    a("s_load_dwordx8 s[24:31], s[0:1], 64")
    a("s_load_dwordx16 s[8:23], s[0:1], 0")
    a("s_load_dwordx4 s[32:35], s[0:1], 96")
    if cfg.stamps:
        for i in range(15):
            a(f"s_mov_b64 s[{72 + 2 * i}:{73 + 2 * i}], 0")
        a("s_mov_b32 s71, 0")
    stamp(0)
    a(f"v_and_b32 {vL}, 63, v0")
    a(f"v_lshrrev_b32 {v(T[0])}, 6, v0")
    a(f"v_and_b32 {vN}, 15, v0")
    a(f"v_readfirstlane_b32 {sW}, {v(T[0])}")
    a(f"v_lshrrev_b32 {vG}, 4, {vL}")
    a(f"s_and_b32 {sKS}, s2, 7")
    a(f"s_lshr_b32 {sCS}, s2, 4")
    a(f"s_lshl_b32 {sGI}, {sCS}, 3")
    a(f"s_or_b32 {sGI}, {sGI}, {sKS}")
    a(f"s_mov_b32 {sSPIN}, 200000")
    if cfg.cpf:
        a.raw("L_pc:")
        a("s_getpc_b64 s[66:67]")
        a("s_lshr_b32 s68, s2, 3")
        a("s_lshl_b32 s68, s68, 10")
        a(f"v_lshl_add_u32 {v(F0 + 4)}, {vL}, 4, s68")
        a(f"v_min_u32 {v(F0 + 4)}, L_end-L_pc-16, {v(F0 + 4)}")
        a(f"v_and_b32 {v(F0 + 4)}, -4, {v(F0 + 4)}")
        sk = a.newlabel("cpf")
        a(f"s_cmp_eq_u32 {sW}, {cfg.cpf - 1}")
        a(f"s_cbranch_scc0 {sk}")
        a(f"global_load_dwordx4 {vr(F0, 4)}, {v(F0 + 4)}, s[66:67]")
        a.label(sk)
    a(f"v_lshrrev_b32 {v(T[0])}, 3, {vL}")
    a(f"v_mul_u32_u24 {vOB}, 24576, {v(T[0])}")
    a(f"v_and_b32 {v(T[1])}, 7, {vL}")
    a(f"v_lshl_add_u32 {vOB}, {v(T[1])}, 4, {vOB}")
    a(f"v_lshlrev_b32 {v(T[2])}, 2, {v(T[0])}")
    a(f"v_lshlrev_b32 {v(T[3])}, 3, {vG}")
    a(f"v_lshlrev_b32 {vL4}, 2, {vL}")
    a(f"v_lshl_add_u32 {vQE4}, {v(T[1])}, 2, {vG}")
    a(f"v_lshlrev_b32 {v(T[9])}, 1, {vQE4}")
    a(f"v_lshlrev_b32 {vQE4}, 2, {vQE4}")
    a(f"v_lshlrev_b32 {v(T[8])}, 5, {vL}")
    a(f"s_and_b32 {t4}, {sCS}, 7")
    a("s_bitcmp1_b32 s2, 3")
    a(f"s_cselect_b32 {t4}, {sKS}, {t4}")
    a(f"s_lshl_b32 {t2}, {t4}, 7")
    a(f"s_lshl_b32 {t3}, {sW}, 4")
    a(f"s_add_u32 {t2}, {t2}, {t3}")
    a(f"s_mul_i32 {sMROW}, {t2}, 12288")
    a(f"s_lshl_b32 {t2}, {t2}, 1")
    a("s_mov_b32 s6, 12582912")
    a("s_mov_b32 s7, 0x00020000")
    a("s_mov_b32 s46, 2048")
    a("s_mov_b32 s47, 0x00020000")
    a("s_bitcmp1_b32 s2, 3")
    a("s_cbranch_scc1 L_Q_pre")
    a(f"s_and_b32 {t5}, {sCS}, 8")
    a(f"s_or_b32 {t5}, {t5}, {sKS}")
    a(f"s_lshl_b32 {t0}, {t5}, 8")
    a(f"s_add_u32 {t0}, {t0}, {sMROW}")
    tS1 = Tile("s1", SM, W0, 4, vA1, 12288)
    tS1.addr(t0, 4 * 12288)
    a("s_waitcnt lgkmcnt(0)")
    a(f"s_mov_b32 s4, s{P_WM}")
    a(f"s_mov_b32 s5, s{P_WM + 1}")
    a(f"s_mov_b32 s44, s{P_C}")
    a(f"s_mov_b32 s45, s{P_C + 1}")
    VM.q = []
    a(f"buffer_load_dwordx2 {vr(T[6], 2)}, {v(T[3])}, {SB}, {t2} offen")
    a(f"buffer_load_dword {v(T[4])}, {v(T[2])}, {SB}, {t2} offen")
    if cfg.scw:
        a(f"v_lshl_add_u32 {v(T[10])}, {vN}, 2, {vG}")
        a(f"v_lshlrev_b32 {v(T[10])}, 1, {v(T[10])}")
        a(f"s_lshl_b32 {t1}, {t4}, 8")
        a(f"buffer_load_ushort {vSH}, {v(T[10])}, {SB}, {t1} offen")
        a(f"buffer_load_ushort {vSC}, {v(T[10])}, {SB}, {t1} offen offset:128")
    vm_add("c")
    tS1.issue()
    a(f"s_mov_b32 {pMC}, {t5}")
    a(f"s_and_b32 s66, {sGI}, 3")
    a(f"s_lshr_b32 s67, {sGI}, 2")
    a(f"s_lshl_b32 {t2}, s66, 24")
    a(f"s_lshl_b32 {t1}, s67, 15")
    a(f"s_add_u32 {t2}, {t2}, {t1}")
    a(f"s_lshl_b32 {sKVL}, {sW}, 12")
    a(f"s_add_u32 {t2}, {t2}, {sKVL}")
    a(f"s_add_u32 {sKVO}, {t2}, {61440 * 256}")
    srd(SA, P_K, 67108864)
    srd(SB, P_V, 67108864)
    a(f"v_xor_b32 {v(vKV[0])}, {vN}, {vG}")
    a(f"v_lshlrev_b32 {v(vKV[0])}, 4, {v(vKV[0])}")
    a(f"v_lshl_add_u32 {v(vKV[0])}, {vG}, 8, {v(vKV[0])}")
    for u in range(1, 4):
        a(f"v_xor_b32 {v(vKV[u])}, {64 * u}, {v(vKV[0])}")
    a(f"v_lshlrev_b32 {v(vKV[4])}, 1, {vG}")
    a(f"v_xor_b32 {v(vKV[4])}, {vN}, {v(vKV[4])}")
    a(f"v_lshlrev_b32 {v(vKV[4])}, 4, {v(vKV[4])}")
    a(f"v_lshl_add_u32 {v(vKV[4])}, {vG}, 8, {v(vKV[4])}")
    a(f"v_xor_b32 {v(vKV[5])}, 128, {v(vKV[4])}")
    kvn = [0]

    def kv_issue(upto):
        while kvn[0] < upto:
            u = kvn[0]
            if u == 0:
                a(f"s_mov_b32 m0, {sKVL}")
            if u == 4:
                a(f"s_add_u32 m0, {sKVL}, {L_V}")
            if u < 4:
                a(f"buffer_load_dwordx4 {v(vKV[u])}, {SA}, {sKVO} offen offset:{1024 * u}{NT} lds")
            else:
                a(f"buffer_load_dwordx4 {v(vKV[4 + ((u - 4) >> 1)])}, {SB}, {sKVO} offen offset:{1024 * (u - 4)}{NT} lds")
            vm_add("kv")
            kvn[0] += 1
    if cfg.kv0:
        a("s_barrier")
    kv_issue(cfg.kv0)
    VMP = list(VM.q)
    common()

    def silu_c(typeA):
        if typeA:
            srcs = [(T[6], vXA[0], vXA[1]), (T[7], vXA[2], vXA[3])]
        else:
            srcs = [(T[4], vXB[0], vXB[1])]
        for s_, lo, hi in srcs:
            a(f"v_lshlrev_b32 {v(T[0])}, 16, {v(s_)}")
            a(f"v_and_b32 {v(T[1])}, 0xffff0000, {v(s_)}")
            silu(v(T[0]), v(T[0]), v(T[2]))
            silu(v(T[1]), v(T[1]), v(T[3]))
            a(f"v_cvt_pk_bf16_f32 {lo}, {v(T[0])}, {v(T[0])}")
            a(f"v_cvt_pk_bf16_f32 {hi}, {v(T[1])}, {v(T[1])}")

    a.c("======== P: S1")
    VM.q = VMP
    vm_wait("c")
    silu_c(True)
    a(f"s_lshl_b32 {t4}, {t5}, 9")
    a(f"s_add_u32 {sMODK}, {t4}, {sMODK}")
    a(f"s_add_u32 {t4}, {sMODK}, {sFA}")
    a(f"s_sub_u32 {t4}, {t4}, {GOFF}")
    tSC = Tile("sc", SM, W0 + 16, 4, vA2, 12288)
    a(f"v_add_u32 {vA2}, 6144, {vA1}")
    vm_wait("s1")
    stamp(1)
    kv_issue(cfg.kv1)
    gemv_regs(D0, W0, vXA)
    red_write_A(D0, L_RED0)
    barrier()
    finalize_A(L_RED0, t4, near=1)
    a("s_barrier")
    stamp(2)
    kv_issue(8)
    silu_c(False)
    if cfg.scw:
        for r_ in (vSH, vSC):
            a(f"v_lshlrev_b32 {v(T[0])}, 16, {r_}")
            silu(v(T[0]), v(T[0]), v(T[2]))
            a(f"v_cvt_pk_bf16_f32 {r_}, {v(T[0])}, {v(T[0])}")
        a(f"s_lshl_b32 {t0}, {pMC}, 8")
        a(f"s_add_u32 {t0}, {t0}, 6144")
        a(f"s_add_u32 {t0}, {t0}, {sMROW}")
        tSC = Tile("sc", SM, W0, 32, vA2, 4 * 12288)
        tSC.addr(t0, 12288)
    tGU = tile6(W1)
    tGB = tileB("gb", W3, vA3, 10240, pMC)
    KF, VF, QF = W3, W3 + 16, W3 + 32
    vKA, vVA, vQA, vH2, vQW, vPW = v(T[30]), v(T[31]), v(T[32]), v(T[33]), v(T[34]), v(T[35])
    vWMr, vWMw, vOA, vMLA = v(T[26]), v(T[27]), v(T[28]), v(T[29])
    a(f"v_xor_b32 {vKA}, {vN}, {vG}")
    a(f"v_lshlrev_b32 {vKA}, 4, {vKA}")
    a(f"v_lshl_add_u32 {vKA}, {vN}, 8, {vKA}")
    a(f"s_lshl_b32 {t1}, {sW}, 12")
    a(f"v_add_u32 {vKA}, {t1}, {vKA}")
    a(f"v_bfe_u32 {v(T[0])}, {vL}, 2, 2")
    a(f"v_and_b32 {v(T[1])}, 1, {vG}")
    a(f"v_lshl_or_b32 {v(T[1])}, {v(T[1])}, 2, {v(T[0])}")
    a(f"v_lshlrev_b32 {v(T[1])}, 1, {v(T[1])}")
    a(f"v_bfe_u32 {v(T[2])}, {vL}, 1, 1")
    a(f"s_lshl_b32 {t1}, {sW}, 1")
    a(f"v_or_b32 {v(T[2])}, {t1}, {v(T[2])}")
    a(f"v_xor_b32 {v(T[2])}, {v(T[2])}, {v(T[1])}")
    a(f"v_lshl_add_u32 {v(T[0])}, {vG}, 3, {v(T[0])}")
    a(f"v_lshlrev_b32 {vVA}, 8, {v(T[0])}")
    a(f"v_lshl_add_u32 {vVA}, {v(T[2])}, 4, {vVA}")
    a(f"v_and_b32 {v(T[0])}, 1, {vL}")
    a(f"v_lshl_add_u32 {vVA}, {v(T[0])}, 3, {vVA}")
    a(f"v_add_u32 {vVA}, {L_V}, {vVA}")
    a(f"v_and_b32 {v(T[0])}, 7, {vL}")
    a(f"v_mul_u32_u24 {vQA}, 272, {v(T[0])}")
    a(f"v_lshl_add_u32 {vPW}, {vG}, 3, {vQA}")
    a(f"v_lshl_add_u32 {vQA}, {vG}, 4, {vQA}")
    a(f"v_add_u32 {vQA}, {L_QS}, {vQA}")
    a(f"s_lshl_b32 {t1}, {sW}, 5")
    a(f"s_add_u32 {t1}, {t1}, {L_PS}")
    a(f"v_add_u32 {vPW}, {t1}, {vPW}")
    a(f"v_lshlrev_b32 {vWMr}, 5, {v(T[0])}")
    a(f"v_add_u32 {vWMr}, {L_WM}, {vWMr}")
    a(f"s_lshl_b32 {t1}, {sW}, 2")
    a(f"v_add_u32 {vWMw}, {t1}, {vWMr}")
    a(f"v_lshlrev_b32 {vH2}, 14, {vG}")
    a(f"v_lshl_add_u32 {vH2}, {vN}, 4, {vH2}")
    a(f"v_lshl_add_u32 {vQW}, {vN}, 2, {vG}")
    a(f"v_lshlrev_b32 {vQW}, 1, {vQW}")
    a(f"s_mul_i32 {t1}, {sW}, 272")
    a(f"s_add_u32 {t1}, {t1}, {L_QS}")
    a(f"v_add_u32 {vQW}, {t1}, {vQW}")
    a(f"v_lshlrev_b32 {vOA}, 7, {vG}")
    a(f"v_lshl_add_u32 {vOA}, {vN}, 4, {vOA}")
    a(f"v_lshlrev_b32 {vMLA}, 3, {vL}")
    a(f"s_lshl_b32 {t2}, s66, 3")
    a(f"s_add_u32 {t2}, {t2}, {sW}")
    a(f"s_lshl_b32 {t3}, {t2}, 5")
    a(f"s_add_u32 {t3}, {t3}, s67")
    a(f"s_lshl_b32 {t2}, {t2}, 9")
    a(f"s_add_u32 {t2}, {t2}, {H2}")
    a(f"s_lshl_b32 s66, {t3}, 9")
    a(f"s_add_u32 s66, s66, {H3O}")
    a(f"s_lshl_b32 s67, {t3}, 6")
    a(f"s_add_u32 s67, s67, {H3ML}")
    a(f"s_add_u32 {t3}, {t2}, 65536")
    if cfg.pre & 1:
        mask_n8()
        a(f"buffer_load_dwordx4 {vr(F0, 4)}, {vOA}, {WS}, s66 offen{PRE}")
        a("s_mov_b64 exec, 0xff")
        a(f"buffer_load_dwordx2 {vr(F0 + 4, 2)}, {vMLA}, {WS}, s67 offen{PRE}")
        a("s_mov_b64 exec, -1")

    def k_reads():
        for s_ in range(4):
            a(f"ds_read_b128 {vr(KF + 4 * s_, 4)}, {v(T[19 + s_]) if s_ else vKA}")

    def v_reads():
        for s_ in range(4):
            for u in range(2):
                a(f"ds_read_b64_tr_b16 {vr(VF + 4 * s_ + 2 * u, 2)}, {vVA} offset:{8192 * s_ + 1024 * u}")
    for s_ in range(1, 4):
        a(f"v_xor_b32 {v(T[19 + s_])}, {64 * s_}, {vKA}")
    if not cfg.g2:
        vm_wait()
        stamp(3)
        a("s_barrier")
        k_reads()
        v_reads()
    for d in range(4):
        a(f"v_mov_b32 {v(A0 + d)}, 0x3f803f80")
    a(f"s_mov_b32 {t1}, {LOG2E}")
    gate(F_H2)
    stamp(4)

    def h2_loads():
        a(f"buffer_load_dwordx4 {vr(T[0], 4)}, {vH2}, {WS}, {t2} offen sc1")
        a(f"buffer_load_dwordx4 {vr(T[4], 4)}, {vH2}, {WS}, {t2} offen offset:256 sc1")
        a(f"buffer_load_dwordx4 {vr(T[8], 4)}, {vH2}, {WS}, {t3} offen sc1")
        a(f"buffer_load_dwordx4 {vr(T[12], 4)}, {vH2}, {WS}, {t3} offen offset:256 sc1")

    def h2_checks():
        clean(g4([T[0], T[4], T[8], T[12]]))
        a(f"v_and_b32 {vBAD}, 0xff, {vBAD}")
    poll("h2", h2_loads, h2_checks, after=k_reads if cfg.g2 else None)
    stamp(5)
    for d in range(8):
        a(f"v_add_f32 {v(T[d])}, {v(T[d])}, {v(T[8 + d])}")
    swapred2(T[0], T[4])
    a(f"v_cvt_pk_bf16_f32 {v(T[0])}, {v(T[0])}, {v(T[4])}")
    a(f"ds_write_b16 {vQW}, {v(T[0])}")
    a(f"ds_write_b16_d16_hi {vQW}, {v(T[0])} offset:128")
    barrier()
    for s_ in range(4):
        a(f"ds_read_b128 {vr(QF + 4 * s_, 4)}, {vQA} offset:{64 * s_}")
    if cfg.g2:
        v_reads()
    if cfg.scw:
        not_w0(lambda: tGU.issue(cfg.p3a), lambda: tSC.issue(cfg.p3a))
    else:
        tSC.issue(cfg.p3a)
        if cfg.p3a > 4:
            not_w0(lambda: tGU.issue(cfg.p3a - 4))
    for s_ in range(4):
        a(f"s_waitcnt lgkmcnt({(11 if cfg.g2 else 3) - s_})")
        c = "0" if s_ == 0 else vr(D0, 4)
        a(f"v_mfma_f32_16x16x32_bf16 {vr(D0, 4)}, {vr(KF + 4 * s_, 4)}, {vr(QF + 4 * s_, 4)}, {c}")
    a(f"v_cvt_pk_bf16_f32 {v(T[0])}, {v(D0)}, {v(D0 + 1)}")
    a(f"v_cvt_pk_bf16_f32 {v(T[2])}, {v(D0 + 2)}, {v(D0 + 3)}")
    for p in (0, 2):
        a(f"v_and_b32 {v(T[p + 1])}, 0xffff0000, {v(T[p])}")
        a(f"v_lshlrev_b32 {v(T[p])}, 16, {v(T[p])}")
    for r in range(4):
        a(f"v_mul_f32 {v(T[r])}, {SCALE}, {v(T[r])}")
    a(f"v_cvt_pk_bf16_f32 {v(T[0])}, {v(T[0])}, {v(T[1])}")
    a(f"v_cvt_pk_bf16_f32 {v(T[2])}, {v(T[2])}, {v(T[3])}")
    for p in (0, 2):
        a(f"v_and_b32 {v(T[p + 1])}, 0xffff0000, {v(T[p])}")
        a(f"v_lshlrev_b32 {v(T[p])}, 16, {v(T[p])}")
    a(f"v_max3_f32 {v(T[4])}, {v(T[0])}, {v(T[1])}, {v(T[2])}")
    a(f"v_max_f32 {v(T[4])}, {v(T[4])}, {v(T[3])}")
    rowsum(v(T[4]), v(T[5]), "max")
    a("s_mov_b64 exec, 0xff")
    a(f"ds_write_b32 {vWMw}, {v(T[4])}")
    a("s_mov_b64 exec, -1")
    barrier()
    a(f"ds_read_b128 {vr(T[12], 4)}, {vWMr}")
    a(f"ds_read_b128 {vr(T[16], 4)}, {vWMr} offset:16")
    if cfg.early & 4:
        signal_w(F_H3)
    a("s_waitcnt lgkmcnt(0)")
    a(f"v_max3_f32 {v(T[4])}, {v(T[12])}, {v(T[13])}, {v(T[14])}")
    a(f"v_max3_f32 {v(T[5])}, {v(T[15])}, {v(T[16])}, {v(T[17])}")
    a(f"v_max3_f32 {v(T[4])}, {v(T[4])}, {v(T[18])}, {v(T[19])}")
    a(f"v_max_f32 {v(T[4])}, {v(T[4])}, {v(T[5])}")
    for r in range(4):
        a(f"v_sub_f32 {v(T[r])}, {v(T[r])}, {v(T[4])}")
    for r in range(4):
        a(f"v_mul_f32 {v(T[r])}, {t1}, {v(T[r])}")
    for r in range(4):
        a(f"v_exp_f32 {v(T[r])}, {v(T[r])}")
    a(f"v_cvt_pk_bf16_f32 {v(T[6])}, {v(T[0])}, {v(T[1])}")
    a(f"v_cvt_pk_bf16_f32 {v(T[7])}, {v(T[2])}, {v(T[3])}")
    mask_n8()
    a(f"ds_write_b64 {vPW}, {vr(T[6], 2)}")
    a("s_mov_b64 exec, -1")
    a(f"v_mul_f32 {v(T[4])}, {t1}, {v(T[4])}")
    a(f"s_mov_b32 {t2}, 0x07060503")
    a(f"s_mov_b32 {t3}, 0x07060502")
    a(f"s_mov_b32 {t4}, 0x07060501")
    barrier()
    for s_ in range(4):
        a(f"ds_read_b128 {vr(QF + 4 * s_, 4)}, {vQA} offset:{L_PS - L_QS + 64 * s_}")
    if cfg.early & 2:
        signal_w(F_H3)
    for s_ in range(4):
        a(f"s_waitcnt lgkmcnt({3 - s_})")
        c = "0" if s_ == 0 else vr(D1, 4)
        a(f"v_mfma_f32_16x16x32_bf16 {vr(D1, 4)}, {vr(A0, 4)}, {vr(QF + 4 * s_, 4)}, {c}")
        c = "0" if s_ == 0 else vr(D0, 4)
        a(f"v_mfma_f32_16x16x32_bf16 {vr(D0, 4)}, {vr(VF + 4 * s_, 4)}, {vr(QF + 4 * s_, 4)}, {c}")
    a(f"v_log_f32 {v(T[5])}, {v(D1)}")
    a(f"v_rcp_f32 {v(T[6])}, {v(D1)}")
    a(f"v_add_f32 {v(T[4])}, {v(T[4])}, {v(T[5])}")
    for d in range(4):
        a(f"v_mul_f32 {v(D0 + d)}, {v(D0 + d)}, {v(T[6])}")
    a(f"v_bfi_b32 {v(D0)}, {vFF}, {vTL}, {v(D0)}")
    for d, sel in ((1, t2), (2, t3), (3, t4)):
        a(f"v_perm_b32 {v(D0 + d)}, {v(D0 + d)}, {v(T[4])}, {sel}")
    mask_n8()
    a(f"buffer_store_dwordx4 {vr(D0, 4)}, {vOA}, {WS}, s66 offen sc1")
    a("s_mov_b64 exec, -1")
    if not cfg.early & 6:
        signal_w(F_H3, 0)
    a("s_barrier")
    stamp(6)
    a.c("======== P: sb/cb tile, gate/up tile, w_down tile")
    if not cfg.scw:
        tSC.issue(cap=cfg.capP3)

        def gu1():
            tGU.issue(cfg.p3b, cap=cfg.capP3)
            vm_wait("sc")
        not_w0(gu1, lambda: a("s_waitcnt vmcnt(0)"))
        gemv_regs(D0, W0 + 16, vXA)
        red_write_A(D0, L_RED1)
        barrier()
        a(f"s_add_u32 {t4}, {sMODK}, {3072 * 4}")
        finalize_A(L_RED1, t4, w0=2)
        if cfg.scb:
            a("s_barrier")
    stamp(13)

    def gu2():
        tGU.issue(cfg.capN, cap=cfg.capP3)
        tGU.issue(cap=cfg.capP4)
        stamp(12)
        vm_wait()
        stamp(11)

    def sc0():
        if cfg.scw:
            tSC.issue()
            a(f"v_lshlrev_b32 {v(T[0])}, 5, {vN}")
            a(f"v_lshl_add_u32 {v(T[0])}, {vG}, 4, {v(T[0])}")
            a(f"s_add_u32 {t4}, {sMODK}, {3072 * 4}")
            a("s_waitcnt vmcnt(16)")
            a(f"v_mov_b32 {vX}, {vSH}")
            gemv_bcast(D0, W0, 16)
            a("s_waitcnt vmcnt(0)")
            a(f"v_mov_b32 {vX}, {vSC}")
            gemv_bcast(D1, W0 + 64, 16)
            for d in range(4):
                a(f"v_add_f32 {v(D0 + d)}, {v(D0 + d)}, {v(D1 + d)}")
            for d in range(4):
                a(f"v_bfi_b32 {v(D0 + d)}, {vFF}, {sT[d]}, {v(D0 + d)}")
            a("s_mov_b32 exec_hi, 0")
            a(f"buffer_store_dwordx4 {vr(D0, 4)}, {v(T[0])}, {WS}, {t4} offen sc1")
            a("s_mov_b32 exec_hi, -1")
            stamp(13)
        stage6_input()
    not_w0(gu2, sc0)
    barrier()
    stamp(8)
    a(f"ds_read_b32 {vX}, {vSTA}")
    if cfg.gbe:
        tGB.issue()
    a("s_waitcnt lgkmcnt(0)")

    def s6():
        gemv_bcast(D0, W1, 16)
        for d in range(4):
            a(f"v_bfi_b32 {v(D0 + d)}, {vFF}, {sT[d]}, {v(D0 + d)}")
        store2([("buffer_store_dwordx4", vr(D0, 4), vA4, sO6, 0, 0xffffffff)], defer=bool(cfg.fdef and not cfg.gbq))
    not_w0(s6)
    if cfg.stamps:
        a("s_barrier")
    stamp(10)
    if not cfg.gbq:
        tGB.issue()
        a(f"s_lshl_b32 {t4}, {pMC}, 8")
        a(f"s_sub_u32 {t4}, 20480, {t4}")
        vm_wait("gb")
        gemv_regs(D1, W3, vXB)
        red_write_B(D1, L_RED0 + 4096)

        def far6():
            a(f"s_add_u32 {tG}, {sO6}, {GOFF}")
            a("s_mov_b32 exec_hi, 0")
            a(f"buffer_store_dwordx4 {vr(D0, 4)}, {vA4}, {WS}, {tG} offen sc1")
            a("s_mov_b32 exec_hi, -1")
        barrier()
        finalize_B(0, L_RED0 + 4096, t4)
        if cfg.fdef:
            not_w0(far6)
    stamp(14)
    a("s_branch L_fin")

    a.label("L_Q_pre")
    a(f"s_lshl_b32 s66, {sKS}, 7")
    a(f"s_and_b32 {t1}, {sW}, 3")
    a(f"s_lshl_b32 {t1}, {t1}, 5")
    a(f"s_add_u32 s66, s66, {t1}")
    a(f"s_lshl_b32 {t1}, {sCS}, 9")
    a(f"s_lshr_b32 {t0}, {sW}, 2")
    a(f"s_lshl_b32 {t0}, {t0}, 8")
    a(f"s_add_u32 {t1}, {t1}, {t0}")
    a(f"s_lshl_b32 {t0}, s66, 13")
    a(f"s_add_u32 {t0}, {t0}, {t1}")
    tWQ = Tile("wq", SA, W0, 8, vA1, 4 * 8192)
    tWQ.addr(t0, 8192)
    a("s_mov_b32 s42, 8388608")
    a("s_mov_b32 s43, 0x00020000")
    a("s_waitcnt lgkmcnt(0)")
    a(f"s_mov_b32 s40, s{P_WQ}")
    a(f"s_mov_b32 s41, s{P_WQ + 1}")
    a(f"s_mov_b32 s44, s{P_X}")
    a(f"s_mov_b32 s45, s{P_X + 1}")
    VM.q = []
    a(f"buffer_load_dwordx4 {vr(T[12], 4)}, {v(T[8])}, {SB}, 0 offen")
    a(f"buffer_load_dwordx4 {vr(T[16], 4)}, {v(T[8])}, {SB}, 0 offen offset:16")
    a(f"s_lshl_b32 {t1}, s66, 1")
    a(f"buffer_load_ushort {v(T[20])}, {v(T[9])}, {SB}, {t1} offen")
    a(f"s_and_b32 {t1}, {sW}, 1")
    a(f"s_lshl_b32 {qR}, {sCS}, 1")
    a(f"s_add_u32 {qR}, {qR}, {t1}")
    a(f"s_lshl_b32 {t1}, {qR}, 6")
    a(f"buffer_load_ushort {vXR}, {v(T[9])}, {SB}, {t1} offen")
    a(f"s_mov_b32 s44, s{P_C}")
    a(f"s_mov_b32 s45, s{P_C + 1}")
    a(f"buffer_load_dword {v(T[4])}, {v(T[2])}, {SB}, {t2} offen")
    vm_add("c")
    if cfg.qbar:
        a("s_barrier")
    tWQ.issue(cfg.qA)
    a(f"s_mov_b32 s4, s{P_WM}")
    a(f"s_mov_b32 s5, s{P_WM + 1}")
    VMQ = list(VM.q)
    common()
    a.c("======== Q: layernorm of x, silu(c)")
    VM.q = VMQ
    vm_wait("c")
    stamp(1)
    tWQ.issue()
    silu_c(False)
    XU = W3
    for i in range(8):
        a(f"v_lshlrev_b32 {v(XU + 2 * i)}, 16, {v(T[12 + i])}")
        a(f"v_and_b32 {v(XU + 2 * i + 1)}, 0xffff0000, {v(T[12 + i])}")
    a(f"v_lshlrev_b32 {v(T[20])}, 16, {v(T[20])}")
    a(f"v_add_f32 {v(T[0])}, {v(XU)}, {v(XU + 1)}")
    for i in range(2, 16):
        a(f"v_add_f32 {v(T[0])}, {v(T[0])}, {v(XU + i)}")
    allsum(v(T[0]), v(T[1]))
    a(f"v_mul_f32 {v(T[0])}, 0x3a800000, {v(T[0])}")
    a(f"v_mov_b32 {v(T[2])}, 0")
    for i in range(16):
        a(f"v_sub_f32 {v(XU + i)}, {v(XU + i)}, {v(T[0])}")
        a(f"v_fmac_f32 {v(T[2])}, {v(XU + i)}, {v(XU + i)}")
    allsum(v(T[2]), v(T[1]))
    a(f"v_mul_f32 {v(T[2])}, 0x3a800000, {v(T[2])}")
    ln_finish(v(T[20]), v(T[0]), v(T[2]), v(T[1]))
    a.c("======== Q: S2")
    tGA = tileB("ga", W3, vA3, 4096, sCS)
    tGQ = tileB("gb", W3 + 8, v(vKV[0]), 10240, sCS)
    srd(SB, P_WD, 7340032)
    a(f"s_and_b32 {t0}, {sCS}, 1")
    a(f"s_mul_i32 {t2}, {t0}, 224")
    a(f"s_mul_i32 {t1}, {sW}, 28")
    a(f"s_add_u32 {t2}, {t2}, {t1}")
    a(f"s_mul_i32 {t1}, {sKS}, 448")
    a(f"s_add_u32 {t4}, {t2}, {t1}")
    a(f"s_lshl_b32 {t4}, {t4}, 11")
    a(f"s_lshr_b32 {t3}, {sCS}, 1")
    a(f"s_lshl_b32 {t1}, {t3}, 8")
    a(f"s_add_u32 {t4}, {t4}, {t1}")
    tWD = Tile("wd", SB, W2, 7, vA4, 4 * 2048)
    tWD.addr(t4, 2048)
    a(f"s_lshl_b32 {pH5}, {t2}, 2")
    a(f"s_mul_i32 {t1}, {sKS}, 57344")
    a(f"s_add_u32 {pH5}, {pH5}, {t1}")
    a(f"s_add_u32 {pH5}, {pH5}, {H5}")
    a(f"s_add_u32 {pH5}, {pH5}, {sLG}")
    a(f"s_lshl_b32 {pH6}, {sKS}, 1")
    a(f"s_add_u32 {pH6}, {pH6}, {t0}")
    a(f"s_lshl_b32 {pH6}, {pH6}, 12")
    a(f"s_lshl_b32 {t1}, {t3}, 9")
    a(f"s_add_u32 {pH6}, {pH6}, {t1}")
    a(f"s_add_u32 {pH6}, {pH6}, {H6}")
    a(f"s_lshl_b32 {qXR}, {sKS}, 13")
    a(f"s_lshl_b32 {t3}, {qR}, 8")
    a(f"s_add_u32 {qXR}, {qXR}, {t3}")
    a(f"s_add_u32 {qXR}, {qXR}, {XR}")
    xr_items = [("buffer_store_dword", v(T[1]), vQE4, qXR, 0, M_N8),
                ("buffer_store_dwordx4", vr(T[20], 4), vL4, qXR, 128, 1)]
    a(f"s_lshl_b32 {t0}, s66, 2")
    a(f"s_add_u32 {t0}, {t0}, {MODN}")
    a(f"s_add_u32 {t0}, {t0}, {sLG}")
    a(f"s_add_u32 {t1}, {t0}, {4 * 24576}")
    a(f"s_lshl_b32 {t4}, {sKS}, 14")
    a(f"s_lshl_b32 {t3}, {sCS}, 10")
    a(f"s_add_u32 {t4}, {t4}, {t3}")
    a(f"s_lshl_b32 {t3}, {sW}, 8")
    a(f"s_add_u32 {t4}, {t4}, {t3}")
    a(f"s_add_u32 {t4}, {t4}, {H2}")
    a(f"s_lshl_b32 {t3}, {sW2}, 11")
    a(f"v_add_u32 {v(T[34])}, {t3}, {vFA}")
    if cfg.pre & 2:
        a(f"buffer_load_dword {v(F0)}, {vL4}, {WS}, {t4} offen{PRE}")
    if cfg.pre & 8:
        a(f"s_add_u32 {t3}, {pH6}, {sFA}")
        a(f"buffer_load_dword {v(F0 + 1)}, {vL4}, {WS}, {t3} offen{PRE}")
    srd(SA, P_WO, 8388608)
    a(f"s_and_b32 s66, {sGI}, 31")
    a(f"s_lshr_b32 s67, {sGI}, 5")
    a(f"s_lshr_b32 {t3}, s66, 3")
    a(f"s_lshl_b32 {t2}, {t3}, 10")
    a(f"s_and_b32 {t3}, s66, 7")
    a(f"s_lshl_b32 {t3}, {t3}, 4")
    a(f"s_add_u32 {t2}, {t2}, {t3}")
    a(f"s_and_b32 {t3}, {sW}, 3")
    a(f"s_lshl_b32 {t3}, {t3}, 2")
    a(f"s_add_u32 {t2}, {t2}, {t3}")
    a(f"s_lshl_b32 {t2}, {t2}, 11")
    a(f"s_lshl_b32 {t3}, s67, 9")
    a(f"s_add_u32 {t2}, {t2}, {t3}")
    a(f"s_lshr_b32 {t3}, {sW}, 2")
    a(f"s_lshl_b32 {t3}, {t3}, 8")
    a(f"s_add_u32 {t2}, {t2}, {t3}")
    tWO = Tile("wo", SA, W1, 8, vA2, 128 * 2048)
    tWO.addr(t2, 2048)
    vm_wait()
    stamp(3)
    poll("h1", pair_loads, pair_checks, back=cfg.lback)
    stamp(4)
    tWO.issue(cfg.q2a)
    pair_sum()
    mod_prep()
    modulate()
    if cfg.early & 1:
        signal_w(F_H2)
    gemv_bcast(D0, W0, 8)
    red_write_A(D0, L_RED1)
    barrier()
    sk = a.newlabel("f2")
    a(f"s_cmp_lt_u32 {sW}, 4")
    a(f"s_cbranch_scc0 {sk}")
    finalize(v(T[34]), [32, 34, 36, 38], t4)
    if not cfg.early & 1:
        a(f"s_cmp_eq_u32 {sW}, 0")
        a(f"s_cbranch_scc0 {sk}")
        signal_partner(F_H2)
    a.label(sk)
    a("s_barrier")
    stamp(5)
    a.c("======== Q: wo tile + gb tile")
    tGA.issue(cap=cfg.capQ2)
    tWO.issue(cap=cfg.capQ2)
    tWD.issue(cfg.q7a, cap=cfg.capQ2)
    a(f"s_and_b32 {t1}, {sW}, 3")
    a(f"s_lshl_b32 {t1}, {t1}, 8")
    a(f"s_add_u32 {t1}, {t1}, {L_XL}")
    a(f"v_add_u32 {v(T[33])}, {t1}, {vL4}")
    va, vb = v(T[31]), v(T[32])
    a(f"v_lshrrev_b32 {v(T[28])}, 3, {vL}")
    a(f"v_and_b32 {v(T[29])}, 7, {vL}")
    a(f"v_lshlrev_b32 {va}, 11, {v(T[28])}")
    a(f"v_lshl_add_u32 {va}, {v(T[29])}, 4, {va}")
    a(f"s_lshl_b32 {t2}, s66, 14")
    a(f"s_lshl_b32 {t1}, {sW}, 7")
    a(f"s_add_u32 {t2}, {t2}, {t1}")
    a(f"s_add_u32 {t2}, {t2}, {H3O}")
    a(f"s_lshl_b32 s59, s66, 12")
    a(f"s_lshl_b32 {t1}, s67, 10")
    a(f"s_add_u32 s59, s59, {t1}")
    a(f"s_lshl_b32 {t1}, {sW}, 8")
    a(f"s_add_u32 s59, s59, {t1}")
    a(f"s_add_u32 s59, s59, {H4}")
    if cfg.pre & 4:
        a(f"buffer_load_dword {v(T[35])}, {vL4}, {WS}, s59 offen{PRE}")
    vm_wait("ga")
    gemv_regs(D0, W3, vXB)
    red_write_B(D0, L_RED0 + 4096)
    barrier()
    a(f"s_lshl_b32 {t4}, {sCS}, 8")
    a(f"s_add_u32 {t4}, {t4}, 8192")
    finalize_B(4, L_RED0 + 4096, t4)
    a(f"s_mov_b32 {t1}, 0x04000c0c")
    a(f"s_mov_b32 {t3}, 0x0706000c")
    if not cfg.g3:
        vm_wait()
    stamp(6)
    gate(F_H3)
    stamp(11)
    a(f"s_cmp_lt_u32 {sW}, 4")
    a("s_cbranch_scc0 L_s4_wait")

    def h3_loads():
        for i in range(4):
            a(f"buffer_load_dwordx4 {vr(T[4 * i], 4)}, {va}, {WS}, {t2} offen offset:{512 * i} sc1")

    def h3_checks():
        clean([(T[4 * i], vTL) for i in range(4)])
        a(f"v_and_b32 {vBAD}, 0xff, {vBAD}")
    poll("h3", h3_loads, h3_checks)
    stamp(12)
    for i in range(4):
        a(f"v_perm_b32 {v(T[16 + i])}, {v(T[4 * i + 1])}, {v(T[4 * i + 2])}, {t1}")
    for i in range(4):
        a(f"v_perm_b32 {v(T[16 + i])}, {v(T[16 + i])}, {v(T[4 * i + 3])}, {t3}")
    a(f"v_max3_f32 {v(T[24])}, {v(T[16])}, {v(T[17])}, {v(T[18])}")
    a(f"v_max_f32 {v(T[24])}, {v(T[24])}, {v(T[19])}")
    a(f"v_max_f32_dpp {v(T[24])}, {v(T[24])}, {v(T[24])} row_ror:8{DPP}")
    rowsum(v(T[24]), v(T[25]), "max")
    for i in range(4):
        a(f"v_sub_f32 {v(T[16 + i])}, {v(T[16 + i])}, {v(T[24])}")
    for i in range(4):
        a(f"v_exp_f32 {v(T[16 + i])}, {v(T[16 + i])}")
    a(f"v_add_f32 {v(T[24])}, {v(T[16])}, {v(T[17])}")
    a(f"v_add_f32 {v(T[25])}, {v(T[18])}, {v(T[19])}")
    for d in range(4):
        a(f"v_mul_f32 {v(T[d])}, {v(T[16])}, {v(T[d])}")
    a(f"v_add_f32 {v(T[24])}, {v(T[24])}, {v(T[25])}")
    for d in range(4):
        a(f"v_fmac_f32 {v(T[d])}, {v(T[17])}, {v(T[4 + d])}")
    a(f"v_add_f32_dpp {v(T[24])}, {v(T[24])}, {v(T[24])} row_ror:8{DPP}")
    for i in range(2, 4):
        for d in range(4):
            a(f"v_fmac_f32 {v(T[d])}, {v(T[16 + i])}, {v(T[4 * i + d])}")
    rowsum(v(T[24]), v(T[25]), "add")
    a(f"v_rcp_f32 {v(T[24])}, {v(T[24])}")
    col32_reduce(T[0])
    a(f"v_mul_f32 {v(T[0])}, {v(T[0])}, {v(T[24])}")
    a(f"v_cvt_pk_bf16_f32 {vX}, {v(T[0])}, {v(T[0])}")
    a(f"ds_write_b32 {v(T[33])}, {vX}")
    a.label("L_s4_wait")
    a("s_waitcnt vmcnt(0)")
    barrier()
    a(f"ds_read_b32 {vX}, {v(T[33])}")
    if cfg.gbq == 2:
        tGQ.issue()
    tWD.issue(cfg.q7b)
    a("s_waitcnt lgkmcnt(0)")
    gemv_bcast(D0, W1, 8)
    red_write_A(D0, L_RED0)
    barrier()
    sk = a.newlabel("f4")
    a(f"s_cmp_lt_u32 {sW}, 4")
    a(f"s_cbranch_scc0 {sk}")
    finalize(v(T[34]), [0, 2, 4, 6], "s59")
    a.label(sk)
    stamp(13)
    if cfg.q7c > tWD.next:
        a("s_barrier")
        tWD.issue(cfg.q7c)
    a.c("======== Q: x1 slices (waves 0, 1)")
    a(f"s_cmp_lt_u32 {sW}, 4")
    a("s_cbranch_scc0 L_s5_done")
    a(f"s_cmp_lt_u32 {sW}, 2")
    a("s_cbranch_scc1 L_s5_x1")
    a(f"s_lshl_b32 {t5}, {qR}, 7")
    a(f"s_add_u32 s68, {t5}, {MODP + 3072 * 4}")
    a(f"s_add_u32 s69, s68, {4 * 24576}")

    def md_loads():
        a(f"buffer_load_dwordx4 {vr(T[0], 4)}, {vMP}, {WS}, s68 offen sc1")
        a(f"buffer_load_dwordx4 {vr(T[4], 4)}, {vMP}, {WS}, s69 offen sc1")
    poll("md", md_loads, pair_checks, back=cfg.mdb)
    pair_sum()
    mod_prep()
    a(f"v_or_b32 {vSH}, {vTE}, {vSH}")
    a(f"v_or_b32 {vSC}, {vTE}, {vSC}")
    a(f"s_add_u32 {t5}, {qXR}, {MD - XR}")
    md_items = [("buffer_store_dword", vSH, vQE4, t5, 0, M_N8), ("buffer_store_dword", vSC, vQE4, t5, 128, M_N8)]
    store2(md_items)
    stamp(3)

    a("s_branch L_s5_done")
    a.label("L_s5_x1")
    va = v(T[24])
    a(f"v_lshrrev_b32 {v(T[27])}, 3, {vL}")
    a(f"v_and_b32 {v(T[28])}, 7, {vL}")
    a(f"v_lshlrev_b32 {v(T[28])}, 4, {v(T[28])}")
    a(f"v_lshl_add_u32 {va}, {v(T[27])}, 12, {v(T[28])}")
    a(f"s_lshl_b32 {t5}, {qR}, 7")
    a(f"s_add_u32 {t0}, {t5}, {H4}")
    a(f"s_add_u32 {t1}, {t0}, 32768")
    a(f"s_add_u32 {t2}, {t0}, 65536")
    a(f"s_add_u32 {t3}, {t0}, 98304")
    a(f"s_add_u32 {t4}, {t5}, {MODP + 2048 * 4}")
    a(f"v_lshlrev_b32 {vXR}, 16, {vXR}")
    a(f"v_mov_b32 {v(T[21])}, {sT32}")
    a(f"v_mov_b32 {v(T[23])}, {sT32}")
    if cfg.h4w:
        a("s_waitcnt vmcnt(0)")
    stamp(3)

    def h4_loads():
        for i, s_ in enumerate((t0, t1, t2, t3)):
            a(f"buffer_load_dwordx4 {vr(T[4 * i], 4)}, {va}, {WS}, {s_} offen sc1")
        a(f"buffer_load_dwordx4 {vr(T[16], 4)}, {vOB}, {WS}, {t4} offen sc1")

    def h4_checks():
        clean(g4([T[0], T[4], T[8], T[12], T[16]]))
        a(f"v_and_b32 {vBAD}, 0xff, {vBAD}")
    poll("h4", h4_loads, h4_checks)
    stamp(8)
    for d in range(4):
        a(f"v_add_f32 {v(T[d])}, {v(T[d])}, {v(T[4 + d])}")
        a(f"v_add_f32 {v(T[8 + d])}, {v(T[8 + d])}, {v(T[12 + d])}")
    for d in range(4):
        a(f"v_add_f32 {v(T[d])}, {v(T[d])}, {v(T[8 + d])}")
    swapred2(T[0], T[16])
    a(f"v_add_f32_dpp {v(T[0])}, {v(T[0])}, {v(T[0])} row_ror:8{DPP}")
    a(f"v_add_f32_dpp {v(T[16])}, {v(T[16])}, {v(T[16])} row_ror:8{DPP}")
    rnd(v(T[0]), v(T[0]))
    rnd(v(T[16]), v(T[16]))
    a(f"v_mul_f32 {v(T[0])}, {v(T[0])}, {v(T[16])}")
    rnd(v(T[0]), v(T[0]))
    a(f"v_add_f32 {v(T[0])}, {v(T[0])}, {vXR}")
    rnd(v(T[0]), v(T[0]))
    a(f"v_or_b32 {v(T[1])}, {vTE}, {v(T[0])}")
    a(f"v_mov_b32 {v(T[20])}, {v(T[0])}")
    allsum(v(T[20]), v(T[2]))
    a(f"v_mul_f32 {v(T[20])}, 0x3c800000, {v(T[20])}")
    a(f"v_sub_f32 {v(T[22])}, {v(T[0])}, {v(T[20])}")
    a(f"v_mul_f32 {v(T[22])}, {v(T[22])}, {v(T[22])}")
    allsum(v(T[22]), v(T[2]))
    a(f"v_mul_f32 {v(T[22])}, 0.5, {v(T[22])}")
    store2(xr_items)
    stamp(9)
    a.label("L_s5_done")
    a("s_barrier")
    a.c("======== Q: w_down tile")
    VM.q = ["gb"]
    if cfg.gbq:
        tGQ.issue()
    tWD.issue(cap=cfg.capQ7)
    if cfg.gbq:
        a(f"s_lshl_b32 {t4}, {sCS}, 8")
        a(f"s_add_u32 {t4}, {t4}, 20480")
        vm_wait("gb")
        gemv_regs(D0, W3 + 8, vXB)
        red_write_B(D0, L_RED0 + 4096)
        barrier()
        finalize_B(4, L_RED0 + 4096, t4)
    va = v(T[24])
    a(f"v_mul_u32_u24 {va}, 3584, {vG}")
    a(f"v_bfe_u32 {v(T[25])}, {vL}, 3, 1")
    a(f"v_mul_u32_u24 {v(T[25])}, 1792, {v(T[25])}")
    a(f"v_add_u32 {va}, {va}, {v(T[25])}")
    a(f"v_and_b32 {v(T[25])}, 7, {vL}")
    a(f"v_min_u32 {v(T[25])}, 6, {v(T[25])}")
    a(f"v_lshl_add_u32 {va}, {v(T[25])}, 4, {va}")
    for u in range(1, 4):
        a(f"s_add_u32 {[t0, t1, t2][u - 1]}, {pH5}, {14336 * u}")
    vm_wait()
    stamp(7)

    def h5_loads():
        for u, so in enumerate((pH5, t0, t1, t2)):
            a(f"buffer_load_dwordx4 {vr(T[4 * u], 4)}, {va}, {WS}, {so} offen sc1")
    poll("h5", h5_loads, h2_checks, back=cfg.lback)
    stamp(10)
    for d in range(8):
        a(f"v_add_f32 {v(T[d])}, {v(T[d])}, {v(T[8 + d])}")
    for d in range(4):
        a(f"v_add_f32 {v(T[d])}, {v(T[d])}, {v(T[4 + d])}")
    swapred(T[0])
    rnd(v(T[0]), v(T[0]))
    silu(v(T[2]), v(T[0]), v(T[3]))
    rnd(v(T[2]), v(T[2]))
    a(f"v_mul_f32_dpp {v(T[2])}, {v(T[0])}, {v(T[2])} row_ror:8{DPP}")
    a(f"v_cvt_pk_bf16_f32 {vX}, {v(T[2])}, {v(T[2])}")
    gemv_bcast(D0, W2, 7)
    red_write_A(D0, L_RED1)
    barrier()
    finalize_A(L_RED1, pH6)
    stamp(2)
    a.c("======== Q: final reduction on gi < 32, wave 0")
    a(f"s_cmp_lt_u32 {sGI}, 32")
    a("s_cbranch_scc0 L_fin")
    a(f"s_cmp_eq_u32 {sW}, 0")
    a("s_cbranch_scc0 L_fin")
    va = v(T[24])
    a(f"v_lshrrev_b32 {v(T[27])}, 3, {vL}")
    a(f"v_and_b32 {v(T[28])}, 7, {vL}")
    a(f"v_lshlrev_b32 {v(T[28])}, 4, {v(T[28])}")
    a(f"v_lshl_add_u32 {va}, {v(T[27])}, 12, {v(T[28])}")
    a(f"s_lshl_b32 {t3}, {sGI}, 7")
    a(f"s_add_u32 {t0}, {t3}, {H6}")
    a(f"s_add_u32 {t1}, {t0}, 32768")
    a(f"s_add_u32 {t2}, {t3}, {MODP + 5120 * 4}")
    a(f"s_lshl_b32 {t3}, {sGI}, 8")
    a(f"s_lshl_b32 {t4}, {sKS}, 13")
    a(f"s_add_u32 {t3}, {t3}, {t4}")
    a(f"s_add_u32 {t3}, {t3}, {XR}")
    a(f"s_add_u32 {t3}, {t3}, {sLG}")
    srd(SA, P_OUT, 2048)
    a(f"v_lshrrev_b32 {v(T[26])}, 1, {vQE4}")
    a(f"s_lshl_b32 {t4}, {sGI}, 6")
    if not cfg.early & 64:
        a("s_waitcnt vmcnt(0)")

    def h6_loads():
        a(f"buffer_load_dwordx4 {vr(T[0], 4)}, {va}, {WS}, {t0} offen sc1")
        a(f"buffer_load_dwordx4 {vr(T[4], 4)}, {va}, {WS}, {t1} offen sc1")
        a(f"buffer_load_dwordx4 {vr(T[8], 4)}, {vOB}, {WS}, {t2} offen sc1")
        a(f"buffer_load_dword {v(T[12])}, {vQE4}, {WS}, {t3} offen sc1")

    def h6_checks():
        clean(g4([T[0], T[4], T[8]]) + [(T[12], vTE)])
        a(f"v_and_b32 {vBAD}, 0xff, {vBAD}")
    poll("h6", h6_loads, h6_checks)
    for d in range(4):
        a(f"v_add_f32 {v(T[d])}, {v(T[d])}, {v(T[4 + d])}")
    swapred2(T[0], T[8])
    a(f"v_add_f32_dpp {v(T[0])}, {v(T[0])}, {v(T[0])} row_ror:8{DPP}")
    a(f"v_add_f32_dpp {v(T[8])}, {v(T[8])}, {v(T[8])} row_ror:8{DPP}")
    rnd(v(T[0]), v(T[0]))
    rnd(v(T[8]), v(T[8]))
    a(f"v_mul_f32 {v(T[0])}, {v(T[0])}, {v(T[8])}")
    rnd(v(T[0]), v(T[0]))
    a(f"v_add_f32 {v(T[0])}, {v(T[0])}, {v(T[12])}")
    a(f"v_cvt_pk_bf16_f32 {v(T[0])}, {v(T[0])}, {v(T[0])}")
    mask_n8()
    a(f"buffer_store_short {v(T[0])}, {v(T[26])}, {SA}, {t4} offen")
    a("s_mov_b64 exec, -1")
    stamp(14)
    a(f"s_cmp_eq_u32 {sGI}, 0")
    a("s_cbranch_scc0 L_fin")
    a("s_mov_b64 exec, 1")
    a(f"buffer_store_dword {vT32}, {vL4}, {WS}, 0 offen offset:{EPOCH}")
    a("s_mov_b64 exec, -1")
    if cfg.amp:
        a("s_memrealtime s[60:61]")
        a("s_waitcnt lgkmcnt(0)")
        a("s_sub_u32 s62, s98, s100")
        a(f"s_mul_i32 s62, s62, {cfg.amp}")
        a.label("L_amp")
        a("s_memrealtime s[64:65]")
        a("s_waitcnt lgkmcnt(0)")
        a("s_sub_u32 s63, s64, s60")
        a("s_cmp_lt_u32 s63, s62")
        a("s_cbranch_scc1 L_amp")
    a.label("L_fin")
    write_stamps()
    a.label("L_end")
    a("s_endpgm")

    hdr = open("cdna_kernels/" + NAME + ".s.ref").read().split("; @launch")[0]
    out = hdr
    out += f"; @launch grid=(256,1,1) block=(512,1,1) lds={LDS_BYTES}\n"
    out += '.amdgcn_target "amdgcn-amd-amdhsa--gfx950"\n.text\n'
    out += f".globl {NAME}_kernel\n.p2align 8\n.type {NAME}_kernel,@function\n"
    out += a.text()
    out += f""".section .rodata,"a"
.p2align 6
.amdhsa_kernel {NAME}_kernel
  .amdhsa_next_free_vgpr 256
  .amdhsa_next_free_sgpr 102
  .amdhsa_accum_offset 256
  .amdhsa_group_segment_fixed_size 0
  .amdhsa_kernarg_size 112
  .amdhsa_user_sgpr_count 2
  .amdhsa_user_sgpr_kernarg_segment_ptr 1
  .amdhsa_system_sgpr_workgroup_id_x 1
.end_amdhsa_kernel
"""
    if cfg.nomem:
        for n in (12582912, 8388608, 7340032, 67108864):
            out = out.replace(f", {n}\n", ", 0\n")
    return out, a.ninstr


if __name__ == "__main__":
    cfg = Cfg()
    outp = sys.argv[1]
    for kv in sys.argv[2:]:
        k, val = kv.split("=")
        setattr(cfg, k, type(getattr(cfg, k))(int(val)))
    txt, n = gen(cfg)
    open(outp, "w").write(txt)
    print("wrote", outp, n, "instructions")
```

```python
import sys
from asmlib import Asm

NAME = "adaLN_cond__sliding_block_cached__swiglu_ffn__decode"

EPOCH = 0
MODN = 0x1000
XR = 0x31000
MD = 0x41000
H5 = 0x51000
GOFF = 0xC0000
MODP = MODN + GOFF
H2 = 0x181000
H3O = 0x1A1000
H3ML = H3O
H4 = 0x221000
H6 = 0x241000
FLG = 0x251000
STAMP = 0x279000
WS_USED = 0x280000
F_H2, F_H3 = 0, 1

L_K = 0
L_V = 32768
L_RED0 = 65536
L_RED1 = L_RED0 + 8192
L_QS = L_RED1 + 4096
L_PS = L_QS + 8 * 272
L_WM = L_PS + 8 * 272
L_XL = L_WM + 256
LDS_BYTES = L_XL + 1024

TAGK = 0x9D6B5A37
LOG2E = 0x3FB8AA3B
SCALE = 0x3DB504F3
EPS = 0x3727C5AC


PN = ["", "h1", "h2", "h3", "h4", "h5", "h6", "h5a", "sbcb", "md"]


class Cfg:
    nt = True
    stamps = False
    amp = 0
    ampA = 0
    ampB = 14
    backoff = 0
    mback = 4
    mask = 1
    pre = 0
    scw = 0
    dual = 0
    gbq = 0
    fdef = 1
    capQ7 = 0
    dbl = 0
    h4w = 1
    scb = 1
    mdb = 4
    comb = 1
    cpf = 0
    g2 = 1
    g3 = 1
    qbar = 1
    sw = 0
    prep = 0
    cnt = 0
    lback = 2
    far = 0
    predirty = 0
    qA = 8
    capP3 = 0
    capN = 16
    capP4 = 0
    capQ2 = 0
    early = 0
    nomem = 0
    kv0 = 0
    kv1 = 2
    p3a = 4
    p3b = 4
    q2a = 0
    q7a = 0
    q7b = 2
    q7c = 0
    gbe = 1


def gen(cfg):
    a = Asm()
    NT = " nt" if cfg.nt else ""
    PRE = ["", " sc1", " nt"][cfg.prep]
    P_X, P_K, P_V, P_WQ, P_WO, P_BX, P_WG, P_WU = 8, 10, 12, 14, 16, 18, 20, 22
    P_WD, P_C, P_WM, P_OUT, P_DBG, P_WS = 24, 26, 28, 30, 32, 34
    WS = "s[36:39]"
    SA = "s[40:43]"
    SB = "s[44:47]"
    SM = "s[4:7]"
    sLG, tG = "s0", "s1"
    pMC = "s14"
    qXR, qR, pH5, pH6 = "s10", "s11", "s12", "s13"
    sW, sGI, sKS, sCS = "s48", "s49", "s50", "s51"
    sT = ["s52", "s53", "s54", "s55"]
    sT32, sT16 = "s56", "s57"
    sMROW = "s58"
    t0, t1, t2, t3, t4, t5 = "s60", "s61", "s62", "s63", "s64", "s65"
    sSPIN = "s70"
    sO6, sR6 = "s18", "s19"
    sKVL, sKVO = "s59", "s8"
    sFA, sW2, sMODK = "s3", "s32", "s33"
    vL, vN, vG = "v1", "v2", "v3"
    vM = ["v4", "v5", "v6", "v7"]
    vFF, vTL, vTE = "v8", "v9", "v10"
    vOB = "v11"
    vRW = "v12"
    vRB = "v13"
    vL4 = "v14"
    vXB = ["v15", "v16"]
    vXA = ["v17", "v18", "v19", "v20"]
    vBAD = "v21"
    vX = "v22"
    vLN = "v23"
    vT32 = "v0"
    A0, A1 = 24, 28
    D0, D1 = 32, 36
    T = list(range(40, 76))
    vXR, vONE, vFA, vMP = "v76", "v77", "v78", "v79"
    F0 = 80
    vQE4 = "v96"
    vA1, GU, vA4 = "v97", 98, "v100"
    vA2, vA3, vSH, vSC = "v252", "v253", "v254", "v255"
    vKV = [101, 102, 103, 104, 105, 106]
    vSTA = "v107"
    W0, W1, W2, W3 = 108, 140, 172, 204

    def v(i):
        return f"v{i}"

    def vr(i, n):
        return f"v[{i}:{i + n - 1}]"

    def srd(dst, ptr, nbytes):
        b = int(dst[2:dst.index(":")])
        a(f"s_mov_b32 s{b}, s{ptr}")
        a(f"s_mov_b32 s{b + 1}, s{ptr + 1}")
        a(f"s_mov_b32 s{b + 2}, {nbytes}")
        a(f"s_mov_b32 s{b + 3}, 0x00020000")

    def stamp(i):
        if cfg.amp and cfg.ampA == i:
            a("s_memrealtime s[100:101]")
        if cfg.amp and cfg.ampB == i:
            a("s_memrealtime s[98:99]")
        if cfg.stamps:
            a(f"s_memrealtime s[{72 + 2 * i}:{73 + 2 * i}]")

    def rnd(dst, src):
        a(f"v_cvt_pk_bf16_f32 {dst}, {src}, {src}")
        a(f"v_and_b32 {dst}, 0xffff0000, {dst}")

    DPP = " row_mask:0xf bank_mask:0xf"

    def allsum(x, tmp, op="add"):
        o = f"v_{op}_f32"
        a(f"{o}_dpp {x}, {x}, {x} quad_perm:[1,0,3,2]{DPP}")
        a(f"{o}_dpp {x}, {x}, {x} quad_perm:[2,3,0,1]{DPP}")
        a(f"{o}_dpp {x}, {x}, {x} row_half_mirror{DPP}")
        a(f"{o}_dpp {x}, {x}, {x} row_mirror{DPP}")
        rowsum(x, tmp, op)

    def allsum2(x, y, tx, ty):
        for m in ("quad_perm:[1,0,3,2]", "quad_perm:[2,3,0,1]", "row_half_mirror", "row_mirror"):
            for z in (x, y):
                a(f"v_add_f32_dpp {z}, {z}, {z} {m}{DPP}")
        for sw in ("16", "32"):
            for z, t in ((x, tx), (y, ty)):
                a(f"v_mov_b32 {t}, {z}")
            for z, t in ((x, tx), (y, ty)):
                a(f"v_permlane{sw}_swap_b32 {z}, {t}")
            for z, t in ((x, tx), (y, ty)):
                a(f"v_add_f32 {z}, {z}, {t}")

    def rowsum(x, tmp, op="add"):
        o = f"v_{op}_f32"
        a(f"v_mov_b32 {tmp}, {x}")
        a(f"v_permlane16_swap_b32 {x}, {tmp}")
        a(f"{o} {x}, {x}, {tmp}")
        a(f"v_mov_b32 {tmp}, {x}")
        a(f"v_permlane32_swap_b32 {x}, {tmp}")
        a(f"{o} {x}, {x}, {tmp}")

    def swapred(x):
        a(f"v_permlane32_swap_b32 {v(x)}, {v(x + 2)}")
        a(f"v_permlane32_swap_b32 {v(x + 1)}, {v(x + 3)}")
        a(f"v_add_f32 {v(x)}, {v(x)}, {v(x + 2)}")
        a(f"v_add_f32 {v(x + 1)}, {v(x + 1)}, {v(x + 3)}")
        a(f"v_permlane16_swap_b32 {v(x)}, {v(x + 1)}")
        a(f"v_add_f32 {v(x)}, {v(x)}, {v(x + 1)}")

    def swapred2(x, y):
        for z in (x, y):
            a(f"v_permlane32_swap_b32 {v(z)}, {v(z + 2)}")
            a(f"v_permlane32_swap_b32 {v(z + 1)}, {v(z + 3)}")
        for z in (x, y):
            a(f"v_add_f32 {v(z)}, {v(z)}, {v(z + 2)}")
            a(f"v_add_f32 {v(z + 1)}, {v(z + 1)}, {v(z + 3)}")
        for z in (x, y):
            a(f"v_permlane16_swap_b32 {v(z)}, {v(z + 1)}")
        for z in (x, y):
            a(f"v_add_f32 {v(z)}, {v(z)}, {v(z + 1)}")

    def silu(dst, src, tmp):
        a(f"v_mul_f32 {tmp}, 0xbfb8aa3b, {src}")
        a(f"v_exp_f32 {tmp}, {tmp}")
        a(f"v_add_f32 {tmp}, 1.0, {tmp}")
        a(f"v_rcp_f32 {tmp}, {tmp}")
        a(f"v_mul_f32 {dst}, {src}, {tmp}")

    def clean(pairs):
        for r, t in pairs:
            a(f"v_xor_b32 {v(r)}, {t}, {v(r)}")
        regs = [r for r, _ in pairs]
        if len(regs) == 1:
            a(f"v_mov_b32 {vBAD}, {v(regs[0])}")
            return
        if len(regs) % 2 == 0:
            a(f"v_or_b32 {vBAD}, {v(regs[0])}, {v(regs[1])}")
            regs = regs[2:]
        else:
            a(f"v_or3_b32 {vBAD}, {v(regs[0])}, {v(regs[1])}, {v(regs[2])}")
            regs = regs[3:]
        for i in range(0, len(regs), 2):
            a(f"v_or3_b32 {vBAD}, {vBAD}, {v(regs[i])}, {v(regs[i + 1])}")

    def g4(regs):
        return [(r + d, sT[d]) for r in regs for d in range(4)]

    def poll(name, loads, checks, back=None, after=None, first=True):
        lw = a.newlabel(name + "_w")
        ld = a.newlabel(name + "_d")
        if first:
            loads()
            a("s_waitcnt vmcnt(0)")
        VM.q = []
        if name == PN[cfg.cnt]:
            stamp(1)
        if after:
            after()
        a.label(lw)
        checks()
        a(f"v_cmp_ne_u32 vcc, 0, {vBAD}")
        a(f"s_cbranch_vccz {ld}")
        msk = cfg.mask and name not in ("h5a", "h6", "h3") and not (cfg.comb and name == "sbcb")
        if msk:
            a("s_mov_b64 exec, vcc")
        back = cfg.backoff if back is None else back
        if back:
            a(f"s_sleep {back}")
        loads()
        if cfg.stamps and cfg.cnt in (0, PN.index(name)):
            a("s_add_u32 s71, s71, 1")
        a(f"s_sub_u32 {sSPIN}, {sSPIN}, 1")
        a("s_waitcnt vmcnt(0)")
        a(f"s_cbranch_scc0 {lw}")
        a(f"s_mov_b32 {sSPIN}, 0")
        a.label(ld)
        if msk:
            a("s_mov_b64 exec, -1")

    def gate(h):
        lp = a.newlabel("gate")
        ld = a.newlabel("gated")
        a(f"s_cmp_eq_u32 {sW}, 0")
        a(f"s_cbranch_scc0 {ld}")
        a("s_lshl_b32 s68, s2, 7")
        a(f"s_add_u32 s68, s68, {FLG + h * 32768}")
        if cfg.dbl >> h & 1:
            a(f"s_add_u32 {t0}, s68, 65536")
        a.label(lp)
        a(f"s_buffer_load_dword s69, {WS}, s68 glc")
        if cfg.dbl >> h & 1:
            a(f"s_buffer_load_dword {tG}, {WS}, {t0} glc")
        a("s_waitcnt lgkmcnt(0)")
        if cfg.dbl >> h & 1:
            a(f"s_cmp_eq_u32 {tG}, {sT32}")
            a(f"s_cselect_b32 s69, s69, {tG}")
        a(f"s_cmp_eq_u32 s69, {sT32}")
        a(f"s_cbranch_scc1 {ld}")
        a(f"s_sub_u32 {sSPIN}, {sSPIN}, 1")
        a(f"s_cbranch_scc0 {lp}")
        a(f"s_mov_b32 {sSPIN}, 0")
        a.label(ld)
        barrier()

    def signal_partner(h):
        a("s_xor_b32 s68, s2, 8")
        a("s_lshl_b32 s68, s68, 7")
        a(f"s_add_u32 s68, s68, {FLG + h * 32768}")
        a("s_mov_b64 exec, 1")
        a(f"buffer_store_dword {vT32}, {vL4}, {WS}, s68 offen sc1")
        if cfg.dbl >> h & 1:
            a("s_xor_b32 s68, s2, 12")
            a("s_lshl_b32 s68, s68, 7")
            a(f"s_add_u32 s68, s68, {FLG + (h + 2) * 32768}")
            a(f"buffer_store_dword {vT32}, {vL4}, {WS}, s68 offen sc1")
        a("s_mov_b64 exec, -1")

    def signal_w(h, wave=7):
        sk = a.newlabel("sg")
        a(f"s_cmp_eq_u32 {sW}, {wave}")
        a(f"s_cbranch_scc0 {sk}")
        signal_partner(h)
        a.label(sk)

    def setexec(m):
        if m == -1:
            a("s_mov_b64 exec, -1")
        elif m < 64:
            a(f"s_mov_b64 exec, {m}")
        else:
            a(f"s_mov_b32 exec_lo, {m & 0xffffffff:#x}")
            a(f"s_mov_b32 exec_hi, {m >> 32:#x}")

    def store2(items, defer=False):
        l1 = a.newlabel("sn")
        l2 = a.newlabel("sf")

        def emit(far, sc):
            cur = -1
            for op, data, va, so, imm, m in items:
                if m != cur:
                    setexec(m)
                    cur = m
                if far:
                    a(f"s_add_u32 {tG}, {so}, {GOFF}")
                    so = tG
                a(f"{op} {data}, {va}, {WS}, {so} offen offset:{imm}{sc}")
            if cur != -1:
                setexec(-1)
        a(f"s_cmp_eq_u32 {sLG}, 0")
        a(f"s_cbranch_scc0 {l1}")
        emit(False, "")
        if defer:
            a(f"s_branch {l2}")
        a.label(l1)
        emit(True, " sc1")
        if not defer:
            a(f"s_cmp_eq_u32 {sLG}, 0")
            a(f"s_cbranch_scc1 {l2}")
        emit(False, " sc1")
        a.label(l2)

    def far_A(soff):
        sk = a.newlabel("df")
        a(f"s_add_u32 {tG}, {soff}, {GOFF}")
        a(f"s_cmp_eq_u32 {sW2}, 0")
        a(f"s_cbranch_scc0 {sk}")
        a(f"buffer_store_dword {v(F0)}, {vL4}, {WS}, {tG} offen sc1")
        a.label(sk)

    def predirty(items):
        if not cfg.predirty:
            return
        l1 = a.newlabel("pd")
        a(f"s_cmp_eq_u32 {sLG}, 0")
        a(f"s_cbranch_scc0 {l1}")
        for op, data, va, so, imm, m in items:
            setexec(m)
            a(f"{op} {data}, {va}, {WS}, {so} offen offset:{imm}")
        setexec(-1)
        a.label(l1)

    def gemv_bcast(D, wbase, nt_, dual=False):
        def prep(t):
            A = A0 if t % 2 == 0 else A1
            for d in range(4):
                a(f"v_and_b32_dpp {v(A + d)}, {vX}, {vM[d]} row_newbcast:{t}{DPP}")
        prep(0)
        for t in range(nt_):
            if t + 1 < nt_:
                prep(t + 1)
            A = A0 if t % 2 == 0 else A1
            Dt = D1 if dual and t % 2 else D
            c = "0" if t < (2 if dual else 1) else vr(Dt, 4)
            a(f"v_mfma_f32_16x16x32_bf16 {vr(Dt, 4)}, {vr(A, 4)}, {vr(wbase + 4 * t, 4)}, {c}")
        if dual:
            for d in range(4):
                a(f"v_add_f32 {v(D + d)}, {v(D + d)}, {v(D1 + d)}")

    def gemv_regs(D, wbase, xs):
        def prep(t):
            A = A0 if t % 2 == 0 else A1
            for d in range(4):
                a(f"v_and_b32 {v(A + d)}, {xs[t]}, {vM[d]}")
        prep(0)
        for t in range(len(xs)):
            if t + 1 < len(xs):
                prep(t + 1)
            A = A0 if t % 2 == 0 else A1
            c = "0" if t == 0 else vr(D, 4)
            a(f"v_mfma_f32_16x16x32_bf16 {vr(D, 4)}, {vr(A, 4)}, {vr(wbase + 4 * t, 4)}, {c}")

    def red_write_A(D, red):
        a("s_mov_b32 exec_hi, 0")
        a(f"ds_write_b128 {vRW}, {vr(D, 4)} offset:{red - L_RED0}")
        a("s_mov_b32 exec_hi, -1")

    def red_write_B(D, red):
        a("s_mov_b32 exec_lo, 0x00ff00ff")
        a("s_mov_b32 exec_hi, 0xff00ff00")
        a(f"ds_write_b128 {vRB}, {vr(D, 4)} offset:{red - L_RED0}")
        a("s_mov_b64 exec, -1")

    def finalize(vaddr, offs, soff, near=0):
        n = len(offs)
        for i in range(0, n, 2):
            a(f"ds_read2st64_b32 {vr(F0 + i, 2)}, {vaddr} offset0:{offs[i]} offset1:{offs[i + 1]}")
        a("s_waitcnt lgkmcnt(0)")
        step = 1
        while step < n:
            for i in range(0, n, 2 * step):
                a(f"v_add_f32 {v(F0 + i)}, {v(F0 + i)}, {v(F0 + i + step)}")
            step *= 2
        a(f"v_bfi_b32 {v(F0)}, {vFF}, {vTL}, {v(F0)}")
        if near:
            store2([("buffer_store_dword", v(F0), vL4, soff, 0, -1)], defer=near == 2)
        else:
            a(f"buffer_store_dword {v(F0)}, {vL4}, {WS}, {soff} offen sc1")

    def barrier():
        a("s_waitcnt lgkmcnt(0)")
        a("s_barrier")

    def finalize_A(red, sbase, w0=0, sig=None, near=0):
        sk = a.newlabel("fa")
        if not near:
            a(f"s_add_u32 {t5}, {sFA}, {sbase}")
        a(f"s_cmp_eq_u32 {sW2}, {w0 // 2}")
        a(f"s_cbranch_scc0 {sk}")
        o = (red - L_RED0) // 256
        finalize(vFA, [o + 2 * i for i in range(8)], sbase if near else t5, near)
        if sig is not None:
            a(f"s_cmp_eq_u32 {sW}, {w0}")
            a(f"s_cbranch_scc0 {sk}")
            signal_partner(sig)
        a.label(sk)

    def finalize_B(wave, red, colbytes):
        assert wave % 2 == 0
        sk = a.newlabel("fb")
        a(f"s_add_u32 {t5}, {sMODK}, {colbytes}")
        a(f"s_cmp_eq_u32 {sW}, {wave}")
        a(f"s_cbranch_scc0 {sk}")
        o = (red - L_RED0) // 256
        finalize(vFA, [o + i for i in range(16)], t5)
        a.label(sk)

    def predirty_A(soff):
        sk = a.newlabel("pa")
        a(f"s_cmp_eq_u32 {sW2}, 0")
        a(f"s_cbranch_scc0 {sk}")
        a(f"v_not_b32 {v(F0 + 8)}, {vTL}")
        predirty([("buffer_store_dword", v(F0 + 8), vL4, soff, 0, -1)])
        a.label(sk)

    def mod_prep():
        rnd(vSH, v(T[0]))
        a(f"v_add_f32_dpp {vSC}, {vSH}, {vONE} row_ror:8{DPP}")
        rnd(vSC, vSC)

    def modulate(sc=vSC):
        a(f"v_mul_f32 {v(T[1])}, {vLN}, {sc}")
        rnd(v(T[1]), v(T[1]))
        a(f"v_add_f32 {v(T[1])}, {v(T[1])}, {vSH}")
        a(f"v_cvt_pk_bf16_f32 {vX}, {v(T[1])}, {v(T[1])}")

    def ln_stats(mean, var):
        rnd(var, var)
        rnd(mean, mean)
        a(f"v_add_f32 {var}, {EPS}, {var}")
        rnd(var, var)
        a(f"v_sqrt_f32 {var}, {var}")
        rnd(var, var)
        a(f"v_rcp_f32 {var}, {var}")

    def ln_apply(xval, mean, rstd, tmp):
        a(f"v_sub_f32 {tmp}, {xval}, {mean}")
        rnd(tmp, tmp)
        a(f"v_mul_f32 {tmp}, {tmp}, {rstd}")
        rnd(vLN, tmp)

    def ln_finish(xval, mean, var, tmp):
        ln_stats(mean, var)
        ln_apply(xval, mean, var, tmp)

    class VM:
        q = []

    def vm_add(tag):
        VM.q.append(tag)

    def vm_wait(tag=None):
        if tag is None:
            n = 0
        else:
            if tag not in VM.q:
                return
            idx = max(i for i, t in enumerate(VM.q) if t == tag)
            n = len(VM.q) - 1 - idx
        a(f"s_waitcnt vmcnt({n})")
        VM.q = VM.q[len(VM.q) - n:] if n else []

    class Tile:
        def __init__(self, name, srdname, wreg, n, va, tstep):
            self.name, self.srd, self.wreg, self.n, self.va, self.tstep = name, srdname, wreg, n, va, tstep
            self.next = 0

        def addr(self, sbase, gstep):
            a(f"v_mul_u32_u24 {self.va}, {gstep}, {vG}")
            a(f"v_lshl_add_u32 {self.va}, {vN}, 4, {self.va}")
            a(f"v_add_u32 {self.va}, {sbase}, {self.va}")

        def issue(self, upto=None, cap=0):
            upto = self.n if upto is None else min(upto, self.n)
            while self.next < upto:
                t = self.next
                if cap and len(VM.q) >= cap:
                    a(f"s_waitcnt vmcnt({cap - 1})")
                    VM.q = VM.q[len(VM.q) - (cap - 1):] if cap > 1 else []
                self.load(t)
                vm_add(self.name)
                self.next += 1

        def load(self, t):
            so = "0"
            if t:
                so = "s69" if t % 2 else "s68"
                a(f"s_mov_b32 {so}, {t * self.tstep}")
            a(f"buffer_load_dwordx4 {vr(self.wreg + 4 * t, 4)}, {self.va}, {self.srd}, {so} offen{NT}")

    class TileG(Tile):
        def load(self, t):
            if cfg.nomem:
                a(f"buffer_load_dwordx4 {vr(self.wreg + 4 * t, 4)}, {vL4}, {SM}, 0 offen{NT}")
                return
            if t:
                a(f"v_add_co_u32 {v(GU)}, vcc, {4 * 7168}, {v(GU)}")
                a(f"v_addc_co_u32 {v(GU + 1)}, vcc, 0, {v(GU + 1)}, vcc")
            a(f"global_load_dwordx4 {vr(self.wreg + 4 * t, 4)}, {vr(GU, 2)}, off{NT}")

    def tileB(name, wreg, va, colbase, cs):
        tl = Tile(name, SM, wreg, 2, va, 12288)
        a(f"s_lshl_b32 {t0}, {cs}, 7")
        a(f"s_add_u32 {t0}, {t0}, {sMROW}")
        a(f"s_add_u32 {t0}, {t0}, {colbase}")
        a(f"v_add_u32 {va}, {t0}, {vOB}")
        return tl

    def tile6(wreg):
        a(f"s_max_u32 {t1}, {sW}, 1")
        a(f"s_sub_u32 {t1}, {t1}, 1")
        a(f"s_lshl_b32 {sR6}, {sCS}, 6")
        a(f"s_mul_i32 {sO6}, {sCS}, 3584")
        a(f"s_mul_i32 {t2}, {sKS}, 57344")
        a(f"s_add_u32 {sO6}, {sO6}, {t2}")
        a(f"s_add_u32 {sO6}, {sO6}, {H5}")
        a(f"s_cmp_ge_u32 {t1}, 3")
        a(f"s_cselect_b32 s69, 1, 0")
        a(f"s_cselect_b32 {t2}, 3, 0")
        a(f"s_sub_u32 {t2}, {t1}, {t2}")
        a(f"s_lshl_b32 {t2}, {t2}, 7")
        a(f"s_and_b32 {t0}, {sKS}, 1")
        a(f"s_lshl_b32 {t0}, {t0}, 6")
        a(f"s_add_u32 {t2}, {t2}, {t0}")
        a(f"s_cmp_eq_u32 {t2}, 448")
        a(f"s_cselect_b32 {t2}, 0, {t2}")
        a(f"s_add_u32 {t3}, {t2}, 64")
        a(f"s_cmp_eq_u32 {t1}, 6")
        a(f"s_cselect_b32 {t3}, {t2}, {t3}")
        a(f"s_cselect_b32 s68, 0, s69")
        a(f"s_mul_i32 {t0}, s68, 448")
        a(f"s_add_u32 {t0}, {t0}, {t2}")
        a(f"s_mul_i32 {t1}, s69, 448")
        a(f"s_add_u32 {t1}, {t1}, {t3}")
        a(f"v_mov_b32 {v(T[4])}, {t0}")
        a(f"v_mov_b32 {v(T[5])}, {t1}")
        a(f"s_mul_i32 {t0}, {sR6}, 7168")
        a(f"s_mul_i32 {t1}, {sKS}, 896")
        a(f"s_add_u32 {t0}, {t0}, {t1}")
        a(f"s_lshl_b32 {t2}, {t2}, 1")
        a(f"s_lshl_b32 {t3}, {t3}, 1")
        a(f"s_add_u32 {t2}, {t2}, {t0}")
        a(f"s_add_u32 {t3}, {t3}, {t0}")
        for sel, off, lo, hi in (("s68", t2, T[0], T[1]), ("s69", t3, T[2], T[3])):
            a(f"s_cmp_eq_u32 {sel}, 1")
            a(f"s_cselect_b32 {t0}, s{P_WU}, s{P_WG}")
            a(f"s_cselect_b32 {t1}, s{P_WU + 1}, s{P_WG + 1}")
            a(f"s_add_u32 {t0}, {t0}, {off}")
            a(f"s_addc_u32 {t1}, {t1}, 0")
            a(f"v_mov_b32 {v(lo)}, {t0}")
            a(f"v_mov_b32 {v(hi)}, {t1}")
        a(f"v_cmp_lt_u32 vcc, 7, {vN}")
        a(f"v_cndmask_b32 {v(GU)}, {v(T[0])}, {v(T[2])}, vcc")
        a(f"v_cndmask_b32 {v(GU + 1)}, {v(T[1])}, {v(T[3])}, vcc")
        a(f"v_cndmask_b32 {vA4}, {v(T[4])}, {v(T[5])}, vcc")
        a(f"v_mul_u32_u24 {v(T[0])}, {0 if cfg.nomem else 7168}, {vG}")
        a(f"v_and_b32 {v(T[1])}, 7, {vL}")
        a(f"v_lshl_add_u32 {v(T[0])}, {v(T[1])}, 4, {v(T[0])}")
        a(f"v_lshl_add_u32 {vA4}, {v(T[1])}, 3, {vA4}")
        a(f"v_lshl_add_u32 {vA4}, {vG}, 2, {vA4}")
        a(f"v_lshlrev_b32 {vA4}, 2, {vA4}")
        a(f"v_add_co_u32 {v(GU)}, vcc, {v(GU)}, {v(T[0])}")
        a(f"v_addc_co_u32 {v(GU + 1)}, vcc, 0, {v(GU + 1)}, vcc")

        return TileG("gu", None, wreg, 16, None, 0)

    def pair_sum():
        for d in range(4):
            a(f"v_add_f32 {v(T[d])}, {v(T[d])}, {v(T[4 + d])}")
        swapred(T[0])

    def pair_checks():
        clean(g4([T[0], T[4]]))
        a(f"v_and_b32 {vBAD}, 0xff, {vBAD}")

    def pair_loads():
        a(f"buffer_load_dwordx4 {vr(T[0], 4)}, {vMP}, {WS}, {t0} offen sc1")
        a(f"buffer_load_dwordx4 {vr(T[4], 4)}, {vMP}, {WS}, {t1} offen sc1")

    def not_w0(f, w0=None):
        sk = a.newlabel("nw")
        lj = a.newlabel("nj")
        a(f"s_cmp_eq_u32 {sW}, 0")
        a(f"s_cbranch_scc1 {sk}")
        f()
        if w0:
            a(f"s_branch {lj}")
        a.label(sk)
        if w0:
            w0()
            a.label(lj)

    def stage6_input():
        vs, vx, vm = v(T[27]), v(T[26]), v(T[25])
        a(f"v_and_b32 {vs}, 31, {vL}")
        a(f"v_lshlrev_b32 {vs}, 8, {vs}")
        a(f"v_bfe_u32 {vx}, {vL}, 3, 1")
        a(f"v_lshl_add_u32 {vx}, {vx}, 8, {vQE4}")
        a(f"s_lshl_b32 {t3}, {sKS}, 13")
        a(f"s_add_u32 {t3}, {t3}, {XR}")
        a(f"s_add_u32 {t3}, {t3}, {sLG}")
        a(f"s_lshl_b32 {t2}, {sR6}, 3")
        a(f"s_add_u32 {t2}, {t2}, {t3}")

        def loads0():
            a(f"buffer_load_dwordx4 {vr(T[16], 4)}, {vs}, {WS}, {t3} offen offset:128 sc1")
            a(f"buffer_load_dword {v(T[20])}, {vx}, {WS}, {t2} offen sc1")

        a(f"s_add_u32 {t0}, {t2}, {MD - XR}")

        def mloads():
            a(f"buffer_load_dword {vSH}, {vx}, {WS}, {t0} offen sc1")
            a(f"buffer_load_dword {vSC}, {vx}, {WS}, {t0} offen offset:128 sc1")
            loads0()

        def mchecks():
            a(f"v_xor_b32 {vSH}, {vTE}, {vSH}")
            a(f"v_xor_b32 {vSC}, {vTE}, {vSC}")
            a(f"v_or_b32 {vBAD}, {vSH}, {vSC}")
            a(f"v_and_b32 {vBAD}, 0xff, {vBAD}")
        poll("sbcb", mloads, mchecks, back=cfg.mback)
        stamp(7)

        def checks0():
            a(f"v_xor_b32 {v(T[20])}, {vTE}, {v(T[20])}")
            a(f"v_and_b32 {vBAD}, 0xff, {v(T[20])}")
            a(f"v_bitop3_b32 {vBAD}, {vBAD}, {v(T[17])}, {sT32} bitop3:0xf6")
            a(f"v_bitop3_b32 {vBAD}, {vBAD}, {v(T[19])}, {sT32} bitop3:0xf6")
        poll("h5a", loads0, checks0, back=cfg.lback, first=not cfg.comb)
        stamp(9)
        allsum2(v(T[16]), v(T[18]), v(T[10]), v(T[11]))
        a(f"v_mul_f32 {v(T[12])}, 0x39800000, {v(T[16])}")
        a(f"v_mul_f32 {v(T[13])}, 0x39800000, {v(T[18])}")
        a(f"v_fma_f32 {v(T[13])}, -{v(T[12])}, {v(T[12])}, {v(T[13])}")
        a(f"v_max_f32 {v(T[13])}, 0, {v(T[13])}")
        ln_stats(v(T[12]), v(T[13]))
        ln_apply(v(T[20]), v(T[12]), v(T[13]), v(T[10]))
        modulate()
        a(f"ds_write_b32 {vSTA}, {vX}")

    def col32_reduce(x):
        swapred(x)
        a(f"v_add_f32_dpp {v(x)}, {v(x)}, {v(x)} row_ror:8{DPP}")

    def write_stamps():
        if not cfg.stamps:
            return
        sk = a.newlabel("st")
        a(f"s_cmp_eq_u32 {sW}, {cfg.sw}")
        a(f"s_cbranch_scc0 {sk}")
        a("s_waitcnt lgkmcnt(0)")
        a("s_mov_b64 exec, 1")
        a(f"s_lshl_b32 {t0}, s2, 6")
        a(f"s_add_u32 {t0}, {t0}, {STAMP}")
        a(f"v_mov_b32 {v(T[1])}, 0")
        for i in range(15):
            a(f"v_mov_b32 {v(T[2 + i])}, s{72 + 2 * i}")
            a(f"buffer_store_dword {v(T[2 + i])}, {v(T[1])}, {WS}, {t0} offen offset:{4 * i}")
        a(f"v_mov_b32 {v(T[20])}, s71")
        a(f"buffer_store_dword {v(T[20])}, {v(T[1])}, {WS}, {t0} offen offset:60")
        a("s_mov_b64 exec, -1")
        a.label(sk)

    M_N8 = 0x00ff00ff00ff00ff

    def mask_n8():
        a("s_mov_b32 exec_lo, 0x00ff00ff")
        a("s_mov_b32 exec_hi, 0x00ff00ff")

    def common():
        a(f"s_load_dword {sT32}, s[{P_WS}:{P_WS + 1}], {EPOCH}")
        srd(WS, P_WS, WS_USED)
        a(f"s_getreg_b32 {t0}, hwreg(HW_REG_XCC_ID, 0, 4)")
        if cfg.far == 1:
            a(f"s_mov_b32 {t0}, 99")
        if cfg.far == 2:
            a(f"s_bitcmp1_b32 s2, 5")
            a(f"s_cselect_b32 {t0}, 99, {t0}")
        a(f"s_cmp_eq_u32 {t0}, {sKS}")
        a(f"s_cselect_b32 {sLG}, 0, {GOFF}")
        a(f"v_and_b32 {v(T[0])}, 1, {vL}")
        a(f"v_mov_b32 {v(T[1])}, 0xffff")
        a(f"v_lshlrev_b32 {v(T[0])}, 4, {v(T[0])}")
        a(f"v_lshlrev_b32 {v(T[1])}, {v(T[0])}, {v(T[1])}")
        a(f"v_bfe_u32 {v(T[0])}, {vL}, 1, 2")
        for d in range(4):
            a(f"v_cmp_eq_u32 vcc, {d}, {v(T[0])}")
            a(f"v_cndmask_b32 {vM[d]}, 0, {v(T[1])}, vcc")
        a(f"v_mov_b32 {vFF}, 0xff")
        a(f"v_mov_b32 {vONE}, 1.0")
        a(f"v_add_u32 {vSTA}, {L_XL}, {vL4}")
        a(f"s_lshl_b32 {t0}, {sW}, 9")
        a(f"s_add_u32 {t0}, {t0}, {L_RED0}")
        a(f"v_lshlrev_b32 {vRW}, 5, {vN}")
        a(f"v_lshl_add_u32 {vRW}, {vG}, 4, {vRW}")
        a(f"v_add_u32 {vRW}, {t0}, {vRW}")
        a(f"v_and_b32 {v(T[0])}, 7, {vL}")
        a(f"v_lshlrev_b32 {vRB}, 5, {v(T[0])}")
        a(f"v_and_b32 {v(T[1])}, 1, {vG}")
        a(f"v_lshl_add_u32 {vRB}, {v(T[1])}, 4, {vRB}")
        a(f"v_lshrrev_b32 {v(T[1])}, 1, {vG}")
        a(f"v_lshl_add_u32 {vRB}, {v(T[1])}, 8, {vRB}")
        a(f"v_add_u32 {vRB}, {t0}, {vRB}")
        a(f"s_and_b32 {sFA}, {sW}, 1")
        a(f"s_lshl_b32 {sFA}, {sFA}, 8")
        a(f"s_lshr_b32 {sW2}, {sW}, 1")
        a(f"s_add_u32 {t0}, {sFA}, {L_RED0}")
        a(f"v_add_u32 {vFA}, {t0}, {vL4}")
        a(f"s_mul_i32 {sMODK}, {t4}, 24576")
        a(f"s_add_u32 {sMODK}, {sMODK}, {MODP}")
        a(f"v_mul_u32_u24 {vMP}, 24576, {vG}")
        a(f"v_bfe_u32 {v(T[1])}, {vL}, 3, 1")
        a(f"v_lshl_add_u32 {vMP}, {v(T[1])}, 12, {vMP}")
        a(f"v_lshl_add_u32 {vMP}, {v(T[0])}, 4, {vMP}")
        a("s_waitcnt lgkmcnt(0)")
        a(f"s_xor_b32 {sT32}, {sT32}, {TAGK}")
        for d in range(4):
            a(f"s_bfe_u32 {sT[d]}, {sT32}, {(8 << 16) | (8 * d)}")
        a(f"s_lshr_b32 {sT16}, {sT32}, 16")
        a(f"v_mov_b32 {vT32}, {sT32}")
        a(f"v_and_b32 {v(T[0])}, 3, {vL}")
        a(f"v_lshlrev_b32 {v(T[0])}, 3, {v(T[0])}")
        a(f"v_bfe_u32 {vTL}, {vT32}, {v(T[0])}, 8")
        a(f"v_lshlrev_b32 {v(T[0])}, 3, {vG}")
        a(f"v_bfe_u32 {vTE}, {vT32}, {v(T[0])}, 8")

    a.raw(f"{NAME}_kernel:")
    a("s_cmp_ge_u32 s2, 256")
    a("s_cbranch_scc1 L_end")
    a("s_load_dwordx8 s[24:31], s[0:1], 64")
    a("s_load_dwordx16 s[8:23], s[0:1], 0")
    a("s_load_dwordx4 s[32:35], s[0:1], 96")
    if cfg.stamps:
        for i in range(15):
            a(f"s_mov_b64 s[{72 + 2 * i}:{73 + 2 * i}], 0")
        a("s_mov_b32 s71, 0")
    stamp(0)
    a(f"v_and_b32 {vL}, 63, v0")
    a(f"v_lshrrev_b32 {v(T[0])}, 6, v0")
    a(f"v_and_b32 {vN}, 15, v0")
    a(f"v_readfirstlane_b32 {sW}, {v(T[0])}")
    a(f"v_lshrrev_b32 {vG}, 4, {vL}")
    a(f"s_and_b32 {sKS}, s2, 7")
    a(f"s_lshr_b32 {sCS}, s2, 4")
    a(f"s_lshl_b32 {sGI}, {sCS}, 3")
    a(f"s_or_b32 {sGI}, {sGI}, {sKS}")
    a(f"s_mov_b32 {sSPIN}, 200000")
    if cfg.cpf:
        a.raw("L_pc:")
        a("s_getpc_b64 s[66:67]")
        a("s_lshr_b32 s68, s2, 3")
        a("s_lshl_b32 s68, s68, 10")
        a(f"v_lshl_add_u32 {v(F0 + 4)}, {vL}, 4, s68")
        a(f"v_min_u32 {v(F0 + 4)}, L_end-L_pc-16, {v(F0 + 4)}")
        a(f"v_and_b32 {v(F0 + 4)}, -4, {v(F0 + 4)}")
        sk = a.newlabel("cpf")
        a(f"s_cmp_eq_u32 {sW}, {cfg.cpf - 1}")
        a(f"s_cbranch_scc0 {sk}")
        a(f"global_load_dwordx4 {vr(F0, 4)}, {v(F0 + 4)}, s[66:67]")
        a.label(sk)
    a(f"v_lshrrev_b32 {v(T[0])}, 3, {vL}")
    a(f"v_mul_u32_u24 {vOB}, 24576, {v(T[0])}")
    a(f"v_and_b32 {v(T[1])}, 7, {vL}")
    a(f"v_lshl_add_u32 {vOB}, {v(T[1])}, 4, {vOB}")
    a(f"v_lshlrev_b32 {v(T[2])}, 2, {v(T[0])}")
    a(f"v_lshlrev_b32 {v(T[3])}, 3, {vG}")
    a(f"v_lshlrev_b32 {vL4}, 2, {vL}")
    a(f"v_lshl_add_u32 {vQE4}, {v(T[1])}, 2, {vG}")
    a(f"v_lshlrev_b32 {v(T[9])}, 1, {vQE4}")
    a(f"v_lshlrev_b32 {vQE4}, 2, {vQE4}")
    a(f"v_lshlrev_b32 {v(T[8])}, 5, {vL}")
    a(f"s_and_b32 {t4}, {sCS}, 7")
    a("s_bitcmp1_b32 s2, 3")
    a(f"s_cselect_b32 {t4}, {sKS}, {t4}")
    a(f"s_lshl_b32 {t2}, {t4}, 7")
    a(f"s_lshl_b32 {t3}, {sW}, 4")
    a(f"s_add_u32 {t2}, {t2}, {t3}")
    a(f"s_mul_i32 {sMROW}, {t2}, 12288")
    a(f"s_lshl_b32 {t2}, {t2}, 1")
    a("s_mov_b32 s6, 12582912")
    a("s_mov_b32 s7, 0x00020000")
    a("s_mov_b32 s46, 2048")
    a("s_mov_b32 s47, 0x00020000")
    a("s_bitcmp1_b32 s2, 3")
    a("s_cbranch_scc1 L_Q_pre")
    a(f"s_and_b32 {t5}, {sCS}, 8")
    a(f"s_or_b32 {t5}, {t5}, {sKS}")
    a(f"s_lshl_b32 {t0}, {t5}, 8")
    a(f"s_add_u32 {t0}, {t0}, {sMROW}")
    tS1 = Tile("s1", SM, W0, 4, vA1, 12288)
    tS1.addr(t0, 4 * 12288)
    a("s_waitcnt lgkmcnt(0)")
    a(f"s_mov_b32 s4, s{P_WM}")
    a(f"s_mov_b32 s5, s{P_WM + 1}")
    a(f"s_mov_b32 s44, s{P_C}")
    a(f"s_mov_b32 s45, s{P_C + 1}")
    VM.q = []
    a(f"buffer_load_dwordx2 {vr(T[6], 2)}, {v(T[3])}, {SB}, {t2} offen")
    a(f"buffer_load_dword {v(T[4])}, {v(T[2])}, {SB}, {t2} offen")
    if cfg.scw:
        a(f"v_lshl_add_u32 {v(T[10])}, {vN}, 2, {vG}")
        a(f"v_lshlrev_b32 {v(T[10])}, 1, {v(T[10])}")
        a(f"s_lshl_b32 {t1}, {t4}, 8")
        a(f"buffer_load_ushort {vSH}, {v(T[10])}, {SB}, {t1} offen")
        a(f"buffer_load_ushort {vSC}, {v(T[10])}, {SB}, {t1} offen offset:128")
    vm_add("c")
    tS1.issue()
    a(f"s_mov_b32 {pMC}, {t5}")
    a(f"s_and_b32 s66, {sGI}, 3")
    a(f"s_lshr_b32 s67, {sGI}, 2")
    a(f"s_lshl_b32 {t2}, s66, 24")
    a(f"s_lshl_b32 {t1}, s67, 15")
    a(f"s_add_u32 {t2}, {t2}, {t1}")
    a(f"s_lshl_b32 {sKVL}, {sW}, 12")
    a(f"s_add_u32 {t2}, {t2}, {sKVL}")
    a(f"s_add_u32 {sKVO}, {t2}, {61440 * 256}")
    srd(SA, P_K, 67108864)
    srd(SB, P_V, 67108864)
    a(f"v_xor_b32 {v(vKV[0])}, {vN}, {vG}")
    a(f"v_lshlrev_b32 {v(vKV[0])}, 4, {v(vKV[0])}")
    a(f"v_lshl_add_u32 {v(vKV[0])}, {vG}, 8, {v(vKV[0])}")
    for u in range(1, 4):
        a(f"v_xor_b32 {v(vKV[u])}, {64 * u}, {v(vKV[0])}")
    a(f"v_lshlrev_b32 {v(vKV[4])}, 1, {vG}")
    a(f"v_xor_b32 {v(vKV[4])}, {vN}, {v(vKV[4])}")
    a(f"v_lshlrev_b32 {v(vKV[4])}, 4, {v(vKV[4])}")
    a(f"v_lshl_add_u32 {v(vKV[4])}, {vG}, 8, {v(vKV[4])}")
    a(f"v_xor_b32 {v(vKV[5])}, 128, {v(vKV[4])}")
    kvn = [0]

    def kv_issue(upto):
        while kvn[0] < upto:
            u = kvn[0]
            if u == 0:
                a(f"s_mov_b32 m0, {sKVL}")
            if u == 4:
                a(f"s_add_u32 m0, {sKVL}, {L_V}")
            if u < 4:
                a(f"buffer_load_dwordx4 {v(vKV[u])}, {SA}, {sKVO} offen offset:{1024 * u}{NT} lds")
            else:
                a(f"buffer_load_dwordx4 {v(vKV[4 + ((u - 4) >> 1)])}, {SB}, {sKVO} offen offset:{1024 * (u - 4)}{NT} lds")
            vm_add("kv")
            kvn[0] += 1
    if cfg.kv0:
        a("s_barrier")
    kv_issue(cfg.kv0)
    VMP = list(VM.q)
    common()

    def silu_c(typeA):
        if typeA:
            srcs = [(T[6], vXA[0], vXA[1]), (T[7], vXA[2], vXA[3])]
        else:
            srcs = [(T[4], vXB[0], vXB[1])]
        for s_, lo, hi in srcs:
            a(f"v_lshlrev_b32 {v(T[0])}, 16, {v(s_)}")
            a(f"v_and_b32 {v(T[1])}, 0xffff0000, {v(s_)}")
            silu(v(T[0]), v(T[0]), v(T[2]))
            silu(v(T[1]), v(T[1]), v(T[3]))
            a(f"v_cvt_pk_bf16_f32 {lo}, {v(T[0])}, {v(T[0])}")
            a(f"v_cvt_pk_bf16_f32 {hi}, {v(T[1])}, {v(T[1])}")

    a.c("======== P: S1")
    VM.q = VMP
    vm_wait("c")
    silu_c(True)
    a(f"s_lshl_b32 {t4}, {t5}, 9")
    a(f"s_add_u32 {sMODK}, {t4}, {sMODK}")
    a(f"s_add_u32 {t4}, {sMODK}, {sFA}")
    a(f"s_sub_u32 {t4}, {t4}, {GOFF}")
    tSC = Tile("sc", SM, W0 + 16, 4, vA2, 12288)
    a(f"v_add_u32 {vA2}, 6144, {vA1}")
    vm_wait("s1")
    stamp(1)
    kv_issue(cfg.kv1)
    gemv_regs(D0, W0, vXA)
    red_write_A(D0, L_RED0)
    barrier()
    finalize_A(L_RED0, t4, near=1)
    a("s_barrier")
    stamp(2)
    kv_issue(8)
    silu_c(False)
    if cfg.scw:
        for r_ in (vSH, vSC):
            a(f"v_lshlrev_b32 {v(T[0])}, 16, {r_}")
            silu(v(T[0]), v(T[0]), v(T[2]))
            a(f"v_cvt_pk_bf16_f32 {r_}, {v(T[0])}, {v(T[0])}")
        a(f"s_lshl_b32 {t0}, {pMC}, 8")
        a(f"s_add_u32 {t0}, {t0}, 6144")
        a(f"s_add_u32 {t0}, {t0}, {sMROW}")
        tSC = Tile("sc", SM, W0, 32, vA2, 4 * 12288)
        tSC.addr(t0, 12288)
    tGU = tile6(W1)
    tGB = tileB("gb", W3, vA3, 10240, pMC)
    KF, VF, QF = W3, W3 + 16, W3 + 32
    vKA, vVA, vQA, vH2, vQW, vPW = v(T[30]), v(T[31]), v(T[32]), v(T[33]), v(T[34]), v(T[35])
    vWMr, vWMw, vOA, vMLA = v(T[26]), v(T[27]), v(T[28]), v(T[29])
    a(f"v_xor_b32 {vKA}, {vN}, {vG}")
    a(f"v_lshlrev_b32 {vKA}, 4, {vKA}")
    a(f"v_lshl_add_u32 {vKA}, {vN}, 8, {vKA}")
    a(f"s_lshl_b32 {t1}, {sW}, 12")
    a(f"v_add_u32 {vKA}, {t1}, {vKA}")
    a(f"v_bfe_u32 {v(T[0])}, {vL}, 2, 2")
    a(f"v_and_b32 {v(T[1])}, 1, {vG}")
    a(f"v_lshl_or_b32 {v(T[1])}, {v(T[1])}, 2, {v(T[0])}")
    a(f"v_lshlrev_b32 {v(T[1])}, 1, {v(T[1])}")
    a(f"v_bfe_u32 {v(T[2])}, {vL}, 1, 1")
    a(f"s_lshl_b32 {t1}, {sW}, 1")
    a(f"v_or_b32 {v(T[2])}, {t1}, {v(T[2])}")
    a(f"v_xor_b32 {v(T[2])}, {v(T[2])}, {v(T[1])}")
    a(f"v_lshl_add_u32 {v(T[0])}, {vG}, 3, {v(T[0])}")
    a(f"v_lshlrev_b32 {vVA}, 8, {v(T[0])}")
    a(f"v_lshl_add_u32 {vVA}, {v(T[2])}, 4, {vVA}")
    a(f"v_and_b32 {v(T[0])}, 1, {vL}")
    a(f"v_lshl_add_u32 {vVA}, {v(T[0])}, 3, {vVA}")
    a(f"v_add_u32 {vVA}, {L_V}, {vVA}")
    a(f"v_and_b32 {v(T[0])}, 7, {vL}")
    a(f"v_mul_u32_u24 {vQA}, 272, {v(T[0])}")
    a(f"v_lshl_add_u32 {vPW}, {vG}, 3, {vQA}")
    a(f"v_lshl_add_u32 {vQA}, {vG}, 4, {vQA}")
    a(f"v_add_u32 {vQA}, {L_QS}, {vQA}")
    a(f"s_lshl_b32 {t1}, {sW}, 5")
    a(f"s_add_u32 {t1}, {t1}, {L_PS}")
    a(f"v_add_u32 {vPW}, {t1}, {vPW}")
    a(f"v_lshlrev_b32 {vWMr}, 5, {v(T[0])}")
    a(f"v_add_u32 {vWMr}, {L_WM}, {vWMr}")
    a(f"s_lshl_b32 {t1}, {sW}, 2")
    a(f"v_add_u32 {vWMw}, {t1}, {vWMr}")
    a(f"v_lshlrev_b32 {vH2}, 14, {vG}")
    a(f"v_lshl_add_u32 {vH2}, {vN}, 4, {vH2}")
    a(f"v_lshl_add_u32 {vQW}, {vN}, 2, {vG}")
    a(f"v_lshlrev_b32 {vQW}, 1, {vQW}")
    a(f"s_mul_i32 {t1}, {sW}, 272")
    a(f"s_add_u32 {t1}, {t1}, {L_QS}")
    a(f"v_add_u32 {vQW}, {t1}, {vQW}")
    a(f"v_lshlrev_b32 {vOA}, 7, {vG}")
    a(f"v_lshl_add_u32 {vOA}, {vN}, 4, {vOA}")
    a(f"v_lshlrev_b32 {vMLA}, 3, {vL}")
    a(f"s_lshl_b32 {t2}, s66, 3")
    a(f"s_add_u32 {t2}, {t2}, {sW}")
    a(f"s_lshl_b32 {t3}, {t2}, 5")
    a(f"s_add_u32 {t3}, {t3}, s67")
    a(f"s_lshl_b32 {t2}, {t2}, 9")
    a(f"s_add_u32 {t2}, {t2}, {H2}")
    a(f"s_lshl_b32 s66, {t3}, 9")
    a(f"s_add_u32 s66, s66, {H3O}")
    a(f"s_lshl_b32 s67, {t3}, 6")
    a(f"s_add_u32 s67, s67, {H3ML}")
    a(f"s_add_u32 {t3}, {t2}, 65536")
    if cfg.pre & 1:
        mask_n8()
        a(f"buffer_load_dwordx4 {vr(F0, 4)}, {vOA}, {WS}, s66 offen{PRE}")
        a("s_mov_b64 exec, 0xff")
        a(f"buffer_load_dwordx2 {vr(F0 + 4, 2)}, {vMLA}, {WS}, s67 offen{PRE}")
        a("s_mov_b64 exec, -1")

    def k_reads():
        for s_ in range(4):
            a(f"ds_read_b128 {vr(KF + 4 * s_, 4)}, {v(T[19 + s_]) if s_ else vKA}")

    def v_reads():
        for s_ in range(4):
            for u in range(2):
                a(f"ds_read_b64_tr_b16 {vr(VF + 4 * s_ + 2 * u, 2)}, {vVA} offset:{8192 * s_ + 1024 * u}")
    for s_ in range(1, 4):
        a(f"v_xor_b32 {v(T[19 + s_])}, {64 * s_}, {vKA}")
    if not cfg.g2:
        vm_wait()
        stamp(3)
        a("s_barrier")
        k_reads()
        v_reads()
    for d in range(4):
        a(f"v_mov_b32 {v(A0 + d)}, 0x3f803f80")
    a(f"s_mov_b32 {t1}, {LOG2E}")
    gate(F_H2)
    stamp(4)

    def h2_loads():
        a(f"buffer_load_dwordx4 {vr(T[0], 4)}, {vH2}, {WS}, {t2} offen sc1")
        a(f"buffer_load_dwordx4 {vr(T[4], 4)}, {vH2}, {WS}, {t2} offen offset:256 sc1")
        a(f"buffer_load_dwordx4 {vr(T[8], 4)}, {vH2}, {WS}, {t3} offen sc1")
        a(f"buffer_load_dwordx4 {vr(T[12], 4)}, {vH2}, {WS}, {t3} offen offset:256 sc1")

    def h2_checks():
        clean(g4([T[0], T[4], T[8], T[12]]))
        a(f"v_and_b32 {vBAD}, 0xff, {vBAD}")
    poll("h2", h2_loads, h2_checks, after=k_reads if cfg.g2 else None)
    stamp(5)
    for d in range(8):
        a(f"v_add_f32 {v(T[d])}, {v(T[d])}, {v(T[8 + d])}")
    swapred2(T[0], T[4])
    a(f"v_cvt_pk_bf16_f32 {v(T[0])}, {v(T[0])}, {v(T[4])}")
    a(f"ds_write_b16 {vQW}, {v(T[0])}")
    a(f"ds_write_b16_d16_hi {vQW}, {v(T[0])} offset:128")
    barrier()
    for s_ in range(4):
        a(f"ds_read_b128 {vr(QF + 4 * s_, 4)}, {vQA} offset:{64 * s_}")
    if cfg.g2:
        v_reads()
    if cfg.scw:
        not_w0(lambda: tGU.issue(cfg.p3a), lambda: tSC.issue(cfg.p3a))
    else:
        tSC.issue(cfg.p3a)
        if cfg.p3a > 4:
            not_w0(lambda: tGU.issue(cfg.p3a - 4))
    for s_ in range(4):
        a(f"s_waitcnt lgkmcnt({(11 if cfg.g2 else 3) - s_})")
        c = "0" if s_ == 0 else vr(D0, 4)
        a(f"v_mfma_f32_16x16x32_bf16 {vr(D0, 4)}, {vr(KF + 4 * s_, 4)}, {vr(QF + 4 * s_, 4)}, {c}")
    a(f"v_cvt_pk_bf16_f32 {v(T[0])}, {v(D0)}, {v(D0 + 1)}")
    a(f"v_cvt_pk_bf16_f32 {v(T[2])}, {v(D0 + 2)}, {v(D0 + 3)}")
    for p in (0, 2):
        a(f"v_and_b32 {v(T[p + 1])}, 0xffff0000, {v(T[p])}")
        a(f"v_lshlrev_b32 {v(T[p])}, 16, {v(T[p])}")
    for r in range(4):
        a(f"v_mul_f32 {v(T[r])}, {SCALE}, {v(T[r])}")
    a(f"v_cvt_pk_bf16_f32 {v(T[0])}, {v(T[0])}, {v(T[1])}")
    a(f"v_cvt_pk_bf16_f32 {v(T[2])}, {v(T[2])}, {v(T[3])}")
    for p in (0, 2):
        a(f"v_and_b32 {v(T[p + 1])}, 0xffff0000, {v(T[p])}")
        a(f"v_lshlrev_b32 {v(T[p])}, 16, {v(T[p])}")
    a(f"v_max3_f32 {v(T[4])}, {v(T[0])}, {v(T[1])}, {v(T[2])}")
    a(f"v_max_f32 {v(T[4])}, {v(T[4])}, {v(T[3])}")
    rowsum(v(T[4]), v(T[5]), "max")
    a("s_mov_b64 exec, 0xff")
    a(f"ds_write_b32 {vWMw}, {v(T[4])}")
    a("s_mov_b64 exec, -1")
    barrier()
    a(f"ds_read_b128 {vr(T[12], 4)}, {vWMr}")
    a(f"ds_read_b128 {vr(T[16], 4)}, {vWMr} offset:16")
    if cfg.early & 4:
        signal_w(F_H3)
    a("s_waitcnt lgkmcnt(0)")
    a(f"v_max3_f32 {v(T[4])}, {v(T[12])}, {v(T[13])}, {v(T[14])}")
    a(f"v_max3_f32 {v(T[5])}, {v(T[15])}, {v(T[16])}, {v(T[17])}")
    a(f"v_max3_f32 {v(T[4])}, {v(T[4])}, {v(T[18])}, {v(T[19])}")
    a(f"v_max_f32 {v(T[4])}, {v(T[4])}, {v(T[5])}")
    for r in range(4):
        a(f"v_sub_f32 {v(T[r])}, {v(T[r])}, {v(T[4])}")
    for r in range(4):
        a(f"v_mul_f32 {v(T[r])}, {t1}, {v(T[r])}")
    for r in range(4):
        a(f"v_exp_f32 {v(T[r])}, {v(T[r])}")
    a(f"v_cvt_pk_bf16_f32 {v(T[6])}, {v(T[0])}, {v(T[1])}")
    a(f"v_cvt_pk_bf16_f32 {v(T[7])}, {v(T[2])}, {v(T[3])}")
    mask_n8()
    a(f"ds_write_b64 {vPW}, {vr(T[6], 2)}")
    a("s_mov_b64 exec, -1")
    a(f"v_mul_f32 {v(T[4])}, {t1}, {v(T[4])}")
    a(f"s_mov_b32 {t2}, 0x07060503")
    a(f"s_mov_b32 {t3}, 0x07060502")
    a(f"s_mov_b32 {t4}, 0x07060501")
    barrier()
    for s_ in range(4):
        a(f"ds_read_b128 {vr(QF + 4 * s_, 4)}, {vQA} offset:{L_PS - L_QS + 64 * s_}")
    if cfg.early & 2:
        signal_w(F_H3)
    for s_ in range(4):
        a(f"s_waitcnt lgkmcnt({3 - s_})")
        c = "0" if s_ == 0 else vr(D1, 4)
        a(f"v_mfma_f32_16x16x32_bf16 {vr(D1, 4)}, {vr(A0, 4)}, {vr(QF + 4 * s_, 4)}, {c}")
        c = "0" if s_ == 0 else vr(D0, 4)
        a(f"v_mfma_f32_16x16x32_bf16 {vr(D0, 4)}, {vr(VF + 4 * s_, 4)}, {vr(QF + 4 * s_, 4)}, {c}")
    a(f"v_log_f32 {v(T[5])}, {v(D1)}")
    a(f"v_rcp_f32 {v(T[6])}, {v(D1)}")
    a(f"v_add_f32 {v(T[4])}, {v(T[4])}, {v(T[5])}")
    for d in range(4):
        a(f"v_mul_f32 {v(D0 + d)}, {v(D0 + d)}, {v(T[6])}")
    a(f"v_add_u32 {v(T[4])}, 0x80, {v(T[4])}")
    a(f"v_bfi_b32 {v(D0)}, {vFF}, {vTL}, {v(D0)}")
    for d, sel in ((1, t2), (2, t3), (3, t4)):
        a(f"v_perm_b32 {v(D0 + d)}, {v(D0 + d)}, {v(T[4])}, {sel}")
    mask_n8()
    a(f"buffer_store_dwordx4 {vr(D0, 4)}, {vOA}, {WS}, s66 offen sc1")
    a("s_mov_b64 exec, -1")
    if not cfg.early & 6:
        signal_w(F_H3, 0)
    a("s_barrier")
    stamp(6)
    a.c("======== P: sb/cb tile, gate/up tile, w_down tile")
    if not cfg.scw:
        tSC.issue(cap=cfg.capP3)

        def gu1():
            tGU.issue(cfg.p3b, cap=cfg.capP3)
            vm_wait("sc")
        not_w0(gu1, lambda: a("s_waitcnt vmcnt(0)"))
        gemv_regs(D0, W0 + 16, vXA)
        red_write_A(D0, L_RED1)
        barrier()
        a(f"s_add_u32 {t4}, {sMODK}, {3072 * 4}")
        finalize_A(L_RED1, t4, w0=2)
        if cfg.scb:
            a("s_barrier")
    stamp(13)

    def gu2():
        tGU.issue(cfg.capN, cap=cfg.capP3)
        tGU.issue(cap=cfg.capP4)
        stamp(12)
        vm_wait()
        stamp(11)

    def sc0():
        if cfg.scw:
            tSC.issue()
            a(f"v_lshlrev_b32 {v(T[0])}, 5, {vN}")
            a(f"v_lshl_add_u32 {v(T[0])}, {vG}, 4, {v(T[0])}")
            a(f"s_add_u32 {t4}, {sMODK}, {3072 * 4}")
            a("s_waitcnt vmcnt(16)")
            a(f"v_mov_b32 {vX}, {vSH}")
            gemv_bcast(D0, W0, 16)
            a("s_waitcnt vmcnt(0)")
            a(f"v_mov_b32 {vX}, {vSC}")
            gemv_bcast(D1, W0 + 64, 16)
            for d in range(4):
                a(f"v_add_f32 {v(D0 + d)}, {v(D0 + d)}, {v(D1 + d)}")
            for d in range(4):
                a(f"v_bfi_b32 {v(D0 + d)}, {vFF}, {sT[d]}, {v(D0 + d)}")
            a("s_mov_b32 exec_hi, 0")
            a(f"buffer_store_dwordx4 {vr(D0, 4)}, {v(T[0])}, {WS}, {t4} offen sc1")
            a("s_mov_b32 exec_hi, -1")
            stamp(13)
        stage6_input()
    not_w0(gu2, sc0)
    barrier()
    stamp(8)
    a(f"ds_read_b32 {vX}, {vSTA}")
    if cfg.gbe:
        tGB.issue()
    a("s_waitcnt lgkmcnt(0)")

    def s6():
        gemv_bcast(D0, W1, 16, dual=bool(cfg.dual))
        for d in range(4):
            a(f"v_bfi_b32 {v(D0 + d)}, {vFF}, {sT[d]}, {v(D0 + d)}")
        store2([("buffer_store_dwordx4", vr(D0, 4), vA4, sO6, 0, 0xffffffff)], defer=bool(cfg.fdef and not cfg.gbq))
    not_w0(s6)
    if cfg.stamps:
        a("s_barrier")
    stamp(10)
    if not cfg.gbq:
        tGB.issue()
        a(f"s_lshl_b32 {t4}, {pMC}, 8")
        a(f"s_sub_u32 {t4}, 20480, {t4}")
        vm_wait("gb")
        gemv_regs(D1, W3, vXB)
        red_write_B(D1, L_RED0 + 4096)

        def far6():
            a(f"s_add_u32 {tG}, {sO6}, {GOFF}")
            a("s_mov_b32 exec_hi, 0")
            a(f"buffer_store_dwordx4 {vr(D0, 4)}, {vA4}, {WS}, {tG} offen sc1")
            a("s_mov_b32 exec_hi, -1")
        barrier()
        finalize_B(0, L_RED0 + 4096, t4)
        if cfg.fdef:
            not_w0(far6)
    stamp(14)
    a("s_branch L_fin")

    a.label("L_Q_pre")
    a(f"s_lshl_b32 s66, {sKS}, 7")
    a(f"s_and_b32 {t1}, {sW}, 3")
    a(f"s_lshl_b32 {t1}, {t1}, 5")
    a(f"s_add_u32 s66, s66, {t1}")
    a(f"s_lshl_b32 {t1}, {sCS}, 9")
    a(f"s_lshr_b32 {t0}, {sW}, 2")
    a(f"s_lshl_b32 {t0}, {t0}, 8")
    a(f"s_add_u32 {t1}, {t1}, {t0}")
    a(f"s_lshl_b32 {t0}, s66, 13")
    a(f"s_add_u32 {t0}, {t0}, {t1}")
    tWQ = Tile("wq", SA, W0, 8, vA1, 4 * 8192)
    tWQ.addr(t0, 8192)
    a("s_mov_b32 s42, 8388608")
    a("s_mov_b32 s43, 0x00020000")
    a("s_waitcnt lgkmcnt(0)")
    a(f"s_mov_b32 s40, s{P_WQ}")
    a(f"s_mov_b32 s41, s{P_WQ + 1}")
    a(f"s_mov_b32 s44, s{P_X}")
    a(f"s_mov_b32 s45, s{P_X + 1}")
    VM.q = []
    a(f"buffer_load_dwordx4 {vr(T[12], 4)}, {v(T[8])}, {SB}, 0 offen")
    a(f"buffer_load_dwordx4 {vr(T[16], 4)}, {v(T[8])}, {SB}, 0 offen offset:16")
    a(f"s_lshl_b32 {t1}, s66, 1")
    a(f"buffer_load_ushort {v(T[20])}, {v(T[9])}, {SB}, {t1} offen")
    a(f"s_and_b32 {t1}, {sW}, 1")
    a(f"s_lshl_b32 {qR}, {sCS}, 1")
    a(f"s_add_u32 {qR}, {qR}, {t1}")
    a(f"s_lshl_b32 {t1}, {qR}, 6")
    a(f"buffer_load_ushort {vXR}, {v(T[9])}, {SB}, {t1} offen")
    a(f"s_mov_b32 s44, s{P_C}")
    a(f"s_mov_b32 s45, s{P_C + 1}")
    a(f"buffer_load_dword {v(T[4])}, {v(T[2])}, {SB}, {t2} offen")
    vm_add("c")
    if cfg.qbar:
        a("s_barrier")
    tWQ.issue(cfg.qA)
    a(f"s_mov_b32 s4, s{P_WM}")
    a(f"s_mov_b32 s5, s{P_WM + 1}")
    VMQ = list(VM.q)
    common()
    a.c("======== Q: layernorm of x, silu(c)")
    VM.q = VMQ
    vm_wait("c")
    stamp(1)
    tWQ.issue()
    silu_c(False)
    XU = W3
    for i in range(8):
        a(f"v_lshlrev_b32 {v(XU + 2 * i)}, 16, {v(T[12 + i])}")
        a(f"v_and_b32 {v(XU + 2 * i + 1)}, 0xffff0000, {v(T[12 + i])}")
    a(f"v_lshlrev_b32 {v(T[20])}, 16, {v(T[20])}")
    a(f"v_add_f32 {v(T[0])}, {v(XU)}, {v(XU + 1)}")
    for i in range(2, 16):
        a(f"v_add_f32 {v(T[0])}, {v(T[0])}, {v(XU + i)}")
    allsum(v(T[0]), v(T[1]))
    a(f"v_mul_f32 {v(T[0])}, 0x3a800000, {v(T[0])}")
    a(f"v_mov_b32 {v(T[2])}, 0")
    for i in range(16):
        a(f"v_sub_f32 {v(XU + i)}, {v(XU + i)}, {v(T[0])}")
        a(f"v_fmac_f32 {v(T[2])}, {v(XU + i)}, {v(XU + i)}")
    allsum(v(T[2]), v(T[1]))
    a(f"v_mul_f32 {v(T[2])}, 0x3a800000, {v(T[2])}")
    ln_finish(v(T[20]), v(T[0]), v(T[2]), v(T[1]))
    a.c("======== Q: S2")
    tGA = tileB("ga", W3, vA3, 4096, sCS)
    tGQ = tileB("gb", W3 + 8, v(vKV[0]), 10240, sCS)
    srd(SB, P_WD, 7340032)
    a(f"s_and_b32 {t0}, {sCS}, 1")
    a(f"s_mul_i32 {t2}, {t0}, 224")
    a(f"s_mul_i32 {t1}, {sW}, 28")
    a(f"s_add_u32 {t2}, {t2}, {t1}")
    a(f"s_mul_i32 {t1}, {sKS}, 448")
    a(f"s_add_u32 {t4}, {t2}, {t1}")
    a(f"s_lshl_b32 {t4}, {t4}, 11")
    a(f"s_lshr_b32 {t3}, {sCS}, 1")
    a(f"s_lshl_b32 {t1}, {t3}, 8")
    a(f"s_add_u32 {t4}, {t4}, {t1}")
    tWD = Tile("wd", SB, W2, 7, vA4, 4 * 2048)
    tWD.addr(t4, 2048)
    a(f"s_lshl_b32 {pH5}, {t2}, 2")
    a(f"s_mul_i32 {t1}, {sKS}, 57344")
    a(f"s_add_u32 {pH5}, {pH5}, {t1}")
    a(f"s_add_u32 {pH5}, {pH5}, {H5}")
    a(f"s_add_u32 {pH5}, {pH5}, {sLG}")
    a(f"s_lshl_b32 {pH6}, {sKS}, 1")
    a(f"s_add_u32 {pH6}, {pH6}, {t0}")
    a(f"s_lshl_b32 {pH6}, {pH6}, 12")
    a(f"s_lshl_b32 {t1}, {t3}, 9")
    a(f"s_add_u32 {pH6}, {pH6}, {t1}")
    a(f"s_add_u32 {pH6}, {pH6}, {H6}")
    a(f"s_lshl_b32 {qXR}, {sKS}, 13")
    a(f"s_lshl_b32 {t3}, {qR}, 8")
    a(f"s_add_u32 {qXR}, {qXR}, {t3}")
    a(f"s_add_u32 {qXR}, {qXR}, {XR}")
    xr_items = [("buffer_store_dword", v(T[1]), vQE4, qXR, 0, M_N8),
                ("buffer_store_dwordx4", vr(T[20], 4), vL4, qXR, 128, 1)]
    a(f"s_lshl_b32 {t0}, s66, 2")
    a(f"s_add_u32 {t0}, {t0}, {MODN}")
    a(f"s_add_u32 {t0}, {t0}, {sLG}")
    a(f"s_add_u32 {t1}, {t0}, {4 * 24576}")
    a(f"s_lshl_b32 {t4}, {sKS}, 14")
    a(f"s_lshl_b32 {t3}, {sCS}, 10")
    a(f"s_add_u32 {t4}, {t4}, {t3}")
    a(f"s_lshl_b32 {t3}, {sW}, 8")
    a(f"s_add_u32 {t4}, {t4}, {t3}")
    a(f"s_add_u32 {t4}, {t4}, {H2}")
    a(f"s_lshl_b32 {t3}, {sW2}, 11")
    a(f"v_add_u32 {v(T[34])}, {t3}, {vFA}")
    if cfg.pre & 2:
        a(f"buffer_load_dword {v(F0)}, {vL4}, {WS}, {t4} offen{PRE}")
    if cfg.pre & 8:
        a(f"s_add_u32 {t3}, {pH6}, {sFA}")
        a(f"buffer_load_dword {v(F0 + 1)}, {vL4}, {WS}, {t3} offen{PRE}")
    srd(SA, P_WO, 8388608)
    a(f"s_and_b32 s66, {sGI}, 31")
    a(f"s_lshr_b32 s67, {sGI}, 5")
    a(f"s_lshr_b32 {t3}, s66, 3")
    a(f"s_lshl_b32 {t2}, {t3}, 10")
    a(f"s_and_b32 {t3}, s66, 7")
    a(f"s_lshl_b32 {t3}, {t3}, 4")
    a(f"s_add_u32 {t2}, {t2}, {t3}")
    a(f"s_and_b32 {t3}, {sW}, 3")
    a(f"s_lshl_b32 {t3}, {t3}, 2")
    a(f"s_add_u32 {t2}, {t2}, {t3}")
    a(f"s_lshl_b32 {t2}, {t2}, 11")
    a(f"s_lshl_b32 {t3}, s67, 9")
    a(f"s_add_u32 {t2}, {t2}, {t3}")
    a(f"s_lshr_b32 {t3}, {sW}, 2")
    a(f"s_lshl_b32 {t3}, {t3}, 8")
    a(f"s_add_u32 {t2}, {t2}, {t3}")
    tWO = Tile("wo", SA, W1, 8, vA2, 128 * 2048)
    tWO.addr(t2, 2048)
    vm_wait()
    stamp(3)
    poll("h1", pair_loads, pair_checks, back=cfg.lback)
    stamp(4)
    tWO.issue(cfg.q2a)
    pair_sum()
    mod_prep()
    modulate()
    if cfg.early & 1:
        signal_w(F_H2)
    gemv_bcast(D0, W0, 8)
    red_write_A(D0, L_RED1)
    barrier()
    sk = a.newlabel("f2")
    a(f"s_cmp_lt_u32 {sW}, 4")
    a(f"s_cbranch_scc0 {sk}")
    finalize(v(T[34]), [32, 34, 36, 38], t4)
    if not cfg.early & 1:
        a(f"s_cmp_eq_u32 {sW}, 0")
        a(f"s_cbranch_scc0 {sk}")
        signal_partner(F_H2)
    a.label(sk)
    a("s_barrier")
    stamp(5)
    a.c("======== Q: wo tile + gb tile")
    tGA.issue(cap=cfg.capQ2)
    tWO.issue(cap=cfg.capQ2)
    tWD.issue(cfg.q7a, cap=cfg.capQ2)
    a(f"s_and_b32 {t1}, {sW}, 3")
    a(f"s_lshl_b32 {t1}, {t1}, 8")
    a(f"s_add_u32 {t1}, {t1}, {L_XL}")
    a(f"v_add_u32 {v(T[33])}, {t1}, {vL4}")
    va, vb = v(T[31]), v(T[32])
    a(f"v_lshrrev_b32 {v(T[28])}, 3, {vL}")
    a(f"v_and_b32 {v(T[29])}, 7, {vL}")
    a(f"v_lshlrev_b32 {va}, 11, {v(T[28])}")
    a(f"v_lshl_add_u32 {va}, {v(T[29])}, 4, {va}")
    a(f"s_lshl_b32 {t2}, s66, 14")
    a(f"s_lshl_b32 {t1}, {sW}, 7")
    a(f"s_add_u32 {t2}, {t2}, {t1}")
    a(f"s_add_u32 {t2}, {t2}, {H3O}")
    a(f"s_lshl_b32 s59, s66, 12")
    a(f"s_lshl_b32 {t1}, s67, 10")
    a(f"s_add_u32 s59, s59, {t1}")
    a(f"s_lshl_b32 {t1}, {sW}, 8")
    a(f"s_add_u32 s59, s59, {t1}")
    a(f"s_add_u32 s59, s59, {H4}")
    if cfg.pre & 4:
        a(f"buffer_load_dword {v(T[35])}, {vL4}, {WS}, s59 offen{PRE}")
    vm_wait("ga")
    gemv_regs(D0, W3, vXB)
    red_write_B(D0, L_RED0 + 4096)
    barrier()
    a(f"s_lshl_b32 {t4}, {sCS}, 8")
    a(f"s_add_u32 {t4}, {t4}, 8192")
    finalize_B(4, L_RED0 + 4096, t4)
    a(f"s_mov_b32 {t1}, 0x04000c0c")
    a(f"s_mov_b32 {t3}, 0x0706000c")
    if not cfg.g3:
        vm_wait()
    stamp(6)
    gate(F_H3)
    stamp(11)
    a(f"s_cmp_lt_u32 {sW}, 4")
    a("s_cbranch_scc0 L_s4_wait")

    def h3_loads():
        for i in range(4):
            a(f"buffer_load_dwordx4 {vr(T[4 * i], 4)}, {va}, {WS}, {t2} offen offset:{512 * i} sc1")

    def h3_checks():
        clean([(T[4 * i], vTL) for i in range(4)])
        a(f"v_and_b32 {vBAD}, 0xff, {vBAD}")
    poll("h3", h3_loads, h3_checks)
    stamp(12)
    for i in range(4):
        a(f"v_perm_b32 {v(T[16 + i])}, {v(T[4 * i + 1])}, {v(T[4 * i + 2])}, {t1}")
    for i in range(4):
        a(f"v_perm_b32 {v(T[16 + i])}, {v(T[16 + i])}, {v(T[4 * i + 3])}, {t3}")
    a(f"v_max3_f32 {v(T[24])}, {v(T[16])}, {v(T[17])}, {v(T[18])}")
    a(f"v_max_f32 {v(T[24])}, {v(T[24])}, {v(T[19])}")
    a(f"v_max_f32_dpp {v(T[24])}, {v(T[24])}, {v(T[24])} row_ror:8{DPP}")
    rowsum(v(T[24]), v(T[25]), "max")
    for i in range(4):
        a(f"v_sub_f32 {v(T[16 + i])}, {v(T[16 + i])}, {v(T[24])}")
    for i in range(4):
        a(f"v_exp_f32 {v(T[16 + i])}, {v(T[16 + i])}")
    a(f"v_add_f32 {v(T[24])}, {v(T[16])}, {v(T[17])}")
    a(f"v_add_f32 {v(T[25])}, {v(T[18])}, {v(T[19])}")
    for d in range(4):
        a(f"v_mul_f32 {v(T[d])}, {v(T[16])}, {v(T[d])}")
    a(f"v_add_f32 {v(T[24])}, {v(T[24])}, {v(T[25])}")
    for d in range(4):
        a(f"v_fmac_f32 {v(T[d])}, {v(T[17])}, {v(T[4 + d])}")
    a(f"v_add_f32_dpp {v(T[24])}, {v(T[24])}, {v(T[24])} row_ror:8{DPP}")
    for i in range(2, 4):
        for d in range(4):
            a(f"v_fmac_f32 {v(T[d])}, {v(T[16 + i])}, {v(T[4 * i + d])}")
    rowsum(v(T[24]), v(T[25]), "add")
    a(f"v_rcp_f32 {v(T[24])}, {v(T[24])}")
    col32_reduce(T[0])
    a(f"v_mul_f32 {v(T[0])}, {v(T[0])}, {v(T[24])}")
    a(f"v_cvt_pk_bf16_f32 {vX}, {v(T[0])}, {v(T[0])}")
    a(f"ds_write_b32 {v(T[33])}, {vX}")
    a.label("L_s4_wait")
    a("s_waitcnt vmcnt(0)")
    barrier()
    a(f"ds_read_b32 {vX}, {v(T[33])}")
    if cfg.gbq == 2:
        tGQ.issue()
    tWD.issue(cfg.q7b)
    a("s_waitcnt lgkmcnt(0)")
    gemv_bcast(D0, W1, 8)
    red_write_A(D0, L_RED0)
    barrier()
    sk = a.newlabel("f4")
    a(f"s_cmp_lt_u32 {sW}, 4")
    a(f"s_cbranch_scc0 {sk}")
    finalize(v(T[34]), [0, 2, 4, 6], "s59")
    a.label(sk)
    stamp(13)
    if cfg.q7c > tWD.next:
        a("s_barrier")
        tWD.issue(cfg.q7c)
    a.c("======== Q: x1 slices (waves 0, 1)")
    a(f"s_cmp_lt_u32 {sW}, 4")
    a("s_cbranch_scc0 L_s5_done")
    a(f"s_cmp_lt_u32 {sW}, 2")
    a("s_cbranch_scc1 L_s5_x1")
    a(f"s_lshl_b32 {t5}, {qR}, 7")
    a(f"s_add_u32 s68, {t5}, {MODP + 3072 * 4}")
    a(f"s_add_u32 s69, s68, {4 * 24576}")

    def md_loads():
        a(f"buffer_load_dwordx4 {vr(T[0], 4)}, {vMP}, {WS}, s68 offen sc1")
        a(f"buffer_load_dwordx4 {vr(T[4], 4)}, {vMP}, {WS}, s69 offen sc1")
    poll("md", md_loads, pair_checks, back=cfg.mdb)
    pair_sum()
    mod_prep()
    a(f"v_or_b32 {vSH}, {vTE}, {vSH}")
    a(f"v_or_b32 {vSC}, {vTE}, {vSC}")
    a(f"s_add_u32 {t5}, {qXR}, {MD - XR}")
    md_items = [("buffer_store_dword", vSH, vQE4, t5, 0, M_N8), ("buffer_store_dword", vSC, vQE4, t5, 128, M_N8)]
    store2(md_items)
    stamp(3)

    a("s_branch L_s5_done")
    a.label("L_s5_x1")
    va = v(T[24])
    a(f"v_lshrrev_b32 {v(T[27])}, 3, {vL}")
    a(f"v_and_b32 {v(T[28])}, 7, {vL}")
    a(f"v_lshlrev_b32 {v(T[28])}, 4, {v(T[28])}")
    a(f"v_lshl_add_u32 {va}, {v(T[27])}, 12, {v(T[28])}")
    a(f"s_lshl_b32 {t5}, {qR}, 7")
    a(f"s_add_u32 {t0}, {t5}, {H4}")
    a(f"s_add_u32 {t1}, {t0}, 32768")
    a(f"s_add_u32 {t2}, {t0}, 65536")
    a(f"s_add_u32 {t3}, {t0}, 98304")
    a(f"s_add_u32 {t4}, {t5}, {MODP + 2048 * 4}")
    a(f"v_lshlrev_b32 {vXR}, 16, {vXR}")
    a(f"v_mov_b32 {v(T[21])}, {sT32}")
    a(f"v_mov_b32 {v(T[23])}, {sT32}")
    if cfg.h4w:
        a("s_waitcnt vmcnt(0)")
    stamp(3)

    def h4_loads():
        for i, s_ in enumerate((t0, t1, t2, t3)):
            a(f"buffer_load_dwordx4 {vr(T[4 * i], 4)}, {va}, {WS}, {s_} offen sc1")
        a(f"buffer_load_dwordx4 {vr(T[16], 4)}, {vOB}, {WS}, {t4} offen sc1")

    def h4_checks():
        clean(g4([T[0], T[4], T[8], T[12], T[16]]))
        a(f"v_and_b32 {vBAD}, 0xff, {vBAD}")
    poll("h4", h4_loads, h4_checks)
    stamp(8)
    for d in range(4):
        a(f"v_add_f32 {v(T[d])}, {v(T[d])}, {v(T[4 + d])}")
        a(f"v_add_f32 {v(T[8 + d])}, {v(T[8 + d])}, {v(T[12 + d])}")
    for d in range(4):
        a(f"v_add_f32 {v(T[d])}, {v(T[d])}, {v(T[8 + d])}")
    swapred2(T[0], T[16])
    a(f"v_add_f32_dpp {v(T[0])}, {v(T[0])}, {v(T[0])} row_ror:8{DPP}")
    a(f"v_add_f32_dpp {v(T[16])}, {v(T[16])}, {v(T[16])} row_ror:8{DPP}")
    rnd(v(T[0]), v(T[0]))
    rnd(v(T[16]), v(T[16]))
    a(f"v_mul_f32 {v(T[0])}, {v(T[0])}, {v(T[16])}")
    rnd(v(T[0]), v(T[0]))
    a(f"v_add_f32 {v(T[0])}, {v(T[0])}, {vXR}")
    rnd(v(T[0]), v(T[0]))
    a(f"v_or_b32 {v(T[1])}, {vTE}, {v(T[0])}")
    a(f"v_mov_b32 {v(T[20])}, {v(T[0])}")
    a(f"v_mul_f32 {v(T[22])}, {v(T[0])}, {v(T[0])}")
    allsum2(v(T[20]), v(T[22]), v(T[2]), v(T[3]))
    store2(xr_items)
    stamp(9)
    a.label("L_s5_done")
    a("s_barrier")
    a.c("======== Q: w_down tile")
    VM.q = ["gb"]
    if cfg.gbq:
        tGQ.issue()
    tWD.issue(cap=cfg.capQ7)
    if cfg.gbq:
        a(f"s_lshl_b32 {t4}, {sCS}, 8")
        a(f"s_add_u32 {t4}, {t4}, 20480")
        vm_wait("gb")
        gemv_regs(D0, W3 + 8, vXB)
        red_write_B(D0, L_RED0 + 4096)
        barrier()
        finalize_B(4, L_RED0 + 4096, t4)
    va = v(T[24])
    a(f"v_mul_u32_u24 {va}, 3584, {vG}")
    a(f"v_bfe_u32 {v(T[25])}, {vL}, 3, 1")
    a(f"v_mul_u32_u24 {v(T[25])}, 1792, {v(T[25])}")
    a(f"v_add_u32 {va}, {va}, {v(T[25])}")
    a(f"v_and_b32 {v(T[25])}, 7, {vL}")
    a(f"v_min_u32 {v(T[25])}, 6, {v(T[25])}")
    a(f"v_lshl_add_u32 {va}, {v(T[25])}, 4, {va}")
    for u in range(1, 4):
        a(f"s_add_u32 {[t0, t1, t2][u - 1]}, {pH5}, {14336 * u}")
    vm_wait()
    stamp(7)

    def h5_loads():
        for u, so in enumerate((pH5, t0, t1, t2)):
            a(f"buffer_load_dwordx4 {vr(T[4 * u], 4)}, {va}, {WS}, {so} offen sc1")
    poll("h5", h5_loads, h2_checks, back=cfg.lback)
    stamp(10)
    for d in range(8):
        a(f"v_add_f32 {v(T[d])}, {v(T[d])}, {v(T[8 + d])}")
    for d in range(4):
        a(f"v_add_f32 {v(T[d])}, {v(T[d])}, {v(T[4 + d])}")
    swapred(T[0])
    rnd(v(T[0]), v(T[0]))
    silu(v(T[2]), v(T[0]), v(T[3]))
    rnd(v(T[2]), v(T[2]))
    a(f"v_mul_f32_dpp {v(T[2])}, {v(T[0])}, {v(T[2])} row_ror:8{DPP}")
    a(f"v_cvt_pk_bf16_f32 {vX}, {v(T[2])}, {v(T[2])}")
    gemv_bcast(D0, W2, 7)
    red_write_A(D0, L_RED1)
    barrier()
    finalize_A(L_RED1, pH6)
    stamp(2)
    a.c("======== Q: final reduction on gi < 32, wave 0")
    a(f"s_cmp_lt_u32 {sGI}, 32")
    a("s_cbranch_scc0 L_fin")
    a(f"s_cmp_eq_u32 {sW}, 0")
    a("s_cbranch_scc0 L_fin")
    va = v(T[24])
    a(f"v_lshrrev_b32 {v(T[27])}, 3, {vL}")
    a(f"v_and_b32 {v(T[28])}, 7, {vL}")
    a(f"v_lshlrev_b32 {v(T[28])}, 4, {v(T[28])}")
    a(f"v_lshl_add_u32 {va}, {v(T[27])}, 12, {v(T[28])}")
    a(f"s_lshl_b32 {t3}, {sGI}, 7")
    a(f"s_add_u32 {t0}, {t3}, {H6}")
    a(f"s_add_u32 {t1}, {t0}, 32768")
    a(f"s_add_u32 {t2}, {t3}, {MODP + 5120 * 4}")
    a(f"s_lshl_b32 {t3}, {sGI}, 8")
    a(f"s_lshl_b32 {t4}, {sKS}, 13")
    a(f"s_add_u32 {t3}, {t3}, {t4}")
    a(f"s_add_u32 {t3}, {t3}, {XR}")
    a(f"s_add_u32 {t3}, {t3}, {sLG}")
    srd(SA, P_OUT, 2048)
    a(f"v_lshrrev_b32 {v(T[26])}, 1, {vQE4}")
    a(f"s_lshl_b32 {t4}, {sGI}, 6")
    if not cfg.early & 64:
        a("s_waitcnt vmcnt(0)")

    def h6_loads():
        a(f"buffer_load_dwordx4 {vr(T[0], 4)}, {va}, {WS}, {t0} offen sc1")
        a(f"buffer_load_dwordx4 {vr(T[4], 4)}, {va}, {WS}, {t1} offen sc1")
        a(f"buffer_load_dwordx4 {vr(T[8], 4)}, {vOB}, {WS}, {t2} offen sc1")
        a(f"buffer_load_dword {v(T[12])}, {vQE4}, {WS}, {t3} offen sc1")

    def h6_checks():
        clean(g4([T[0], T[4], T[8]]) + [(T[12], vTE)])
        a(f"v_and_b32 {vBAD}, 0xff, {vBAD}")
    poll("h6", h6_loads, h6_checks)
    for d in range(4):
        a(f"v_add_f32 {v(T[d])}, {v(T[d])}, {v(T[4 + d])}")
    swapred2(T[0], T[8])
    a(f"v_add_f32_dpp {v(T[0])}, {v(T[0])}, {v(T[0])} row_ror:8{DPP}")
    a(f"v_add_f32_dpp {v(T[8])}, {v(T[8])}, {v(T[8])} row_ror:8{DPP}")
    rnd(v(T[0]), v(T[0]))
    rnd(v(T[8]), v(T[8]))
    a(f"v_mul_f32 {v(T[0])}, {v(T[0])}, {v(T[8])}")
    rnd(v(T[0]), v(T[0]))
    a(f"v_add_f32 {v(T[0])}, {v(T[0])}, {v(T[12])}")
    a(f"v_cvt_pk_bf16_f32 {v(T[0])}, {v(T[0])}, {v(T[0])}")
    mask_n8()
    a(f"buffer_store_short {v(T[0])}, {v(T[26])}, {SA}, {t4} offen")
    a("s_mov_b64 exec, -1")
    stamp(14)
    a(f"s_cmp_eq_u32 {sGI}, 0")
    a("s_cbranch_scc0 L_fin")
    a("s_mov_b64 exec, 1")
    a(f"buffer_store_dword {vT32}, {vL4}, {WS}, 0 offen offset:{EPOCH}")
    a("s_mov_b64 exec, -1")
    if cfg.amp:
        a("s_memrealtime s[60:61]")
        a("s_waitcnt lgkmcnt(0)")
        a("s_sub_u32 s62, s98, s100")
        a(f"s_mul_i32 s62, s62, {cfg.amp}")
        a.label("L_amp")
        a("s_memrealtime s[64:65]")
        a("s_waitcnt lgkmcnt(0)")
        a("s_sub_u32 s63, s64, s60")
        a("s_cmp_lt_u32 s63, s62")
        a("s_cbranch_scc1 L_amp")
    a.label("L_fin")
    write_stamps()
    a.label("L_end")
    a("s_endpgm")

    hdr = open("cdna_kernels/" + NAME + ".s.ref").read().split("; @launch")[0]
    out = hdr
    out += f"; @launch grid=(256,1,1) block=(512,1,1) lds={LDS_BYTES}\n"
    out += '.amdgcn_target "amdgcn-amd-amdhsa--gfx950"\n.text\n'
    out += f".globl {NAME}_kernel\n.p2align 8\n.type {NAME}_kernel,@function\n"
    out += a.text()
    out += f""".section .rodata,"a"
.p2align 6
.amdhsa_kernel {NAME}_kernel
  .amdhsa_next_free_vgpr 256
  .amdhsa_next_free_sgpr 102
  .amdhsa_accum_offset 256
  .amdhsa_group_segment_fixed_size 0
  .amdhsa_kernarg_size 112
  .amdhsa_user_sgpr_count 2
  .amdhsa_user_sgpr_kernarg_segment_ptr 1
  .amdhsa_system_sgpr_workgroup_id_x 1
.end_amdhsa_kernel
"""
    if cfg.nomem:
        for n in (12582912, 8388608, 7340032, 67108864):
            out = out.replace(f", {n}\n", ", 0\n")
    return out, a.ninstr


if __name__ == "__main__":
    cfg = Cfg()
    outp = sys.argv[1]
    for kv in sys.argv[2:]:
        k, val = kv.split("=")
        setattr(cfg, k, type(getattr(cfg, k))(int(val)))
    txt, n = gen(cfg)
    open(outp, "w").write(txt)
    print("wrote", outp, n, "instructions")
```
